```python
import torch

def _softmax(x, axis=-1):
    return torch.softmax(x, dim=axis)
def _gelu(x):
    return torch.nn.functional.gelu(x, approximate="tanh")
def _silu(x):
    return torch.nn.functional.silu(x)
def _sigmoid(x):
    return torch.sigmoid(x)
def _layernorm(x, axis=-1, eps=1e-5):
    m = x.mean(dim=axis, keepdim=True)
    v = x.var(dim=axis, keepdim=True, unbiased=False)
    return (x - m) / torch.sqrt(v + eps)
def _scatter_add(tgt, idx, src, axis=0):
    return tgt.clone().index_add_(axis, idx, src)
def _segment_sum(src, seg, n):
    out = torch.zeros((n,) + src.shape[1:], dtype=src.dtype)
    return out.index_add_(0, seg, src)
def _pad(x, pw):
    flat = tuple(v for pair in reversed(pw) for v in pair)
    return torch.nn.functional.pad(x, flat)

kernel_name = 'standalone__memory_aug_memorizing_tr__prompt'

def setup_inputs():

    _w = (lambda a: (lambda t: t.to(torch.bfloat16) if t.is_floating_point() else t)(torch.as_tensor(a)))
    B, H, S, D = 1, 32, 2048, 192
    M, K = 2048, 2
    return {
        "q": _w((lambda *s: torch.randn(*s, dtype=torch.bfloat16) * 0.8)(B, H, S, D)),
        "k": _w((lambda *s: torch.randn(*s, dtype=torch.bfloat16) * 0.8)(B, H, S, D)),
        "v": _w((lambda *s: torch.randn(*s, dtype=torch.bfloat16) * 0.05)(B, H, S, D)),
        "mem_k": _w((lambda *s: torch.randn(*s, dtype=torch.bfloat16) * 0.8)(B, H, M, D)),
        "mem_v": _w((lambda *s: torch.randn(*s, dtype=torch.bfloat16) * 0.05)(B, H, M, D)),
        "idx": _w(torch.randint(0, M, (B, H, S, K)).to(torch.int64)),
        "gate_bias": _w((lambda *s: torch.randn(*s, dtype=torch.bfloat16) * 0.2)(H)),
    }

def reference(q, k, v, mem_k, mem_v, idx, gate_bias):
    B, H, S, D = q.shape
    K = idx.shape[-1]
    scale = D ** -0.5
    sl = torch.einsum("bhqd,bhkd->bhqk", q, k) * scale
    cm = torch.tril(torch.ones((S, S), dtype=q.dtype))
    sl = torch.where(cm[None, None] > 0, sl, -1e9)
    pl = _softmax(sl, axis=-1)
    ol = torch.einsum("bhqk,bhkd->bhqd", pl, v)
    idx_e = (lambda x, n, axis: torch.repeat_interleave(x, n, dim=axis))(idx.reshape(B, H, S * K)[..., None], D, axis=-1)
    mk = (lambda x, i, axis: torch.take_along_dim(x, i, dim=axis))(mem_k, idx_e, axis=2).reshape(B, H, S, K, D)
    mv = (lambda x, i, axis: torch.take_along_dim(x, i, dim=axis))(mem_v, idx_e, axis=2).reshape(B, H, S, K, D)
    sm = torch.einsum("bhqd,bhqkd->bhqk", q, mk) * scale
    pm = _softmax(sm, axis=-1)
    om = torch.einsum("bhqk,bhqkd->bhqd", pm, mv)
    g = _sigmoid(gate_bias)[None, :, None, None]
    return g * om + (1 - g) * ol
```

```python
import sys, struct, math

NAME = "standalone__memory_aug_memorizing_tr__prompt"
ROWB = 384
HEADB = 2048 * ROWB
VB, VSLOT, NVSLOT = 0, 12288, 5
KB, KBLK, KSLOT = 61440, 12800, 25600
RB = 112640
LDS_TOTAL = 163840
PADROW = 400


def f2u(x):
    return struct.unpack("<I", struct.pack("<f", x))[0]


CSCALE = f2u(192 ** -0.5 * math.log2(math.e))
LOG2E = f2u(math.log2(math.e))
THR_HI = f2u(2.0 ** 16)
THR_LO = f2u(2.0 ** -16)
NINF = 0xFF800000


class Cfg:
    debug = False
    prio = True
    warm_code = True


class Emit:
    def __init__(self):
        self.L = []

    def __call__(self, s):
        for x in s.split("\n"):
            x = x.strip()
            if x:
                self.L.append(x if x.endswith(":") or x.startswith(".") else "    " + x)

    def c(self, s):
        self.L.append("    ; " + s)

    def text(self):
        return "\n".join(self.L) + "\n"


def vr(a, n):
    return f"v[{a}:{a + n - 1}]"


sW, sHead, sP, sN = 3, 52, 53, 54
SRD_Q, SRD_K, SRD_V, SRD_MK, SRD_MV, SRD_IDX, SRD_OUT = 8, 12, 16, 20, 24, 28, 32
SRD_WS = 4
sEv, sEvId, sThr, sFloor, sFirst = 55, 56, 57, 58, 59
sTmpPair = 60
sMask0 = 64
sStamp = 8
sH, sG, sOMG, sC0, sDone = 55, 56, 57, 58, 59
sLink = 60
sT0, sT1, sT2, sT3 = 62, 63, 64, 65
sKoff, sVoff = 66, 67
sRowB, sRowA = 68, 69
sHalf = 70
sBlk = 71
sN4 = 72
sScale = 74
sMaskHi = 76
sRowB2, sRowA2 = 77, 78
s384 = 79
sHStamp = 80

O0, Q0 = 0, 96
SB = [144, 160]
NM = 176
PB = [192, 200]
F0 = 208
E0, NE = 240, 6
vBS, vL, vAK, vAK2, vAVe, vAVo, vT1, vT2, vAR, vAO = 246, 247, 248, 249, 250, 251, 252, 253, 254, 255


def frag(m):
    return F0 + 4 * (m % 8)


def kread(m, par):
    return [f"ds_read_b128 {vr(frag(m), 4)}, v{vAK} offset:{par * KBLK + m * 32}"]


def vread(m):
    s, blk = divmod(m - 12, 6)
    a = vAVe if blk % 2 == 0 else vAVo
    f = frag(m)
    return [f"ds_read_b64_tr_b16 {vr(f + 2 * t, 2)}, v{a} offset:{128 * (blk >> 1) + (16 * s + 8 * t) * ROWB}"
            for t in range(2)]


def nreads(m):
    return 1 if (m % 24) < 12 else 2


def mfma(m, par):
    if m < 12:
        d = SB[1 - par]
        c = vr(NM, 16) if m == 0 else vr(d, 16)
        return f"v_mfma_f32_32x32x16_bf16 {vr(d, 16)}, {vr(frag(m), 4)}, {vr(Q0 + 4 * m, 4)}, {c}"
    s, blk = divmod(m - 12, 6)
    o = O0 + 16 * blk
    return f"v_mfma_f32_32x32x16_bf16 {vr(o, 16)}, {vr(frag(m), 4)}, {vr(PB[par] + 4 * s, 4)}, {vr(o, 16)}"


def E(i):
    return E0 + i % NE


GAPS = {
    0: ["R", "e9", "a7", "W"],
    1: ["R", "e10", "a8", "c3"],
    2: ["R", "e11", "a9", "W"],
    3: ["R", "e12", "a10", "c4"],
    4: ["R", "e13", "W"],
    5: ["R", "e14", "a11"],
    6: ["R", "e15", "W"],
    7: ["R", "a12", "c5", "a13"],
    8: ["R", "a14", "c6", "W"],
    9: ["R", "a15", "c7"],
    10: ["R", "cmp", "W"],
    11: ["chk", "R", "ladd", "swapK"],
    12: ["R", "t1", "t2", "W"],
    13: ["R", "e0n"],
    14: ["R", "e1n", "W"],
    15: ["R", "e2n", "a1n"],
    16: ["bar", "R", "a2n", "c0n", "W"],
    17: ["R", "e3n", "vmin", "vxor"],
    18: ["R", "e4n", "a3n", "W"],
    19: ["R", "e5n", "a4n", "c1n"],
    20: ["R", "e6n", "a5n", "W"],
    21: ["R", "e7n", "a6n", "c2n"],
    22: ["R", "e8n", "ssub", "W"],
    23: ["R", "evt"],
}


def wait_count(g):
    gw = [x for x in range(24) if "W" in GAPS[x]]
    nxt = min([x for x in gw if x > g] + [gw[0] + 24])
    last_needed = nxt
    last_issued = g + 8
    return sum(nreads(n) for n in range(last_needed + 1, last_issued + 1))


def emit_step(e, par):
    cnt_after_m11 = None
    for m in range(24):
        e(mfma(m, par))
        if m == 11:
            cnt_after_m11 = 0
        elif cnt_after_m11 is not None:
            cnt_after_m11 += 1
        for tok in GAPS[m]:
            ins = []
            nxt = tok.endswith("n") and tok[0] in "eac" and tok[1].isdigit()
            t = tok[:-1] if nxt else tok
            S_ = SB[1 - par] if nxt else SB[par]
            P_ = PB[1 - par] if nxt else PB[par]
            if tok == "R":
                n = m + 8
                if n < 12:
                    ins = kread(n, par)
                elif n < 24:
                    ins = vread(n)
                else:
                    ins = kread(n - 24, 1 - par)
            elif tok == "W":
                ins = [f"s_waitcnt lgkmcnt({wait_count(m)})"]
            elif tok == "cmp":
                ins = [f"v_cmp_lt_f32 vcc, s{sThr}, v{vBS}"]
            elif tok == "chk":
                ins = [f"s_cbranch_vccnz L_chk{par}"]
                for x in ins:
                    e(x)
                e(f"L_chkret{par}:")
                cnt_after_m11 += 1
                continue
            elif tok == "ladd":
                ins = [f"v_add_f32 v{vL}, v{vL}, v{vBS}"]
            elif tok == "swapK":
                ins = [f"v_swap_b32 v{vAK}, v{vAK2}"] if par == 1 else []
            elif tok == "t1":
                ins = [f"v_add_u32 v{vT1}, {VSLOT}, v{vAVe}"]
            elif tok == "t2":
                ins = [f"v_add_u32 v{vT2}, {hex((VSLOT - VSLOT * NVSLOT) & 0xffffffff)}, v{vAVe}"]
            elif tok == "vmin":
                ins = [f"v_min_u32 v{vAVe}, v{vT1}, v{vT2}"]
            elif tok == "vxor":
                ins = [f"v_xor_b32 v{vAVo}, 64, v{vAVe}"]
            elif tok == "bar":
                ins = ["s_barrier"] if par == 1 else []
            elif tok == "ssub":
                ins = [f"s_sub_u32 s{sEv}, s{sEv}, 1"]
            elif tok == "evt":
                if par == 0:
                    e("s_cbranch_scc1 L_ev1")
                else:
                    e("s_cbranch_scc0 L_step0")
                continue
            elif t[0] == "e":
                i = int(t[1:])
                if nxt and i == 0:
                    assert cnt_after_m11 >= 12, cnt_after_m11
                ins = [f"v_exp_f32 v{E(i)}, v{S_ + i}"]
            elif t[0] == "a":
                i = int(t[1:])
                if i == 1:
                    ins = [f"v_add_f32 v{vBS}, v{E(0)}, v{E(1)}"]
                else:
                    ins = [f"v_add_f32 v{vBS}, v{vBS}, v{E(i)}"]
            elif t[0] == "c":
                i = int(t[1:])
                ins = [f"v_cvt_pk_bf16_f32 v{P_ + i}, v{E(2 * i)}, v{E(2 * i + 1)}"]
            else:
                raise ValueError(tok)
            for x in ins:
                e(x)
                if cnt_after_m11 is not None:
                    cnt_after_m11 += 1


def stamp(e, cfg, base, i):
    if cfg.debug:
        e(f"s_memtime s[{base + 2 * i}:{base + 2 * i + 1}]")
        e("s_waitcnt lgkmcnt(0)")


def mask_words(i):
    m = 0
    for l in range(64):
        q, h = l & 31, l >> 5
        key = 8 * (i >> 2) + 4 * h + (i & 3)
        if key > q:
            m |= 1 << l
    return m & 0xffffffff, m >> 32


def emit_o_out(e, addr_extra):
    for blk in range(6):
        for g in range(4):
            r = O0 + 16 * blk + 4 * g
            e(f"v_cvt_pk_bf16_f32 v{r}, v{r}, v{r + 1}")
            e(f"v_cvt_pk_bf16_f32 v{r + 1}, v{r + 2}, v{r + 3}")
            e(f"ds_write_b64 v{vAO}, {vr(r, 2)} offset:{addr_extra + blk * 64 + g * 16}")
    e(f"v_sub_u32 v{vT1}, v{vAR}, v{vAO}")
    e(f"v_lshrrev_b32 v{vT1}, 1, v{vT1}")
    e(f"v_sub_u32 v{vT1}, v{vAO}, v{vT1}")
    e(f"ds_write_b32 v{vT1}, v{vL} offset:{addr_extra + 384}")


def emit_state_init(e, par, masked):
    for r in range(O0, O0 + 96, 2):
        e(f"v_mov_b64 {vr(r, 2)}, 0")
    e(f"v_mov_b32 v{vT1}, {hex(NINF)}")
    for i in range(16):
        e(f"v_mov_b32 v{SB[par] + i}, v{vT1}")
    for i in range(0, 8, 2):
        e(f"v_mov_b64 {vr(PB[par] + i, 2)}, 0")
    for i in range(0, NE, 2):
        e(f"v_mov_b64 {vr(E0 + i, 2)}, 0")
    e(f"v_mov_b64 {vr(vBS, 2)}, 0")
    if masked:
        for i in range(16):
            e(f"v_cndmask_b32 v{NM + i}, 0, v{vT1}, s[{sMask0 + 2 * i}:{sMask0 + 2 * i + 1}]")
    else:
        for i in range(0, 16, 2):
            e(f"v_mov_b64 {vr(NM + i, 2)}, 0")


def emit_prime(e, par):
    for m in range(8):
        for x in kread(m, par):
            e(x)
    e("s_waitcnt lgkmcnt(7)")


def emit_vadvance(e):
    e(f"v_add_u32 v{vT1}, {VSLOT}, v{vAVe}")
    e(f"v_add_u32 v{vT2}, {hex((VSLOT - VSLOT * NVSLOT) & 0xffffffff)}, v{vAVe}")
    e(f"v_min_u32 v{vAVe}, v{vT1}, v{vT2}")


def emit_compute(e, cfg):
    e("L_compute:")
    if cfg.prio:
        e("s_setprio 3")
    stamp(e, cfg, sStamp, 0)
    if cfg.warm_code:
        e("s_getpc_b64 s[60:61]")
        e("L_pc:")
        e(f"s_sub_u32 s60, s60, L_pc-{NAME}_kernel")
        e("s_subb_u32 s61, s61, 0")
        e("v_lshlrev_b32 v1, 7, v0")
        e(f"v_min_u32 v1, L_code_end-{NAME}_kernel-4, v1")
        e(f"global_load_dword v{Q0}, v1, s[60:61]")
    e("v_and_b32 v3, 63, v0")
    e("v_and_b32 v4, 31, v3")
    e("v_lshrrev_b32 v5, 5, v3")
    e(f"v_mul_u32_u24 v4, {PADROW}, v4")
    e(f"v_lshl_add_u32 v6, v5, 4, v4")
    e(f"v_add_u32 v{vAK2}, {KB}, v6")
    e(f"v_add_u32 v{vAK}, {KB + KSLOT}, v6")
    e(f"s_mul_i32 s60, s{sW}, {KBLK}")
    e(f"s_add_u32 s60, s60, {KB}")
    e(f"v_add_u32 v{vAR}, s60, v6")
    e(f"v_lshl_add_u32 v6, v5, 3, v4")
    e(f"v_add_u32 v{vAO}, s60, v6")
    e("v_bfe_u32 v6, v3, 2, 2")
    e("v_lshl_add_u32 v6, v5, 2, v6")
    e(f"v_mul_u32_u24 v6, {ROWB}, v6")
    e("v_bfe_u32 v7, v3, 4, 1")
    e("v_lshl_add_u32 v6, v7, 5, v6")
    e("v_and_b32 v7, 3, v3")
    e("v_lshl_add_u32 v6, v7, 3, v6")
    e("v_bfe_u32 v7, v3, 3, 1")
    e("v_lshl_add_u32 v6, v7, 6, v6")
    e(f"v_add_u32 v{vAVe}, {4 * VSLOT}, v6")
    e(f"v_xor_b32 v{vAVo}, 64, v{vAVe}")
    e("v_lshlrev_b32 v6, 4, v0")
    e("v_mov_b64 v[8:9], 0")
    e("v_mov_b64 v[10:11], 0")
    for j in range(3):
        e(f"ds_write_b128 v6, v[8:11] offset:{4 * VSLOT + 4096 * j}")
    for i in range(16):
        lo, hi = mask_words(i)
        e(f"s_mov_b32 s{sMask0 + 2 * i}, {hex(lo)}")
        e(f"s_mov_b32 s{sMask0 + 2 * i + 1}, {hex(hi)}")
    e(f"s_mov_b32 s{sEv}, 0")
    e(f"s_mov_b32 s{sEvId}, 0")
    e(f"s_mov_b32 s{sThr}, {hex(THR_HI)}")
    emit_state_init(e, 1, False)
    e("s_waitcnt vmcnt(0) lgkmcnt(0)")
    e("s_barrier")
    stamp(e, cfg, sStamp, 1)
    for kk in range(12):
        e(f"ds_read_b128 {vr(Q0 + 4 * kk, 4)}, v{vAR} offset:{RB - KB + 32 * kk}")
    emit_prime(e, 1)
    e("s_branch L_step1")

    e(".p2align 6")
    e("L_step0:")
    emit_step(e, 0)
    e("L_step1:")
    emit_step(e, 1)

    for par in (0, 1):
        ret = f"s_branch L_step{par}"
        e(f"L_ev{par}:")
        e(f"s_cmp_eq_u32 s{sEvId}, 1")
        e(f"s_cbranch_scc0 L_ev{par}_n1")
        e(f"v_mov_b32 v{vT1}, {hex(NINF)}")
        for i in range(16):
            e(f"v_cndmask_b32 v{NM + i}, v{NM + i}, v{vT1}, s[{sMask0 + 2 * i}:{sMask0 + 2 * i + 1}]")
        e(f"s_mov_b32 s{sEv}, 1")
        e(f"s_mov_b32 s{sEvId}, 2")
        e(ret)
        e(f"L_ev{par}_n1:")
        e(f"s_cmp_eq_u32 s{sEvId}, 2")
        e(f"s_cbranch_scc1 L_switch{par}")
        if par == 0:
            e(f"s_cmp_eq_u32 s{sEvId}, 4")
            e("s_cbranch_scc1 L_end")
        for i in range(0, 16, 2):
            e(f"v_mov_b64 {vr(NM + i, 2)}, 0")
        e(f"s_mov_b32 s{sThr}, -1.0")
        e(f"s_add_u32 s60, s{sN}, s{sW}")
        e(f"s_sub_u32 s61, 63, s60")
        e(f"s_sub_u32 s60, s60, 2")
        e(f"s_cmp_eq_u32 s{sEvId}, 0")
        e(f"s_cselect_b32 s{sEv}, s60, s61")
        e(f"s_add_u32 s{sEvId}, s{sEvId}, 1")
        e(ret)

        e(f"L_switch{par}:")
        stamp(e, cfg, sStamp, 2)
        for kk in range(12):
            e(f"ds_read_b128 {vr(Q0 + 4 * kk, 4)}, v{vAR} offset:{RB - KB + 32 * kk}")
        e("s_waitcnt lgkmcnt(0)")
        emit_o_out(e, RB - KB)
        e(f"v_swap_b32 v{vAK}, v{vAK2}")
        emit_vadvance(e)
        emit_vadvance(e)
        e(f"v_xor_b32 v{vAVo}, 64, v{vAVe}")
        e(f"s_mov_b32 s{sEv}, 0")
        e(f"s_mov_b32 s{sEvId}, 3")
        if par == 0:
            emit_state_init(e, par, True)
        e("s_waitcnt lgkmcnt(0)")
        stamp(e, cfg, sStamp, 3)
        e("s_barrier")
        if par == 1:
            emit_state_init(e, par, True)
        stamp(e, cfg, sStamp, 4)
        emit_prime(e, par)
        e(ret)

    e("L_end:")
    stamp(e, cfg, sStamp, 5)
    e("s_nop 7")
    emit_o_out(e, 0)
    e("s_waitcnt lgkmcnt(0)")
    e("s_barrier")
    stamp(e, cfg, sStamp, 6)
    if cfg.debug:
        emit_dump(e, sStamp, 7)
    e("s_endpgm")

    for par in (0, 1):
        Sc, Sn, Pc = SB[par], SB[1 - par], PB[par]
        t0, t1, t2 = E0, E0 + 1, E0 + 2
        e(f"L_chk{par}:")
        e(f"s_mov_b32 s{sFloor}, 0")
        e(f"s_mov_b32 s{sFirst}, 0")
        e(f"s_cmp_lt_i32 s{sThr}, 0")
        e(f"s_cbranch_scc0 L_fb{par}")
        e(f"s_mov_b32 s{sThr}, {hex(THR_HI)}")
        e(f"v_mov_b32 v{t0}, v{vBS}")
        e(f"v_mov_b32 v{t1}, v{vBS}")
        e(f"v_cmp_lt_f32 s[60:61], s{sThr}, v{vBS}")
        e("s_nop 0")
        e(f"v_permlane32_swap_b32 v{t0}, v{t1}")
        e(f"v_add_f32 v{t0}, v{t0}, v{t1}")
        e(f"v_cmp_gt_f32 vcc, {hex(THR_LO)}, v{t0}")
        e("s_nop 1")
        e("s_or_b64 vcc, vcc, s[60:61]")
        e(f"s_cbranch_scc0 L_chkret{par}")
        e(f"s_mov_b32 s{sFloor}, {hex(f2u(-1e30))}")
        e(f"s_mov_b32 s{sFirst}, 1")
        e(f"L_fb{par}:")
        e("s_nop 15")
        e(f"v_max3_f32 v{t0}, v{Sc}, v{Sc + 1}, v{Sc + 2}")
        for i in range(3, 15, 2):
            e(f"v_max3_f32 v{t0}, v{t0}, v{Sc + i}, v{Sc + i + 1}")
        e(f"v_max_f32 v{t0}, v{t0}, v{Sc + 15}")
        e(f"v_mov_b32 v{t1}, v{t0}")
        e("s_nop 1")
        e(f"v_permlane32_swap_b32 v{t0}, v{t1}")
        e(f"v_max_f32 v{t0}, v{t0}, v{t1}")
        e(f"v_max_f32 v{t0}, s{sFloor}, v{t0}")
        e(f"s_cmp_eq_u32 s{sFirst}, 1")
        e(f"s_cbranch_scc1 L_fb{par}_ns")
        e(f"v_exp_f32 v{t1}, -v{t0}")
        e("s_nop 0")
        for r in range(O0, O0 + 96):
            e(f"v_mul_f32 v{r}, v{r}, v{t1}")
        e(f"v_mul_f32 v{vL}, v{vL}, v{t1}")
        e(f"L_fb{par}_ns:")
        for base in (Sc, Sn, NM):
            for i in range(16):
                e(f"v_sub_f32 v{base + i}, v{base + i}, v{t0}")
        e(f"v_mov_b32 v{vBS}, 0")
        for i in range(8):
            e(f"v_exp_f32 v{t1}, v{Sc + 2 * i}")
            e(f"v_exp_f32 v{t2}, v{Sc + 2 * i + 1}")
            e(f"v_add_f32 v{vBS}, v{vBS}, v{t1}")
            e(f"v_cvt_pk_bf16_f32 v{Pc + i}, v{t1}, v{t2}")
            e(f"v_add_f32 v{vBS}, v{vBS}, v{t2}")
        e("s_nop 1")
        e(f"s_branch L_chkret{par}")


def emit_dump(e, base, n):
    e("s_load_dwordx2 s[4:5], s[0:1], 72")
    e("s_mov_b32 s6, 0x100000")
    e("s_mov_b32 s7, 0x20000")
    e(f"s_lshl_b32 s60, s2, 3")
    e(f"s_add_u32 s60, s60, s{sW}")
    e(f"s_lshl_b32 s60, s60, 7")
    e("v_mov_b32 v1, s60")
    e("s_getreg_b32 s61, hwreg(HW_REG_HW_ID)")
    e("s_waitcnt lgkmcnt(0)")
    for i in range(n):
        e(f"v_mov_b32 v2, s{base + 2 * i}")
        e(f"buffer_store_dword v2, v1, s[4:7], 0 offen offset:{4 * i}")
        e("s_waitcnt vmcnt(0)")
    e(f"v_mov_b32 v2, s61")
    e(f"buffer_store_dword v2, v1, s[4:7], 0 offen offset:124")
    e("s_waitcnt vmcnt(0)")


hG, hKw, hVw, hRw, hLc = 1, 2, 3, 4, 5
hI0, hI1 = 6, 7
hT = 8
hL = 18
hCB = 20
hIDX = 32
hGB = 40
hQG = [64, 112]
hST = [160, 208]


class Helper:
    def __init__(self, e, cfg):
        self.e = e
        self.cfg = cfg
        self.vm = []

    def vmem(self, ins, tag):
        self.e(ins)
        self.vm.append(tag)
        assert len(self.vm) <= 50, len(self.vm)

    def wait(self, tag):
        idx = [i for i, t in enumerate(self.vm) if t == tag]
        if not idx:
            return
        last = idx[-1]
        n = len(self.vm) - 1 - last
        self.e(f"s_waitcnt vmcnt({n})")
        self.vm = self.vm[last + 1:]

    def stage_offsets(self, st):
        e = self.e
        for (dst, pos0) in ((sKoff, 2 * st + 1), (sVoff, 2 * st)):
            e(f"s_add_u32 s{sT0}, s{sBlk}, {pos0}")
            e(f"s_sub_u32 s{sT1}, 67, s{sT0}")
            e(f"s_cmp_lt_u32 s{sT0}, s{sN4}")
            e(f"s_cselect_b32 s{sT0}, s{sT0}, s{sT1}")
            if pos0 + 1 > 67:
                e(f"s_max_i32 s{sT0}, s{sT0}, 0")
            e(f"s_mul_i32 s{sT0}, s{sT0}, {32 * ROWB}")
            e(f"s_add_u32 s{dst}, s{sT0}, s{sHalf}")

    def stage_load(self, st, j):
        r = hST[st & 1] + 4 * j
        isv, jj = divmod(j, 6)
        rg, a = divmod(jj, 3)
        srd, so = (SRD_V, sVoff) if isv else (SRD_K, sKoff)
        self.vmem(f"buffer_load_dwordx4 {vr(r, 4)}, v{hG}, s[{srd}:{srd + 3}], s{so} offen offset:{rg * 3072 + a * 128}",
                  ("st", st, j))

    def stage_write(self, st, j):
        r = hST[st & 1] + 4 * j
        isv, jj = divmod(j, 6)
        rg, a = divmod(jj, 3)
        self.wait(("st", st, j))
        if isv:
            self.e(f"ds_write_b128 v{hVw}, {vr(r, 4)} offset:{rg * 3072 + a * 128}")
        else:
            self.e(f"ds_write_b128 v{hKw}, {vr(r, 4)} offset:{(st & 1) * KSLOT + rg * 3200 + a * 128}")

    def vw_advance(self):
        e = self.e
        e(f"v_add_u32 v{hT}, {2 * VSLOT}, v{hVw}")
        e(f"v_add_u32 v{hT + 1}, {hex((2 * VSLOT - VSLOT * NVSLOT) & 0xffffffff)}, v{hVw}")
        e(f"v_min_u32 v{hVw}, v{hT}, v{hT + 1}")

    def q_load(self, tile, j):
        i, a = divmod(j, 3)
        so = ([sRowB, sRowA][tile]) if i < 2 else ([sRowB2, sRowA2][tile])
        r = hQG[tile] + 4 * j
        self.vmem(f"buffer_load_dwordx4 {vr(r, 4)}, v{hG}, s[{SRD_Q}:{SRD_Q + 3}], s{so} offen offset:{(i & 1) * 3072 + a * 128}",
                  ("q", tile, j))

    def q_scale_write(self, tile, j):
        e = self.e
        i, a = divmod(j, 3)
        r = hQG[tile] + 4 * j
        self.wait(("q", tile, j))
        for k in range(4):
            e(f"v_lshlrev_b32 v{hT + 2 * k}, 16, v{r + k}")
            e(f"v_and_b32 v{hT + 2 * k + 1}, s{sMaskHi}, v{r + k}")
        for k in range(8):
            e(f"v_mul_f32 v{hT + k}, s{sScale}, v{hT + k}")
        for k in range(4):
            e(f"v_cvt_pk_bf16_f32 v{r + k}, v{hT + 2 * k}, v{hT + 2 * k + 1}")
        e(f"ds_write_b128 v{hRw}, {vr(r, 4)} offset:{RB - KB + i * 3200 + a * 128}")

    def gather_issue(self, kind, tile, i):
        e = self.e
        srd = SRD_MK if kind == "mk" else SRD_MV
        p = hIDX + 4 * tile + i
        e(f"v_and_b32 v{hI0}, 0xffff, v{p}")
        e(f"v_lshrrev_b32 v{hI1}, 16, v{p}")
        e(f"v_mad_u32_u24 v{hI0}, v{hI0}, s{s384}, v{hLc}")
        e(f"v_mad_u32_u24 v{hI1}, v{hI1}, s{s384}, v{hLc}")
        for sl in range(2):
            for a in range(3):
                r = hGB + 12 * sl + 4 * a
                self.vmem(f"buffer_load_dwordx4 {vr(r, 4)}, v{hI0 + sl}, s[{srd}:{srd + 3}], 0 offen offset:{a * 128}",
                          ("g", kind, tile, i))

    def mk_consume(self, tile, i):
        e = self.e
        self.wait(("g", "mk", tile, i))
        q = hQG[tile] + 12 * i
        acc = [hT, hT + 1, hT + 2, hT + 3]
        for k in range(12):
            for sl in range(2):
                d = acc[2 * sl + (k & 1)]
                c = "0" if k < 2 else f"v{d}"
                e(f"v_dot2_f32_bf16 v{d}, v{q + k}, v{hGB + 12 * sl + k}, {c}")
        e("s_nop 2")
        s0, s1 = hT + 4, hT + 5
        e(f"v_add_f32 v{s0}, v{acc[0]}, v{acc[1]}")
        e(f"v_add_f32 v{s1}, v{acc[2]}, v{acc[3]}")
        for dpp in ("quad_perm:[1,0,3,2]", "quad_perm:[2,3,0,1]", "row_half_mirror"):
            e("s_nop 0")
            e(f"v_add_f32_dpp v{s0}, v{s0}, v{s0} {dpp} row_mask:0xf bank_mask:0xf")
            e(f"v_add_f32_dpp v{s1}, v{s1}, v{s1} {dpp} row_mask:0xf bank_mask:0xf")
        m = hT
        e(f"v_max_f32 v{m}, v{s0}, v{s1}")
        e(f"v_sub_f32 v{s0}, v{s0}, v{m}")
        e(f"v_sub_f32 v{s1}, v{s1}, v{m}")
        e(f"v_exp_f32 v{s0}, v{s0}")
        e(f"v_exp_f32 v{s1}, v{s1}")
        e("s_nop 0")
        e(f"v_add_f32 v{m}, v{s0}, v{s1}")
        e(f"v_rcp_f32 v{m}, v{m}")
        e("s_nop 0")
        e(f"v_mul_f32 v{m}, s{sG}, v{m}")
        e(f"v_mul_f32 v{q}, v{s0}, v{m}")
        e(f"v_mul_f32 v{q + 1}, v{s1}, v{m}")

    def mv_consume(self, tile, i):
        e = self.e
        self.wait(("g", "mv", tile, i))
        q = hQG[tile] + 12 * i
        c0, c1 = hT + 8, hT + 9
        e(f"v_mov_b32 v{c0}, v{q}")
        e(f"v_mov_b32 v{c1}, v{q + 1}")
        for k in range(0, 12, 2):
            for u in range(2):
                a, b = hGB + k + u, hGB + 12 + k + u
                t = hT + 4 * u
                e(f"v_lshlrev_b32 v{t}, 16, v{a}")
                e(f"v_and_b32 v{t + 1}, s{sMaskHi}, v{a}")
                e(f"v_lshlrev_b32 v{t + 2}, 16, v{b}")
                e(f"v_and_b32 v{t + 3}, s{sMaskHi}, v{b}")
            for u in range(2):
                t = hT + 4 * u
                e(f"v_mul_f32 v{t}, v{c0}, v{t}")
                e(f"v_mul_f32 v{t + 1}, v{c0}, v{t + 1}")
            for u in range(2):
                t = hT + 4 * u
                e(f"v_fmac_f32 v{t}, v{c1}, v{t + 2}")
                e(f"v_fmac_f32 v{t + 1}, v{c1}, v{t + 3}")
            for u in range(2):
                t = hT + 4 * u
                e(f"v_cvt_pk_bf16_f32 v{q + k + u}, v{t}, v{t + 1}")

    def combine_piece(self, tile, i, region, track):
        e = self.e
        g = hQG[tile] + 12 * i
        e(f"v_sub_u32 v{hT}, v{hRw}, v{hLc}")
        e(f"ds_read_b64 {vr(hL, 2)}, v{hT} offset:{region + i * 3200 + 384}")
        for a in range(3):
            e(f"ds_read_b128 {vr(hCB + 4 * a, 4)}, v{hRw} offset:{region + i * 3200 + a * 128}")
        e("s_waitcnt lgkmcnt(3)")
        e(f"v_add_f32 v{hL}, v{hL}, v{hL + 1}")
        e(f"v_rcp_f32 v{hL}, v{hL}")
        e("s_waitcnt lgkmcnt(0)")
        e(f"v_mul_f32 v{hL}, s{sOMG}, v{hL}")
        so = ([sRowB, sRowA][tile]) if i < 2 else ([sRowB2, sRowA2][tile])
        for a in range(3):
            for k in range(0, 4, 2):
                for u in range(2):
                    o, gg = hCB + 4 * a + k + u, g + 4 * a + k + u
                    t = hT + 4 * u
                    e(f"v_lshlrev_b32 v{t}, 16, v{o}")
                    e(f"v_and_b32 v{t + 1}, s{sMaskHi}, v{o}")
                    e(f"v_lshlrev_b32 v{t + 2}, 16, v{gg}")
                    e(f"v_and_b32 v{t + 3}, s{sMaskHi}, v{gg}")
                for u in range(2):
                    t = hT + 4 * u
                    e(f"v_fmac_f32 v{t + 2}, v{hL}, v{t}")
                    e(f"v_fmac_f32 v{t + 3}, v{hL}, v{t + 1}")
                for u in range(2):
                    t = hT + 4 * u
                    e(f"v_cvt_pk_bf16_f32 v{g + 4 * a + k + u}, v{t + 2}, v{t + 3}")
            ins = (f"buffer_store_dwordx4 {vr(g + 4 * a, 4)}, v{hG}, s[{SRD_OUT}:{SRD_OUT + 3}], s{so} offen "
                   f"offset:{(i & 1) * 3072 + a * 128}")
            if track:
                self.vmem(ins, ("out", tile, i))
            else:
                e(ins)

    def combine_site(self, u, label):
        e = self.e
        e(f"s_cmp_gt_u32 s{sC0}, {u}")
        e(f"s_cbranch_scc1 {label}")
        e(f"s_call_b64 s[{sLink}:{sLink + 1}], L_combB")
        e(f"{label}:")

    def barrier(self):
        self.e("s_waitcnt lgkmcnt(0)")
        self.e("s_barrier")

    def program(self):
        e, cfg = self.e, self.cfg
        e("L_helper:")
        stamp(e, cfg, sHStamp, 0)
        e(f"s_sub_u32 s{sH}, s{sW}, 4")
        e("v_and_b32 v8, 63, v0")
        e("v_lshrrev_b32 v9, 3, v8")
        e(f"v_and_b32 v{hLc}, 7, v8")
        e(f"v_lshlrev_b32 v{hLc}, 4, v{hLc}")
        e(f"v_mul_u32_u24 v{hG}, {ROWB}, v9")
        e(f"v_add_u32 v{hG}, v{hG}, v{hLc}")
        e(f"s_lshr_b32 s{sBlk}, s{sH}, 1")
        e(f"s_and_b32 s{sT0}, s{sH}, 1")
        e(f"s_mul_i32 s{sHalf}, s{sT0}, {16 * ROWB}")
        e(f"s_add_u32 s{sN4}, s{sN}, 4")
        e(f"s_add_u32 s{sT1}, s{sN}, s{sH}")
        e(f"s_mul_i32 s{sRowB}, s{sT1}, {32 * ROWB}")
        e(f"s_sub_u32 s{sT2}, 63, s{sT1}")
        e(f"s_mul_i32 s{sRowA}, s{sT2}, {32 * ROWB}")
        e(f"s_add_u32 s{sRowB2}, s{sRowB}, {16 * ROWB}")
        e(f"s_add_u32 s{sRowA2}, s{sRowA}, {16 * ROWB}")
        e(f"s_lshl_b32 s{sT1}, s{sT1}, 8")
        e(f"s_lshl_b32 s{sT2}, s{sT2}, 8")
        e(f"s_mul_i32 s{sT3}, s{sH}, {8 * ROWB}")
        e(f"s_mul_i32 s60, s{sHead}, {HEADB}")
        e(f"s_lshl_b32 s61, s{sHead}, 14")
        e("s_waitcnt lgkmcnt(0)")
        for n, srd in enumerate((SRD_Q, SRD_K, SRD_V, SRD_MK, SRD_MV)):
            e(f"s_add_u32 s{srd}, s{36 + 2 * n}, s60")
            e(f"s_addc_u32 s{srd + 1}, s{37 + 2 * n}, 0")
            e(f"s_mov_b32 s{srd + 2}, {HEADB}")
            e(f"s_mov_b32 s{srd + 3}, 0x20000")
            if srd == SRD_K:
                for a in range(3):
                    self.vmem(f"buffer_load_dwordx4 {vr(hCB + 4 * a, 4)}, v{hG}, s[{SRD_K}:{SRD_K + 3}], s{sT3} offen offset:{a * 128}",
                              ("k0", a))
                for j in range(12):
                    self.q_load(0, j)
        e(f"s_add_u32 s{SRD_IDX}, s46, s61")
        e(f"s_addc_u32 s{SRD_IDX + 1}, s47, 0")
        e(f"s_mov_b32 s{SRD_IDX + 2}, 16384")
        e(f"s_mov_b32 s{SRD_IDX + 3}, 0x20000")
        e(f"s_add_u32 s{SRD_OUT}, s50, s60")
        e(f"s_addc_u32 s{SRD_OUT + 1}, s51, 0")
        e(f"s_mov_b32 s{SRD_OUT + 2}, {HEADB}")
        e(f"s_mov_b32 s{SRD_OUT + 3}, 0x20000")
        e(f"v_lshlrev_b32 v10, 3, v9")
        e(f"s_mov_b32 s60, s{sT1}")
        e(f"s_mov_b32 s61, s{sT2}")
        self.stage_offsets(0)
        for j in range(12):
            self.stage_load(0, j)
        for tile in range(2):
            for i in range(4):
                r = hGB + 8 * tile + 2 * i
                self.vmem(f"buffer_load_dwordx2 {vr(r, 2)}, v10, s[{SRD_IDX}:{SRD_IDX + 3}], s{60 + tile} offen offset:{64 * i}",
                          ("idx",))
        self.stage_offsets(1)
        for j in range(12):
            self.stage_load(1, j)
        e(f"s_lshr_b32 s{sT0}, s{sHead}, 1")
        e(f"s_lshl_b32 s{sT0}, s{sT0}, 2")
        e(f"s_load_dword s{sT1}, s[48:49], s{sT0}")
        e(f"v_mul_u32_u24 v11, {PADROW}, v9")
        e(f"v_add_u32 v11, v11, v{hLc}")
        e(f"s_mul_i32 s{sT2}, s{sH}, {16 * PADROW}")
        e(f"s_add_u32 s{sT2}, s{sT2}, {KB}")
        e(f"v_add_u32 v{hKw}, s{sT2}, v11")
        e(f"s_mul_i32 s{sT2}, s{sH}, {KBLK}")
        e(f"s_add_u32 s{sT2}, s{sT2}, {KB}")
        e(f"v_add_u32 v{hRw}, s{sT2}, v11")
        e(f"s_mul_i32 s{sT2}, s{sH}, {8 * PADROW}")
        e(f"s_add_u32 s{sT2}, s{sT2}, {KB + KSLOT + KBLK}")
        e(f"v_add_u32 v12, s{sT2}, v11")
        e(f"v_bfe_u32 v13, v9, 1, 1")
        e(f"v_lshlrev_b32 v13, 6, v13")
        e(f"v_xor_b32 v13, v13, v{hG}")
        e(f"s_mul_i32 s{sT2}, s{sH}, {16 * ROWB}")
        e(f"v_add_u32 v{hVw}, s{sT2}, v13")
        e(f"s_mov_b32 s{sScale}, {hex(CSCALE)}")
        e(f"s_mov_b32 s{sMaskHi}, 0xffff0000")
        e(f"s_mov_b32 s{s384}, {ROWB}")
        e(f"s_mov_b32 s{sDone}, 0")
        e(f"s_add_u32 s{sT2}, s{sH}, 1")
        e(f"s_lshr_b32 s{sT2}, s{sT2}, 1")
        e(f"s_lshr_b32 s{sC0}, s{sN}, 1")
        e(f"s_add_u32 s{sC0}, s{sC0}, s{sT2}")
        e(f"s_add_u32 s{sC0}, s{sC0}, 1")
        e("s_waitcnt lgkmcnt(0)")
        e(f"s_lshl_b32 s{sT2}, s{sT1}, 16")
        e(f"s_and_b32 s{sT1}, s{sT1}, s{sMaskHi}")
        e(f"s_bitcmp1_b32 s{sHead}, 0")
        e(f"s_cselect_b32 s{sT1}, s{sT1}, s{sT2}")
        e(f"v_mov_b32 v14, s{sT1}")
        e(f"v_mul_f32 v14, {hex(LOG2E)}, v14")
        e(f"v_exp_f32 v14, -v14")
        e("s_nop 0")
        e(f"v_add_f32 v14, 1.0, v14")
        e(f"v_rcp_f32 v14, v14")
        e("s_nop 0")
        e(f"v_cvt_pk_bf16_f32 v14, v14, v14")
        e(f"v_lshlrev_b32 v14, 16, v14")
        e(f"v_sub_f32 v15, 1.0, v14")
        e(f"v_cvt_pk_bf16_f32 v15, v15, v15")
        e(f"v_lshlrev_b32 v15, 16, v15")
        e(f"v_readfirstlane_b32 s{sG}, v14")
        e(f"v_readfirstlane_b32 s{sOMG}, v15")
        for a in range(3):
            self.wait(("k0", a))
            e(f"ds_write_b128 v12, {vr(hCB + 4 * a, 4)} offset:{a * 128}")
        for j in range(12):
            self.q_scale_write(0, j)
        stamp(e, cfg, sHStamp, 1)
        self.barrier()

        jobs = ([("mk", 0, i) for i in range(4)] + [("mk", 1, i) for i in range(4)]
                + [("mv", 0, i) for i in range(4)] + [("mv", 1, i) for i in range(4)])
        for u in range(-1, 34):
            e.c(f"---- interval {u}")
            st = u + 1
            if st <= 33:
                if st + 2 <= 33:
                    self.stage_offsets(st + 2)
                for j in range(12):
                    self.stage_write(st, j)
                    if st + 2 <= 33:
                        self.stage_load(st + 2, j)
                self.vw_advance()
            if u == 0:
                self.wait(("idx",))
                for n in range(8):
                    e(f"v_lshl_or_b32 v{hIDX + n}, v{hGB + 2 * n + 1}, 16, v{hGB + 2 * n}")
            if u >= 0 and u % 2 == 0:
                k = u // 2
                if 0 <= k - 1 < 16:
                    kind, tile, i = jobs[k - 1]
                    (self.mk_consume if kind == "mk" else self.mv_consume)(tile, i)
                if k < 16:
                    self.gather_issue(*jobs[k])
            if u in (1, 3, 5):
                for j in range(4 * (u // 2), 4 * (u // 2) + 4):
                    self.q_load(1, j)
            if u in (5, 7, 9):
                b = (u - 5) // 2
                for j in range(4 * b, 4 * b + 4):
                    self.q_scale_write(1, j)
            if u >= 19 and u % 2 == 1:
                self.combine_site(u, f"L_cs{u}")
            if u == 33:
                self.combine_site(u, f"L_cs{u}b")
            if cfg.debug and u in (8, 9, 24, 25):
                e("s_waitcnt lgkmcnt(0)")
                stamp(e, cfg, sHStamp, 2 + 2 * (u == 9) + 4 * (u == 24) + 6 * (u == 25))
            self.barrier()
            if cfg.debug and u in (7, 8, 23, 24):
                stamp(e, cfg, sHStamp, 3 + 2 * (u == 8) + 4 * (u == 23) + 6 * (u == 24))
        for k in range(2):
            self.combine_site(99, f"L_cse{k}")
        self.barrier()
        for i in range(4):
            self.combine_piece(1, i, 0, True)
        if cfg.debug:
            e("s_waitcnt vmcnt(0)")
            stamp(e, cfg, sHStamp, 10)
            emit_dump(e, sHStamp, 11)
        e("s_endpgm")

        e("L_combB:")
        for i in range(4):
            e(f"s_cmp_eq_u32 s{sDone}, {i}")
            e(f"s_cbranch_scc1 L_combB{i}")
        e(f"s_setpc_b64 s[{sLink}:{sLink + 1}]")
        for i in range(4):
            e(f"L_combB{i}:")
            self.combine_piece(0, i, RB - KB, False)
            e(f"s_mov_b32 s{sDone}, {i + 1}")
            e(f"s_setpc_b64 s[{sLink}:{sLink + 1}]")


HEADER = open("cdna_kernels/" + NAME + ".s.ref").read().split("; Override launch")[0]


def generate(cfg):
    e = Emit()
    e.L.append(HEADER.rstrip("\n"))
    e.L.append(f"; @launch grid=(256,1,1) block=(512,1,1) lds={LDS_TOTAL}")
    e('.amdgcn_target "amdgcn-amd-amdhsa--gfx950"')
    e(".text")
    e(f".globl {NAME}_kernel")
    e(".p2align 8")
    e(f".type {NAME}_kernel,@function")
    e(f"{NAME}_kernel:")
    e("s_cmp_ge_u32 s2, 256")
    e("s_cbranch_scc1 L_exit")
    e("s_load_dwordx16 s[36:51], s[0:1], 0")
    e("v_lshrrev_b32 v1, 6, v0")
    e(f"s_and_b32 s{sHead}, s2, 31")
    e(f"v_readfirstlane_b32 s{sW}, v1")
    e(f"s_lshr_b32 s{sP}, s2, 5")
    e(f"s_lshl_b32 s{sN}, s{sP}, 2")
    e(f"s_sub_u32 s{sN}, 60, s{sN}")
    e(f"s_cmp_lt_u32 s{sW}, 4")
    e("s_cbranch_scc1 L_compute")
    Helper(e, cfg).program()
    emit_compute(e, cfg)
    e("L_exit:")
    e("s_endpgm")
    e("L_code_end:")
    e.L.append(f""".section .rodata,"a"
.p2align 6
.amdhsa_kernel {NAME}_kernel
  .amdhsa_next_free_vgpr 256
  .amdhsa_next_free_sgpr 102
  .amdhsa_accum_offset 256
  .amdhsa_group_segment_fixed_size 0
  .amdhsa_kernarg_size 80
  .amdhsa_user_sgpr_count 2
  .amdhsa_user_sgpr_kernarg_segment_ptr 1
  .amdhsa_system_sgpr_workgroup_id_x 1
.end_amdhsa_kernel""")
    return e.text()


if __name__ == "__main__":
    cfg = Cfg()
    out = "cdna_kernels/" + NAME + ".s"
    for a in sys.argv[1:]:
        if a.startswith("-o"):
            out = a[2:]
        else:
            k, v = a.split("=")
            setattr(cfg, k, eval(v))
    open(out, "w").write(generate(cfg))
```

```python
import sys, struct, math

NAME = "standalone__memory_aug_memorizing_tr__prompt"
ROWB = 384
BLKB = 32 * ROWB
HEADB = 2048 * ROWB
VSLOT, NVSLOT = 12288, 5
KB, KRG, KBLK = 61440, 3136, 12544
KSLOT = 2 * KBLK
RB, RBLK = 112640, 12800
ROFF = RB - KB
LDS_TOTAL = 163840
PADROW = 400


def f2u(x):
    return struct.unpack("<I", struct.pack("<f", x))[0]


CSCALE = f2u(192 ** -0.5 * math.log2(math.e))
LOG2E = f2u(math.log2(math.e))
THR_HI = f2u(2.0 ** 16)
NINF = 0xFF800000


class Cfg:
    debug = False
    tl = False
    warm_code = True
    nt_kv = ""
    nt_q = ""
    nt_g = ""
    nt_out = "nt"
    nt_pf = ""
    pd = 8
    shift = True
    mfma_s = False
    group = True
    bstart = 0.25
    ab_nojobs = False


class Emit:
    def __init__(self):
        self.L = []

    def __call__(self, s):
        for x in s.split("\n"):
            x = x.strip()
            if x:
                self.L.append(x if x.endswith(":") or x.startswith(".") else "  " + x)

    def c(self, s):
        self.L.append("  ; " + s)

    def text(self):
        return "\n".join(self.L) + "\n"


def vr(a, n):
    return f"v[{a}:{a + n - 1}]"


sW, sHead, sP, sN = 3, 52, 53, 54
SRD_Q, SRD_K, SRD_V, SRD_MK, SRD_MV, SRD_IDX, SRD_OUT = 8, 12, 16, 20, 24, 28, 32
sEv, sEvId, sThr = 55, 56, 57
sFbLink = 58
sMask0 = 64
sStamp = 12
sCScale = 96
sCMaskHi = 98
sRW = 99
sH, sG, sOMG, sC0, sDone = 55, 56, 57, 58, 59
sLink = 60
sT0, sT1, sT2, sT3 = 62, 63, 64, 65
sKoff, sVoff = 66, 67
sRowB, sRowA = 68, 69
sKl, sVl = 70, 71
sSw, sDir = 72, 73
sScale = 74
sMaskHi = 75
sRowB2, sRowA2 = 76, 77
s384 = 78
sX = 79
SRD_PF = 4
sHStamp = 80
sKlT, sVlT = 86, 90
sA0, sQl = 95, 96
sKend, sHoff = 100, 101

O0, Q0 = 0, 96
SB = [144, 160]
NM = 176
PB = [192, 200]
F0 = 208
E0, NE = 240, 6
vBS, vL, vAK, vAK2, vAVe, vAVo, vT1, vT2, vAKo, vT3 = 246, 247, 248, 249, 250, 251, 252, 253, 254, 255


def frag(m):
    return F0 + 4 * (m % 8)


def kread(m, par):
    a = vAK if m % 2 == 0 else vAKo
    return [f"ds_read_b128 {vr(frag(m), 4)}, v{a} offset:{par * KBLK + (m >> 1) * 64}"]


def vread_sb(s, blk, f):
    a = vAVe if blk % 2 == 0 else vAVo
    return [f"ds_read_b64_tr_b16 {vr(f + 2 * t, 2)}, v{a} offset:{128 * (blk >> 1) + (16 * s + 8 * t) * ROWB}"
            for t in range(2)]


def vread(m):
    s, blk = divmod(m - 12, 6)
    return vread_sb(s, blk, frag(m))


def nreads(m):
    return 1 if (m % 24) < 12 else 2


def mfma_qk(m, par):
    d = SB[1 - par]
    c = vr(NM, 16) if m == 0 else vr(d, 16)
    return f"v_mfma_f32_32x32x16_bf16 {vr(d, 16)}, {vr(frag(m), 4)}, {vr(Q0 + 4 * m, 4)}, {c}"


def mfma_pv(s, blk, f, par):
    o = O0 + 16 * blk
    return f"v_mfma_f32_32x32x16_bf16 {vr(o, 16)}, {vr(f, 4)}, {vr(PB[par] + 4 * s, 4)}, {vr(o, 16)}"


def mfma(m, par):
    if m < 12:
        return mfma_qk(m, par)
    s, blk = divmod(m - 12, 6)
    return mfma_pv(s, blk, frag(m), par)


def E(i):
    return E0 + i % NE


GAPS = {
    0: ["R", "e9", "a7", "W"],
    1: ["R", "e10", "a8", "c3"],
    2: ["R", "e11", "a9", "W"],
    3: ["R", "e12", "a10", "c4"],
    4: ["R", "e13", "W"],
    5: ["R", "e14", "a11"],
    6: ["R", "e15", "W"],
    7: ["R", "a12", "c5", "a13"],
    8: ["R", "a14", "c6", "W"],
    9: ["R", "a15", "c7"],
    10: ["R", "cmp", "swapK", "W"],
    11: ["chk", "R", "ladd", "xorK"],
    12: ["R", "t1", "t2", "W"],
    13: ["R", "e0n"],
    14: ["R", "e1n", "W"],
    15: ["R", "e2n", "a1n"],
    16: ["bar", "R", "a2n", "c0n", "W"],
    17: ["R", "e3n", "vmin", "vxor"],
    18: ["R", "e4n", "a3n", "W"],
    19: ["R", "e5n", "a4n", "c1n"],
    20: ["R", "e6n", "a5n", "W"],
    21: ["R", "e7n", "a6n", "c2n"],
    22: ["R", "e8n", "ssub", "W"],
    23: ["R", "evt"],
}


def is_sm(tok):
    return tok[0] in "eac" and tok[1].isdigit()


SM_FIRST = [t[:-1] for g in range(24) for t in GAPS[g] if is_sm(t) and t.endswith("n")]
SM_SECOND = [t for g in range(24) for t in GAPS[g] if is_sm(t) and not t.endswith("n")]


def sm_ins(t, S_, P_):
    i = int(t[1:])
    if t[0] == "e":
        return f"v_exp_f32 v{E(i)}, v{S_ + i}"
    if t[0] == "a":
        if i == 1:
            return f"v_add_f32 v{vBS}, v{E(0)}, v{E(1)}"
        return f"v_add_f32 v{vBS}, v{vBS}, v{E(i)}"
    return f"v_cvt_pk_bf16_f32 v{P_ + i}, v{E(2 * i)}, v{E(2 * i + 1)}"


def sm_seq(toks, S_, P_):
    out, last_exp = [], None
    for t in toks:
        i = int(t[1:])
        uses = {i} if t[0] == "a" else ({2 * i, 2 * i + 1} if t[0] == "c" else set())
        if t == "a1":
            uses = {0, 1}
        if last_exp is not None and last_exp in uses:
            out.append("s_nop 0")
        out.append(sm_ins(t, S_, P_))
        last_exp = i if t[0] == "e" else None
    return out


def wait_count(g):
    gw = [x for x in range(24) if "W" in GAPS[x]]
    nxt = min([x for x in gw if x > g] + [gw[0] + 24])
    return sum(nreads(n) for n in range(nxt + 1, g + 8 + 1))


STUBS = []


def chk_site(e, par):
    n = len(STUBS)
    STUBS.append(par)
    e(f"s_cbranch_vccnz L_stub{n}")
    e(f"L_chkret{n}:")


def V_T1():
    return f"v_add_u32 v{vT1}, {VSLOT}, v{vAVe}"


def V_T2():
    return f"v_add_u32 v{vT2}, {hex((VSLOT - VSLOT * NVSLOT) & 0xffffffff)}, v{vAVe}"


def V_MIN():
    return f"v_min_u32 v{vAVe}, v{vT1}, v{vT2}"


def V_XOR():
    return f"v_xor_b32 v{vAVo}, 64, v{vAVe}"


def K_SWAP():
    return [f"v_swap_b32 v{vAK}, v{vAK2}", f"v_xor_b32 v{vAKo}, 32, v{vAK}"]


def mask_ins(i, src):
    return f"v_cndmask_b32 v{NM + i}, {src}, v{vT3}, s[{sMask0 + 2 * i}:{sMask0 + 2 * i + 1}]"


def emit_step(e, par, mask=False):
    extra = {}
    if mask:
        ex = [f"v_mov_b32 v{vT3}, {hex(NINF)}"] + [mask_ins(i, f"v{NM + i}") for i in range(16)]
        gaps = [2, 3, 4, 5, 6, 7, 8, 9, 9, 12, 13, 13, 14, 15, 17, 18, 19]
        for g, x in zip(gaps, ex):
            extra.setdefault(g, []).append(x)
    cnt = None
    for m in range(24):
        e(mfma(m, par))
        if m == 11:
            cnt = 0
        elif cnt is not None:
            cnt += 1
        toks = list(GAPS[m])
        for tok in toks:
            ins = []
            if tok == "W" or (tok == toks[-1] and "W" not in toks):
                pre = extra.pop(m, [])
                if tok == "W":
                    ins += pre
                    pre = []
            else:
                pre = []
            if tok == "R":
                n = m + 8
                ins += kread(n, par) if n < 12 else (vread(n) if n < 24 else kread(n - 24, 1 - par))
            elif tok == "W":
                ins += [f"s_waitcnt lgkmcnt({wait_count(m)})"]
            elif tok == "cmp":
                ins += [f"v_cmp_lt_f32 vcc, s{sThr}, v{vBS}"]
            elif tok == "chk":
                chk_site(e, par)
                cnt += 1
            elif tok == "ladd":
                ins += [f"v_add_f32 v{vL}, v{vL}, v{vBS}"]
            elif tok == "swapK":
                ins += K_SWAP()[:1] if par == 1 else []
            elif tok == "xorK":
                ins += K_SWAP()[1:] if par == 1 else []
            elif tok == "t1":
                ins += [V_T1()]
            elif tok == "t2":
                ins += [V_T2()]
            elif tok == "vmin":
                ins += [V_MIN()]
            elif tok == "vxor":
                ins += [V_XOR()]
            elif tok == "bar":
                ins += ["s_barrier"]
            elif tok == "ssub":
                ins += [f"s_mov_b32 s{sEv}, 0", f"s_mov_b32 s{sEvId}, 1"] if mask else [f"s_sub_u32 s{sEv}, s{sEv}, 1"]
            elif tok == "evt":
                if mask:
                    ins += [f"s_branch L_step{1 - par}"]
                else:
                    ins += ["s_cbranch_scc1 L_ev1"] if par == 0 else ["s_cbranch_scc0 L_step0"]
            elif is_sm(tok):
                nxt = tok.endswith("n")
                t = tok[:-1] if nxt else tok
                if t == "e0":
                    assert cnt >= 12, cnt
                ins += [sm_ins(t, SB[1 - par] if nxt else SB[par], PB[1 - par] if nxt else PB[par])]
            else:
                raise ValueError(tok)
            ins += pre
            for x in ins:
                e(x)
                if cnt is not None:
                    cnt += 1
    assert not extra


class LQ:
    def __init__(self, e):
        self.e, self.q = e, []

    def op(self, ins, tag):
        self.e(ins)
        self.q.append(tag)

    def wait(self, tag):
        idx = [i for i, t in enumerate(self.q) if t == tag]
        if idx:
            n = len(self.q) - 1 - idx[-1]
            self.e(f"s_waitcnt lgkmcnt({min(n, 14)})")
            self.q = self.q[idx[-1] + 1:]


def stamp(e, cfg, base, i):
    if cfg.debug:
        e(f"s_memtime s[{base + 2 * i}:{base + 2 * i + 1}]")
        e("s_waitcnt lgkmcnt(0)")


def mask_words(i):
    m = 0
    for l in range(64):
        q, h = l & 31, l >> 5
        if 8 * (i >> 2) + 4 * h + (i & 3) > q:
            m |= 1 << l
    return m & 0xffffffff, m >> 32


def q_frag_reads(e, op):
    e(f"v_min_u32 v{vT1}, v{vAK}, v{vAK2}")
    e(f"v_add_u32 v{vT1}, s{sRW}, v{vT1}")
    e(f"v_xor_b32 v{vT2}, 32, v{vT1}")
    for kk in range(12):
        op(f"ds_read_b128 {vr(Q0 + 4 * kk, 4)}, v{vT1 if kk % 2 == 0 else vT2} offset:{ROFF + (kk >> 1) * 64}")


def scale_ins(regs, T):
    o = []
    for k, r in enumerate(regs):
        o.append(f"v_lshlrev_b32 v{T + 2 * k}, 16, v{r}")
        o.append(f"v_and_b32 v{T + 2 * k + 1}, s{sCMaskHi}, v{r}")
    for k, r in enumerate(regs):
        o.append(f"v_pk_mul_f32 {vr(T + 2 * k, 2)}, {vr(T + 2 * k, 2)}, s[{sCScale}:{sCScale + 1}]")
    for k, r in enumerate(regs):
        o.append(f"v_cvt_pk_bf16_f32 v{r}, v{T + 2 * k}, v{T + 2 * k + 1}")
    return o


def emit_last(e, cfg, par, end):
    lq = LQ(e)
    reg = 0 if end else ROFF
    order = [(s, blk) for blk in range(6) for s in range(2)]
    for n in range(8):
        for x in vread_sb(*order[n], frag(n)):
            lq.op(x, ("v", n))
    if not end:
        q_frag_reads(e, lambda x: lq.op(x, "q"))
    for x in sm_seq(SM_SECOND, SB[par], PB[par]):
        e(x)
    e(f"v_cmp_lt_f32 vcc, s{sThr}, v{vBS}")
    e(f"v_mbcnt_lo_u32_b32 v{vT3}, -1, 0")
    e(f"v_mbcnt_hi_u32_b32 v{vT3}, -1, v{vT3}")
    chk_site(e, par)
    e(f"v_add_f32 v{vL}, v{vL}, v{vBS}")
    pend = [f"v_and_b32 v{vT2}, 31, v{vT3}",
            f"v_lshrrev_b32 v{vT3}, 5, v{vT3}",
            f"v_mul_u32_u24 v{vT2}, {PADROW}, v{vT2}",
            f"v_add_u32 v{vT2}, s{sRW}, v{vT2}",
            f"v_add_u32 v{vT2}, {KB}, v{vT2}",
            f"v_lshlrev_b32 v{vT3}, 2, v{vT3}",
            f"v_lshl_add_u32 v{vT2}, v{vT3}, 1, v{vT2}",
            f"v_sub_u32 v{vT3}, v{vT2}, v{vT3}"]
    pend.append(f"ds_write_b32 v{vT3}, v{vL} offset:{reg + 384}")
    epi = []
    for blk in range(6):
        for g in range(4):
            r = O0 + 16 * blk + 4 * g
            epi.append((blk, f"v_cvt_pk_bf16_f32 v{r}, v{r}, v{r + 1}"))
            epi.append((blk, f"v_cvt_pk_bf16_f32 v{r + 1}, v{r + 2}, v{r + 3}"))
            epi.append((blk, f"ds_write_b64 v{vT2}, {vr(r, 2)} offset:{reg + blk * 64 + g * 16}"))
    since = {}

    def out(x):
        if x.startswith("ds_"):
            lq.op(x, "w")
        else:
            e(x)
        for b in since:
            since[b] += 1

    for n in range(12):
        s, blk = order[n]
        lq.wait(("v", n))
        e(mfma_pv(s, blk, frag(n), par))
        for b in since:
            since[b] += 1
        if s == 1:
            since[blk] = 0
        room = 5
        if n + 8 < 12:
            for x in vread_sb(*order[n + 8], frag(n + 8)):
                lq.op(x, ("v", n + 8))
                for b in since:
                    since[b] += 1
            room -= 2
        while room > 0 and pend:
            out(pend.pop(0))
            room -= 1
        while room > 0 and epi and since.get(epi[0][0], -1) >= 12:
            out(epi.pop(0)[1])
            room -= 1
    if not end:
        e("s_barrier")
    while epi:
        need = 12 - since[epi[0][0]]
        if need > 0:
            e(f"s_nop {need - 1}")
            for b in since:
                since[b] += need
        out(epi.pop(0)[1])
    return lq


def emit_first(e, cfg, par):
    lq = LQ(e)
    S_, P_ = SB[1 - par], PB[1 - par]
    for m in range(8):
        lq.op(kread(m, par)[0], m)
    for m in range(12):
        lq.wait(m)
        e(mfma_qk(m, par))
        if m + 8 < 12:
            lq.op(kread(m + 8, par)[0], m + 8)
    if par == 1:
        for x in K_SWAP():
            e(x)
    e("s_barrier")
    for m in range(8):
        e(kread(m, 1 - par)[0])
    e("s_nop 3")
    e(f"v_max3_f32 v{vT1}, v{S_}, v{S_ + 1}, v{S_ + 2}")
    e(f"v_max3_f32 v{vT2}, v{S_ + 3}, v{S_ + 4}, v{S_ + 5}")
    e(f"v_max3_f32 v{vT1}, v{vT1}, v{S_ + 6}, v{S_ + 7}")
    e(f"v_max3_f32 v{vT2}, v{vT2}, v{S_ + 8}, v{S_ + 9}")
    e(f"v_max3_f32 v{vT1}, v{vT1}, v{S_ + 10}, v{S_ + 11}")
    e(f"v_max3_f32 v{vT2}, v{vT2}, v{S_ + 12}, v{S_ + 13}")
    e(f"v_max3_f32 v{vT1}, v{vT1}, v{S_ + 14}, v{S_ + 15}")
    e(f"v_max_f32 v{vT1}, v{vT1}, v{vT2}")
    e(f"v_mov_b32 v{vT2}, v{vT1}")
    e(f"s_sub_u32 s{sEv}, s{sEv}, 1")
    e("s_nop 0")
    e(f"v_permlane32_swap_b32 v{vT1}, v{vT2}")
    e(f"v_max_f32 v{vT3}, v{vT1}, v{vT2}")
    e(f"v_sub_f32 v{vT1}, 0, v{vT3}")
    e(f"v_sub_f32 v{vT2}, 0, v{vT3}")
    for i in range(0, 16, 2):
        e(f"v_pk_add_f32 {vr(S_ + i, 2)}, {vr(S_ + i, 2)}, {vr(vT1, 2)}")
    for i in range(0, 16, 2):
        e(f"v_mov_b64 {vr(NM + i, 2)}, {vr(vT1, 2)}")
    for x in sm_seq(SM_FIRST, S_, P_):
        e(x)
    e("s_waitcnt lgkmcnt(7)")
    e(f"s_cbranch_scc1 L_ev{1 - par}")
    e(f"s_branch L_step{1 - par}")


def emit_compute(e, cfg):
    e("L_compute:")
    e("s_setprio 2")
    stamp(e, cfg, sStamp, 0)
    if cfg.debug:
        e(f"s_memrealtime s[{sStamp + 14}:{sStamp + 15}]")
    L, A, B_, C_ = 60, 61, 62, 63
    e(f"v_and_b32 v{L}, 63, v0")
    e(f"v_lshrrev_b32 v{A}, 3, v{L}")
    e(f"v_and_b32 v{B_}, 7, v{L}")
    e(f"v_mul_u32_u24 v65, {ROWB}, v{A}")
    e(f"v_lshl_add_u32 v64, v{B_}, 4, v65")
    e(f"s_add_u32 s60, s{sN}, s{sW}")
    e(f"s_sub_u32 s{sEv}, s60, 2")
    e(f"s_mul_i32 s60, s60, {BLKB}")
    e(f"s_add_u32 s61, s60, {16 * ROWB}")
    e(f"s_mul_i32 s62, s{sHead}, {HEADB}")
    e(f"v_lshlrev_b32 v66, 7, v0")
    e(f"s_mov_b32 s{SRD_Q + 2}, {HEADB}")
    e(f"s_mov_b32 s{SRD_Q + 3}, 0x20000")
    e("s_waitcnt lgkmcnt(0)")
    e(f"s_add_u32 s{SRD_Q}, s36, s62")
    e(f"s_addc_u32 s{SRD_Q + 1}, s37, 0")
    nextra = 0
    if cfg.warm_code:
        e("s_getpc_b64 s[62:63]")
        e("L_pc:")
        e(f"s_sub_u32 s62, s62, L_pc-{NAME}_kernel")
        e("s_subb_u32 s63, s63, 0")
        e(f"s_and_b32 s{sEvId}, s{sP}, 3")
        e(f"s_lshl_b32 s{sEvId}, s{sEvId}, 14")
        e(f"v_lshrrev_b32 v66, 1, v66")
        e(f"v_add_u32 v66, s{sEvId}, v66")
        e(f"v_min_u32 v66, L_code_end-{NAME}_kernel-4, v66")
        e(f"global_load_dword v{F0}, v66, s[62:63]")
    for j in range(12):
        i, a = divmod(j, 3)
        e(f"buffer_load_dwordx4 {vr(4 * j, 4)}, v64, s[{SRD_Q}:{SRD_Q + 3}], s{60 + (i >> 1)} offen "
          f"offset:{(i & 1) * 3072 + a * 128} {cfg.nt_q}")
    e(f"s_mul_i32 s{sRW}, s{sW}, {RBLK}")
    e(f"v_bfe_u32 v{C_}, v{L}, 4, 2")
    e(f"v_xor_b32 v{C_}, v{C_}, v{B_}")
    e(f"v_lshl_add_u32 v65, v{C_}, 4, v65")
    e(f"v_add_u32 v65, s{sRW}, v65")
    e(f"v_add_u32 v65, {KB}, v65")
    e(f"v_bfe_u32 v{A}, v{L}, 3, 2")
    e(f"v_mul_u32_u24 v{A}, {KRG}, v{A}")
    e(f"v_mul_u32_u24 v{B_}, {ROWB}, v{B_}")
    e(f"v_add_u32 v{A}, v{A}, v{B_}")
    e(f"v_bfe_u32 v{B_}, v{L}, 1, 2")
    e(f"v_lshrrev_b32 v{C_}, 5, v{L}")
    e(f"v_xor_b32 v{B_}, v{B_}, v{C_}")
    e(f"v_lshl_add_u32 v{A}, v{B_}, 4, v{A}")
    e(f"v_add_u32 v{vAK2}, {KB}, v{A}")
    e(f"v_add_u32 v{vAK}, {KB + KSLOT}, v{A}")
    e(f"v_xor_b32 v{vAKo}, 32, v{vAK}")
    e(f"v_bfe_u32 v{A}, v{L}, 2, 2")
    e(f"v_lshl_add_u32 v{A}, v{C_}, 2, v{A}")
    e(f"v_mul_u32_u24 v{A}, {ROWB}, v{A}")
    e(f"v_bfe_u32 v{B_}, v{L}, 4, 1")
    e(f"v_lshl_add_u32 v{A}, v{B_}, 5, v{A}")
    e(f"v_and_b32 v{B_}, 3, v{L}")
    e(f"v_lshl_add_u32 v{A}, v{B_}, 3, v{A}")
    e(f"v_bfe_u32 v{B_}, v{L}, 3, 1")
    e(f"v_lshl_add_u32 v{vAVe}, v{B_}, 6, v{A}")
    e(V_XOR())
    for r in range(68, 96, 2):
        e(f"v_mov_b64 {vr(r, 2)}, 0")
    for i in range(0, 16, 2):
        e(f"v_mov_b64 {vr(NM + i, 2)}, 0")
    e(f"v_mov_b32 v{vL}, 0")
    for i in range(16):
        lo, hi = mask_words(i)
        e(f"s_mov_b32 s{sMask0 + 2 * i}, {hex(lo)}")
        e(f"s_mov_b32 s{sMask0 + 2 * i + 1}, {hex(hi)}")
    e(f"s_mov_b32 s{sEvId}, 0")
    e(f"s_mov_b32 s{sThr}, {hex(THR_HI)}")
    e(f"s_mov_b32 s{sCScale}, {hex(CSCALE)}")
    e(f"s_mov_b32 s{sCScale + 1}, {hex(CSCALE)}")
    e(f"s_mov_b32 s{sCMaskHi}, 0xffff0000")
    for j in range(12):
        i, a = divmod(j, 3)
        e(f"s_waitcnt vmcnt({11 - j})")
        for x in scale_ins(range(4 * j, 4 * j + 4), 48):
            e(x)
        e(f"ds_write_b128 v65, {vr(4 * j, 4)} offset:{ROFF + i * KRG + a * 128}")
    q_frag_reads(e, e)
    for r in range(0, 68, 2):
        e(f"v_mov_b64 {vr(r, 2)}, 0")
    e("s_waitcnt lgkmcnt(0)")
    stamp(e, cfg, sStamp, 9)
    e("s_barrier")
    stamp(e, cfg, sStamp, 1)
    e("L_first1:")
    emit_first(e, cfg, 1)

    e(".p2align 6")
    e("L_step0:")
    emit_step(e, 0)
    e("L_step1:")
    emit_step(e, 1)

    for par in (0, 1):
        e(f"L_ev{par}:")
        e(f"s_cmp_eq_u32 s{sEvId}, 0")
        e(f"s_cbranch_scc0 L_ev{par}_n")
        emit_step(e, par, mask=True)
        e(f"L_ev{par}_n:")
        if par == 1:
            e(f"s_cmp_eq_u32 s{sEvId}, 2")
            e("s_cbranch_scc1 L_end")
        stamp(e, cfg, sStamp, 2)
        lq = emit_last(e, cfg, par, False)
        e("s_setprio 0")
        for k in range(4):
            e(V_T1())
            e(V_T2())
            e(V_MIN())
        e(V_XOR())
        if par == 0:
            for x in K_SWAP():
                e(x)
        e(f"s_add_u32 s60, s{sN}, s{sW}")
        e(f"s_sub_u32 s{sEv}, 63, s60")
        e(f"s_mov_b32 s{sEvId}, 2")
        sc = [scale_ins(range(Q0 + 4 * j, Q0 + 4 * j + 4), F0) for j in range(12)]
        for j in range(5):
            for x in sc[j]:
                e(x)
        e("s_waitcnt lgkmcnt(0)")
        stamp(e, cfg, sStamp, 3)
        e("s_barrier")
        for j in range(5, 12):
            for x in sc[j]:
                e(x)
        for r in range(O0, O0 + 96, 2):
            e(f"v_mov_b64 {vr(r, 2)}, 0")
        e(f"v_mov_b32 v{vL}, 0")
        e(f"v_mov_b32 v{vT3}, {hex(NINF)}")
        for i in range(16):
            e(mask_ins(i, "0"))
        e("s_setprio 2")
        stamp(e, cfg, sStamp, 4)
        e("s_barrier")
        if par == 0:
            e("s_branch L_first1")
        else:
            emit_first(e, cfg, 0)

    e("L_end:")
    stamp(e, cfg, sStamp, 5)
    emit_last(e, cfg, 1, True)
    e("s_waitcnt lgkmcnt(0)")
    e("s_barrier")
    stamp(e, cfg, sStamp, 6)
    if cfg.debug:
        e(f"s_memrealtime s[{sStamp + 16}:{sStamp + 17}]")
        e("s_waitcnt lgkmcnt(0)")
        emit_dump(e, sStamp, 10)
    e("s_endpgm")

    for n, par in enumerate(STUBS):
        e(f"L_stub{n}:")
        e(f"s_call_b64 s[{sFbLink}:{sFbLink + 1}], L_fb{par}")
        e(f"s_branch L_chkret{n}")
    for par in (0, 1):
        Sc, Sn, Pc = SB[par], SB[1 - par], PB[par]
        t0, t1, t2 = E0, E0 + 1, E0 + 2
        e(f"L_fb{par}:")
        e("s_nop 12")
        e(f"v_max3_f32 v{t0}, v{Sc}, v{Sc + 1}, v{Sc + 2}")
        for i in range(3, 15, 2):
            e(f"v_max3_f32 v{t0}, v{t0}, v{Sc + i}, v{Sc + i + 1}")
        e(f"v_max_f32 v{t0}, v{t0}, v{Sc + 15}")
        e(f"v_mov_b32 v{t1}, v{t0}")
        e("s_nop 1")
        e(f"v_permlane32_swap_b32 v{t0}, v{t1}")
        e(f"v_max3_f32 v{t0}, v{t0}, v{t1}, 0")
        e(f"v_exp_f32 v{t1}, -v{t0}")
        e("s_nop 0")
        for r in range(O0, O0 + 96):
            e(f"v_mul_f32 v{r}, v{r}, v{t1}")
        e(f"v_mul_f32 v{vL}, v{vL}, v{t1}")
        for base in (Sc, Sn, NM):
            for i in range(16):
                e(f"v_sub_f32 v{base + i}, v{base + i}, v{t0}")
        e(f"v_mov_b32 v{vBS}, 0")
        for i in range(8):
            e(f"v_exp_f32 v{t1}, v{Sc + 2 * i}")
            e(f"v_exp_f32 v{t2}, v{Sc + 2 * i + 1}")
            e(f"v_add_f32 v{vBS}, v{vBS}, v{t1}")
            e(f"v_cvt_pk_bf16_f32 v{Pc + i}, v{t1}, v{t2}")
            e(f"v_add_f32 v{vBS}, v{vBS}, v{t2}")
        e(f"s_setpc_b64 s[{sFbLink}:{sFbLink + 1}]")


def emit_dump(e, base, n):
    e("s_load_dwordx2 s[4:5], s[0:1], 72")
    e("s_mov_b32 s6, 0x100000")
    e("s_mov_b32 s7, 0x20000")
    e(f"s_lshl_b32 s60, s2, 3")
    e(f"s_add_u32 s60, s60, s{sW}")
    e(f"s_lshl_b32 s60, s60, 7")
    e("v_mov_b32 v1, s60")
    e("s_waitcnt lgkmcnt(0)")
    for i in range(n):
        e(f"v_mov_b32 v2, s{base + 2 * i}")
        e(f"buffer_store_dword v2, v1, s[4:7], 0 offen offset:{4 * i}")
        e("s_waitcnt vmcnt(0)")


hG, hRw, hLc, hI0, hI1, hPf, hPfD = 1, 2, 3, 4, 5, 6, 7
hT = 8
hAcc = 16
hCB = 20
hIDX = 32
hC = 40
hKp, hVp = 56, 59
hL = 62
hRG = 64
hF, hLa = hAcc, hAcc + 1


def region(n):
    return hRG + 24 * n


def cost(x):
    if isinstance(x, tuple):
        return 260 if x[0] == "site" else 0
    if "v_mfma" in x:
        return 60
    op = x.split()[0]
    if op.startswith("v_fmac") or op.startswith("v_mad") or op.startswith("v_fma") or op.startswith("v_lshl_"):
        return 16
    if op in ("v_exp_f32", "v_rcp_f32"):
        return 18
    if op.startswith("v_"):
        return 10
    if op.startswith("ds_"):
        return 20
    return 5


class Helper:
    def __init__(self, e, cfg):
        self.e = e
        self.cfg = cfg
        self.vm = []
        self.nsite = 0

    def vmem(self, ins, tag, weight=1):
        self.e(ins)
        self.vm.append((tag, weight))
        assert len(self.vm) <= 56, len(self.vm)

    def wait(self, tag):
        idx = [i for i, t in enumerate(self.vm) if t[0] == tag]
        if not idx:
            return
        last = idx[-1]
        n = sum(w for _, w in self.vm[last + 1:])
        self.e(f"s_waitcnt vmcnt({n})")
        self.vm = self.vm[last + 1:]

    def put(self, item, weight=1):
        pre, ins, tag, suf = item
        if ins is None:
            return
        for x in pre:
            self.e(x)
        if isinstance(ins, list):
            for y in ins:
                self.vmem(y, tag, 0)
        else:
            self.vmem(ins, tag, weight)
        for x in suf:
            self.e(x)

    def dma3(self, srd, so, pat, m0src, pre, tag, fl):
        items = []
        for j in range(3):
            p = []
            if j == 0:
                p = [m0src] + (pre if pre else ["s_nop 0"])
            items.append((p, f"buffer_load_dwordx4 v{pat + j}, s[{srd}:{srd + 3}], s{so} offen offset:{j * 1024} {fl} lds", tag, []))
        return items

    def group_dyn(self, tag):
        adv = [f"s_add_u32 s{sKl}, s{sKl}, {KBLK}",
               f"s_cmp_ge_u32 s{sKl}, {KB + 4 * KBLK}",
               f"s_cselect_b32 s{sKl}, s{sKend}, s{sKl}",
               f"s_add_u32 s{sVl}, s{sVl}, {VSLOT}",
               f"s_cmp_ge_u32 s{sVl}, {NVSLOT * VSLOT}",
               f"s_cselect_b32 s{sVl}, s{sHoff}, s{sVl}"]
        for x in adv:
            self.e(x)
        pre = [f"s_mov_b32 s{sVoff}, s{sKoff}", f"s_add_u32 s{sKoff}, s{sKoff}, {BLKB}"]
        return (self.dma3(SRD_K, sKoff, hKp, f"s_mov_b32 m0, s{sKl}", pre, tag, self.cfg.nt_kv)
                + self.dma3(SRD_V, sVoff, hVp, f"s_mov_b32 m0, s{sVl}", None, tag, self.cfg.nt_kv))

    def group(self, lg):
        pre = [f"s_mov_b32 s{sVoff}, s{sKoff}", f"s_add_u32 s{sKoff}, s{sKoff}, s{sDir}"]
        if lg >= 28:
            pre += [f"s_cmp_eq_u32 s{sSw}, {lg}",
                    f"s_cselect_b32 s{sKoff}, s{sA0}, s{sKoff}",
                    f"s_cselect_b32 s{sDir}, {hex((-BLKB) & 0xffffffff)}, s{sDir}"]
        if lg >= 60:
            pre += [f"s_max_i32 s{sKoff}, s{sKoff}, s{sHoff}"]
        tag = ("dma", lg)
        kk = self.dma3(SRD_K, sKoff, hKp, f"s_mov_b32 m0, s{sKlT + (lg + 2) % 4}", pre, tag, self.cfg.nt_kv)
        if lg >= 60:
            kk = [(kk[0][0] + [f"s_cmp_gt_i32 s{sX}, {62 - lg}", f"s_cbranch_scc1 L_gk{lg}"],
                   [x[1] for x in kk], tag, [f"L_gk{lg}:"]), ([], None, tag, []), ([], None, tag, [])]
        return (kk
                + self.dma3(SRD_V, sVoff, hVp, f"s_mov_b32 m0, s{sVlT + (lg + 2) % 5}", None, tag, self.cfg.nt_kv))

    def pf_item(self):
        return ([], f"buffer_load_dword v{hPfD}, v{hPf}, s[{SRD_PF}:{SRD_PF + 3}], 0 offen {self.cfg.nt_pf}", ("pf",),
                [f"v_add_u32 v{hPf}, {4 * BLKB}, v{hPf}"])

    def job_items(self, job):
        kind, tile, i = job
        srd = SRD_MK if kind == "s" else SRD_MV
        tag = ("job", job)
        items = []
        if kind == "s" and tile == 1:
            qq = self.dma3(SRD_Q, sT2, hKp, f"s_add_u32 m0, s{sQl}, {i * KRG}",
                           [f"s_add_u32 s{sT2}, s{sRowA}, {i * 3072}"], tag, self.cfg.nt_q)
            items += qq if self.cfg.group else [(qq[0][0],) + x[1:] for x in qq]
        p = hIDX + 4 * tile + i
        R = region(4 * tile + i)
        for sl in range(2):
            for a in range(3):
                pre = []
                if a == 0:
                    pre = [f"v_and_b32 v{hI0}, 0xffff, v{p}" if sl == 0 else f"v_lshrrev_b32 v{hI1}, 16, v{p}",
                           f"v_mad_u32_u24 v{hI0 + sl}, v{hI0 + sl}, s{s384}, v{hLc}"]
                items.append((pre, f"buffer_load_dwordx4 {vr(R + 12 * sl + 4 * a, 4)}, v{hI0 + sl}, s[{srd}:{srd + 3}], 0 offen "
                              f"offset:{a * 128} {self.cfg.nt_g}", tag, []))
        return items

    def job_ops(self, job):
        kind, tile, i = job
        R = region(4 * tile + i)
        c0, c1 = hC + 8 * tile + 2 * i, hC + 8 * tile + 2 * i + 1
        o = [("wait", ("job", job))]
        dp = " row_mask:0xf bank_mask:0xf"
        if kind == "s":
            q = hCB
            for a in range(3):
                o.append(f"ds_read_b128 {vr(q + 4 * a, 4)}, v{hRw} offset:{ROFF + i * KRG + a * 128}")
            if self.cfg.mfma_s:
                D0, D1 = hT + 4, hAcc
                o.append("s_waitcnt lgkmcnt(0)")
                for k in range(0, 12, 2):
                    c0_, c1_ = ("0", "0") if k == 0 else (vr(D0, 4), vr(D1, 4))
                    o.append("s_setprio 3\n"
                             f"v_mfma_f32_4x4x4_16b_bf16 {vr(D0, 4)}, {vr(q + k, 2)}, {vr(R + k, 2)}, {c0_}\n"
                             f"v_mfma_f32_4x4x4_16b_bf16 {vr(D1, 4)}, {vr(q + k, 2)}, {vr(R + 12 + k, 2)}, {c1_}\n"
                             "s_setprio 0")
                s0, s1, m = hT, hT + 1, hT + 2
                o.append("s_nop 4")
                o.append(f"v_mov_b32_dpp v{s0}, v{D0} quad_perm:[0,0,0,0]{dp}")
                o.append(f"v_mov_b32_dpp v{s1}, v{D1} quad_perm:[0,0,0,0]{dp}")
                for u in range(1, 4):
                    o.append(f"v_add_f32_dpp v{s0}, v{D0 + u}, v{s0} quad_perm:[{u},{u},{u},{u}]{dp}")
                    o.append(f"v_add_f32_dpp v{s1}, v{D1 + u}, v{s1} quad_perm:[{u},{u},{u},{u}]{dp}")
                o.append("s_nop 0")
                o.append(f"v_add_f32_dpp v{s0}, v{s0}, v{s0} row_half_mirror{dp}")
                o.append(f"v_add_f32_dpp v{s1}, v{s1}, v{s1} row_half_mirror{dp}")
            else:
                for k in range(12):
                    t = hT + 4 * (k & 1)
                    m0, m1 = R + k, R + 12 + k
                    op = "v_mul_f32" if k == 0 else "v_fmac_f32"
                    o.append(f"v_lshlrev_b32 v{t + 2}, 16, v{m0}")
                    o.append(f"v_and_b32 v{m0}, s{sMaskHi}, v{m0}")
                    o.append(f"v_lshlrev_b32 v{t + 3}, 16, v{m1}")
                    o.append(f"v_and_b32 v{m1}, s{sMaskHi}, v{m1}")
                    if k == 0:
                        o.append("s_waitcnt lgkmcnt(0)")
                    o.append(f"v_lshlrev_b32 v{t}, 16, v{q + k}")
                    o.append(f"v_and_b32 v{q + k}, s{sMaskHi}, v{q + k}")
                    o.append(f"{op} v{hAcc}, v{t}, v{t + 2}")
                    o.append(f"{op} v{hAcc + 1}, v{q + k}, v{m0}")
                    o.append(f"{op} v{hAcc + 2}, v{t}, v{t + 3}")
                    o.append(f"{op} v{hAcc + 3}, v{q + k}, v{m1}")
                s0, s1, m = hAcc, hAcc + 2, hAcc + 1
                o.append(f"v_add_f32 v{s0}, v{hAcc}, v{hAcc + 1}")
                o.append(f"v_add_f32 v{s1}, v{hAcc + 2}, v{hAcc + 3}")
                for dpp in ("quad_perm:[1,0,3,2]", "quad_perm:[2,3,0,1]", "row_half_mirror"):
                    o.append("s_nop 0")
                    o.append(f"v_add_f32_dpp v{s0}, v{s0}, v{s0} {dpp}{dp}")
                    o.append(f"v_add_f32_dpp v{s1}, v{s1}, v{s1} {dpp}{dp}")
            o += [f"v_max_f32 v{m}, v{s0}, v{s1}",
                  f"v_sub_f32 v{s0}, v{s0}, v{m}",
                  f"v_sub_f32 v{s1}, v{s1}, v{m}"]
            if tile == 1:
                o += [f"v_mul_f32 v{s0}, s{sScale}, v{s0}", f"v_mul_f32 v{s1}, s{sScale}, v{s1}"]
            o += [f"v_exp_f32 v{s0}, v{s0}",
                  f"v_exp_f32 v{s1}, v{s1}",
                  "s_nop 0",
                  f"v_add_f32 v{m}, v{s0}, v{s1}",
                  f"v_rcp_f32 v{m}, v{m}",
                  "s_nop 0",
                  f"v_mul_f32 v{m}, s{sG}, v{m}",
                  f"v_mul_f32 v{c0}, v{s0}, v{m}",
                  f"v_mul_f32 v{c1}, v{s1}, v{m}"]
        else:
            for k in range(12):
                t = hT + 4 * (k & 1)
                m0, m1 = R + k, R + 12 + k
                o.append(f"v_and_b32 v{t}, s{sMaskHi}, v{m0}")
                o.append(f"v_lshlrev_b32 v{m0}, 16, v{m0}")
                o.append(f"v_lshlrev_b32 v{t + 1}, 16, v{m1}")
                o.append(f"v_and_b32 v{m1}, s{sMaskHi}, v{m1}")
                o.append(f"v_mul_f32 v{m0}, v{c0}, v{m0}")
                o.append(f"v_mul_f32 v{m1}, v{c1}, v{m1}")
                o.append(f"v_fmac_f32 v{m0}, v{c1}, v{t + 1}")
                o.append(f"v_fmac_f32 v{m1}, v{c0}, v{t}")
        return o

    def run_op(self, x):
        if isinstance(x, tuple):
            if x[0] == "wait":
                self.wait(x[1])
            else:
                self.combine_site(x[1])
        else:
            self.e(x)

    def interleave(self, items, ops, start=0.0):
        tot = sum(cost(x) for x in ops)
        n = len(items)
        pos = [tot * (start + (1 - start) * k / n) for k in range(n)]
        acc, k = 0.0, 0
        for x in ops:
            while k < n and acc >= pos[k] - 1e-9:
                self.put(items[k])
                k += 1
            self.run_op(x)
            acc += cost(x)
        while k < n:
            self.put(items[k])
            k += 1

    def combine_math(self, tile, i, a, ob, f, T):
        e = self.e
        R = region(4 * tile + i)
        for k in range(4):
            e(f"v_lshlrev_b32 v{T + k}, 16, v{ob + k}")
            e(f"v_and_b32 v{ob + k}, s{sMaskHi}, v{ob + k}")
        for k in range(4):
            e(f"v_fmac_f32 v{R + 4 * a + k}, v{f}, v{T + k}")
            e(f"v_fmac_f32 v{R + 12 + 4 * a + k}, v{f}, v{ob + k}")
        for k in range(4):
            e(f"v_cvt_pk_bf16_f32 v{R + 4 * a + k}, v{R + 4 * a + k}, v{R + 12 + 4 * a + k}")
        so = ([sRowB, sRowA][tile]) if i < 2 else ([sRowB2, sRowA2][tile])
        e(f"buffer_store_dwordx4 {vr(R + 4 * a, 4)}, v{hG}, s[{SRD_OUT}:{SRD_OUT + 3}], s{so} offen "
          f"offset:{(i & 1) * 3072 + a * 128} {self.cfg.nt_out}")

    def combine_state(self, st):
        e = self.e
        e(f"s_mov_b32 s{sDone}, {st + 1}")
        u = st - 1
        if u >= 0:
            e("s_waitcnt lgkmcnt(0)")
            if u % 3 == 0:
                e(f"v_add_f32 v{hF}, v{hL}, v{hL + 1}")
                e(f"v_rcp_f32 v{hF}, v{hF}")
        if st < 12:
            i, a = divmod(st, 3)
            e(f"ds_read_b128 {vr(hCB + 4 * (st & 1), 4)}, v{hRw} offset:{ROFF + i * 3200 + a * 128}")
            if a == 0:
                e(f"ds_read_b64 {vr(hL, 2)}, v{hLa} offset:{ROFF + i * 3200 + 384}")
        if u >= 0:
            if u % 3 == 0:
                e(f"v_mul_f32 v{hF}, s{sOMG}, v{hF}")
            self.combine_math(0, u // 3, u % 3, hCB + 4 * (u & 1), hF, hCB + 8)

    def combine_site(self, lstep):
        e = self.e
        self.nsite += 1
        label = f"L_cs{self.nsite}"
        if lstep is not None:
            e(f"s_cmp_gt_u32 s{sC0}, {lstep}")
            e(f"s_cbranch_scc1 {label}")
        e(f"s_call_b64 s[{sLink}:{sLink + 1}], L_combB")
        e(f"{label}:")

    def barrier(self):
        self.e("s_waitcnt lgkmcnt(0)")
        self.e("s_barrier")

    def prologue(self):
        e, cfg = self.e, self.cfg
        e("L_helper:")
        stamp(e, cfg, sHStamp, 0)
        e(f"s_sub_u32 s{sH}, s{sW}, 4")
        L, A, B_, C_ = 8, 9, 10, 11
        e(f"v_and_b32 v{L}, 63, v0")
        for j in range(3):
            e(f"v_add_u32 v{A}, {64 * j}, v{L}")
            e(f"v_mul_u32_u24 v{A}, 2731, v{A}")
            e(f"v_bfe_u32 v{hVp + j}, v{A}, 17, 2")
            e(f"v_xor_b32 v{C_}, v{L}, v{hVp + j}")
            e(f"v_lshlrev_b32 v{hKp + j}, 4, v{C_}")
        e(f"s_mul_i32 s60, s{sHead}, {HEADB}")
        e(f"s_mul_i32 s{sHoff}, s{sH}, 3072")
        e(f"s_mul_i32 s{sKend}, s{sH}, {KRG}")
        e(f"s_add_u32 s{sKend}, s{sKend}, {KB}")
        e(f"s_add_u32 s{sKl}, s{sKend}, {3 * KBLK}")
        e(f"s_add_u32 s{sVl}, s{sHoff}, {4 * VSLOT}")
        e(f"s_mov_b32 s{sKoff}, s{sHoff}")
        for srd in (SRD_K, SRD_V, SRD_PF):
            e(f"s_mov_b32 s{srd + 2}, {HEADB}")
            e(f"s_mov_b32 s{srd + 3}, 0x20000")
        e("s_waitcnt lgkmcnt(0)")
        for n, srd in ((1, SRD_K), (2, SRD_V)):
            e(f"s_add_u32 s{srd}, s{36 + 2 * n}, s60")
            e(f"s_addc_u32 s{srd + 1}, s{37 + 2 * n}, 0")
        for it in self.dma3(SRD_K, sKoff, hKp, f"s_mov_b32 m0, s{sKl}", None, ("dma", -5), cfg.nt_kv):
            self.put(it)
        e(f"s_and_b32 s{sT2}, s{sP}, 3")
        e(f"s_lshl2_add_u32 s{sT2}, s{sH}, s{sT2}")
        e(f"s_mul_i32 s{sT2}, s{sT2}, 3072")
        e(f"v_lshlrev_b32 v{hPf}, 6, v{L}")
        e(f"v_add_u32 v{hPf}, s{sT2}, v{hPf}")
        e(f"v_cmp_lt_u32 vcc, 47, v{L}")
        e(f"v_mov_b32 v{C_}, 0x40000000")
        e(f"s_cmp_lt_u32 s{sP}, 4")
        e(f"s_cselect_b32 s{SRD_PF}, s{SRD_K}, s{SRD_V}")
        e(f"s_cselect_b32 s{SRD_PF + 1}, s{SRD_K + 1}, s{SRD_V + 1}")
        e(f"v_cndmask_b32 v{hPf}, v{hPf}, v{C_}, vcc")
        self.put(self.pf_item())
        e("s_branch L_helper2")

    def program(self):
        e, cfg = self.e, self.cfg
        L, A, B_, C_ = 8, 9, 10, 11
        e("L_helper2:")
        for j in range(3):
            e(f"v_and_b32 v{B_}, 1, v{hVp + j}")
            e(f"v_lshlrev_b32 v{B_}, 2, v{B_}")
            e(f"v_xor_b32 v{C_}, v{L}, v{B_}")
            e(f"v_lshlrev_b32 v{hVp + j}, 4, v{C_}")
        for n, srd in ((0, SRD_Q), (3, SRD_MK), (4, SRD_MV), (7, SRD_OUT)):
            e(f"s_add_u32 s{srd}, s{36 + 2 * n}, s60")
            e(f"s_addc_u32 s{srd + 1}, s{37 + 2 * n}, 0")
            e(f"s_mov_b32 s{srd + 2}, {HEADB}")
            e(f"s_mov_b32 s{srd + 3}, 0x20000")
        e(f"s_lshl_b32 s61, s{sHead}, 14")
        e(f"s_add_u32 s{SRD_IDX}, s46, s61")
        e(f"s_addc_u32 s{SRD_IDX + 1}, s47, 0")
        e(f"s_mov_b32 s{SRD_IDX + 2}, 16384")
        e(f"s_mov_b32 s{SRD_IDX + 3}, 0x20000")
        e(f"s_lshr_b32 s{sT0}, s{sHead}, 1")
        e(f"s_lshl_b32 s{sT0}, s{sT0}, 2")
        e(f"s_load_dword s{sT3}, s[48:49], s{sT0}")
        e(f"v_lshrrev_b32 v{A}, 3, v{L}")
        e(f"v_and_b32 v{hLc}, 7, v{L}")
        e(f"v_lshlrev_b32 v{hLc}, 4, v{hLc}")
        e(f"v_mul_u32_u24 v{hG}, {ROWB}, v{A}")
        e(f"v_add_u32 v{hG}, v{hG}, v{hLc}")
        e(f"s_add_u32 s{sT1}, s{sN}, s{sH}")
        e(f"s_mul_i32 s{sRowB}, s{sT1}, {BLKB}")
        e(f"s_sub_u32 s{sT2}, 63, s{sT1}")
        e(f"s_mul_i32 s{sRowA}, s{sT2}, {BLKB}")
        e(f"s_add_u32 s{sRowB2}, s{sRowB}, {16 * ROWB}")
        e(f"s_add_u32 s{sRowA2}, s{sRowA}, {16 * ROWB}")
        e(f"s_lshl_b32 s60, s{sT1}, 8")
        e(f"s_lshl_b32 s61, s{sT2}, 8")
        if cfg.shift:
            e(f"s_lshr_b32 s{sX}, s{sP}, 1")
            e(f"s_sub_u32 s{sX}, 3, s{sX}")
        else:
            e(f"s_mov_b32 s{sX}, 0")
        e(f"s_add_u32 s{sC0}, s{sT1}, 2")
        e(f"s_sub_u32 s{sC0}, s{sC0}, s{sX}")
        e(f"s_sub_u32 s{sSw}, s{sN}, s{sX}")
        e(f"s_sub_u32 s{sSw}, s{sSw}, 1")
        e(f"s_sub_u32 s{sA0}, 63, s{sN}")
        e(f"s_mul_i32 s{sA0}, s{sA0}, {BLKB}")
        e(f"s_add_u32 s{sA0}, s{sA0}, s{sHoff}")
        e(f"s_mov_b32 s{sDir}, {BLKB}")
        e(f"v_lshlrev_b32 v{B_}, 3, v{A}")
        for tile in range(2):
            for i in range(4):
                r = region(7) + 8 * tile + 2 * i
                self.vmem(f"buffer_load_dwordx2 {vr(r, 2)}, v{B_}, s[{SRD_IDX}:{SRD_IDX + 3}], s{60 + tile} offen offset:{64 * i}",
                          ("idx",))
        e(f"s_mul_i32 s{sQl}, s{sH}, {RBLK}")
        e(f"s_add_u32 s{sT2}, s{sQl}, {KB}")
        e(f"s_add_u32 s{sQl}, s{sQl}, {RB}")
        e(f"v_and_b32 v{C_}, 48, v{L}")
        e(f"v_xor_b32 v{C_}, v{C_}, v{hG}")
        e(f"v_add_u32 v{hRw}, s{sT2}, v{C_}")
        e(f"s_mov_b32 s{sScale}, {hex(CSCALE)}")
        e(f"s_mov_b32 s{sMaskHi}, 0xffff0000")
        e(f"s_mov_b32 s{s384}, {ROWB}")
        e(f"s_mov_b32 s{sDone}, 0")
        e("s_waitcnt lgkmcnt(0)")
        e(f"s_lshl_b32 s{sT2}, s{sT3}, 16")
        e(f"s_and_b32 s{sT1}, s{sT3}, s{sMaskHi}")
        e(f"s_bitcmp1_b32 s{sHead}, 0")
        e(f"s_cselect_b32 s{sT1}, s{sT1}, s{sT2}")
        e(f"v_mov_b32 v14, s{sT1}")
        e(f"v_mul_f32 v14, {hex(LOG2E)}, v14")
        e(f"v_exp_f32 v14, -v14")
        e("s_nop 0")
        e(f"v_add_f32 v14, 1.0, v14")
        e(f"v_rcp_f32 v14, v14")
        e("s_nop 0")
        e(f"v_cvt_pk_bf16_f32 v14, v14, v14")
        e(f"v_lshlrev_b32 v14, 16, v14")
        e(f"v_sub_f32 v15, 1.0, v14")
        e(f"v_cvt_pk_bf16_f32 v15, v15, v15")
        e(f"v_lshlrev_b32 v15, 16, v15")
        e(f"v_readfirstlane_b32 s{sG}, v14")
        e(f"v_readfirstlane_b32 s{sOMG}, v15")
        for it in self.group_dyn(("dma", -4)):
            self.put(it)
        self.wait(("idx",))
        for n in range(8):
            e(f"v_lshl_or_b32 v{hIDX + n}, v{region(7) + 2 * n + 1}, 16, v{region(7) + 2 * n}")
        jobs = ([("s", 0, i) for i in range(4)] + [("s", 1, i) for i in range(4)]
                + [("v", 0, i) for i in range(4)] + [("v", 1, i) for i in range(4)])
        if cfg.ab_nojobs:
            jobs = []
        stamp(e, cfg, sHStamp, 1)
        e("s_barrier")
        for it in self.group_dyn(("dma", -3)):
            self.put(it)
        if cfg.pd:
            self.put(self.pf_item(), 0)
        e(f"s_mov_b32 s{sT3}, s{sX}")
        e("L_shift:")
        e(f"s_sub_u32 s{sT3}, s{sT3}, 1")
        e("s_cbranch_scc1 L_shift_done")
        keep = list(self.vm)
        for it in self.group_dyn(("dma", "x")):
            self.put(it)
        self.vm = keep
        e("s_waitcnt vmcnt(12)")
        e("s_barrier")
        e("s_branch L_shift")
        e("L_shift_done:")
        for j in range(5):
            if j < 4:
                e(f"s_add_u32 s{sKl}, s{sKl}, {KBLK}")
                e(f"s_cmp_ge_u32 s{sKl}, {KB + 4 * KBLK}")
                e(f"s_cselect_b32 s{sKl}, s{sKend}, s{sKl}")
                e(f"s_mov_b32 s{sKlT + j}, s{sKl}")
            e(f"s_add_u32 s{sVl}, s{sVl}, {VSLOT}")
            e(f"s_cmp_ge_u32 s{sVl}, {NVSLOT * VSLOT}")
            e(f"s_cselect_b32 s{sVl}, s{sHoff}, s{sVl}")
            e(f"s_mov_b32 s{sVlT + j}, s{sVl}")
        for it in self.group(-2):
            self.put(it)
        self.wait(("dma", -4))
        e("s_barrier")

        npf = cfg.pd // 4
        for per in range(16):
            e.c(f"---- period {per}")
            ops = self.job_ops(jobs[per]) if per < len(jobs) else []
            if per == 8:
                ops = [f"v_sub_u32 v{hLa}, v{hG}, v{hLc}",
                       f"v_mul_u32_u24 v{hLa}, 25, v{hLa}",
                       f"s_mov_b32 s{sT0}, 0xaaab",
                       f"v_lshrrev_b32 v{hLa}, 3, v{hLa}",
                       f"v_mul_u32_u24 v{hLa}, s{sT0}, v{hLa}",
                       f"s_sub_u32 s{sT0}, s{sQl}, {ROFF}",
                       f"v_lshrrev_b32 v{hLa}, 17, v{hLa}",
                       f"v_add_u32 v{hLa}, s{sT0}, v{hLa}",
                       f"v_add_u32 v{hRw}, v{hLa}, v{hLc}"] + ops
            sites = bool(jobs) and per >= 9
            tot = sum(cost(x) for x in ops)
            if per == 0:
                w = (0, 0, 0.5, 0.5)
            elif sites:
                allw = (tot + 3 * 260) / 4
                w = [min(1.0, allw / tot)] + [max(0.0, (1 - allw / tot) / 3)] * 3
            else:
                w = (0.25, 0.25, 0.25, 0.25)
            acc, ch, chunks = 0.0, 0, [[], [], [], []]
            for x in ops:
                while ch < 3 and acc >= tot * sum(w[:ch + 1]) - 1e-9:
                    ch += 1
                chunks[ch].append(x)
                acc += cost(x)
            miss = []
            if per == 0 and jobs:
                miss += self.job_items(jobs[0])
            if cfg.pd and 4 * per + 8 + cfg.pd - 4 * npf < 64:
                miss.append(self.pf_item())
                if npf and per > 0:
                    miss.append(self.pf_item())
                    npf -= 1
            nxt = self.job_items(jobs[per + 1]) if per + 1 < len(jobs) else []
            dm = sum([self.group(4 * per + iv - 1) for iv in range(4)], [])
            if per == 0:
                vms = [dm[0:6] + miss, dm[6:12], nxt + dm[12:15], dm[15:24]]
            elif cfg.group and (miss or nxt):
                vms = [miss + nxt, dm[0:8], dm[8:16], dm[16:24]]
            else:
                ex = miss + nxt
                vms = [dm[6 * iv:6 * iv + 6] + ex[iv * len(ex) // 4:(iv + 1) * len(ex) // 4] for iv in range(4)]
            for iv in range(4):
                ls = 4 * per + iv
                c = list(chunks[iv])
                if sites and iv >= 1:
                    c.insert(len(c) // 2, ("site", ls))
                self.interleave(vms[iv], c, cfg.bstart if (iv == 1 and cfg.group) else 0.0)
                self.wait(("dma", ls - 3))
                if cfg.tl:
                    e("s_memtime s[84:85]")
                self.barrier()
                if cfg.tl:
                    e("s_memtime s[80:81]")
                    e("s_waitcnt lgkmcnt(0)")
                    e("s_sub_u32 s84, s84, s82")
                    e("s_sub_u32 s85, s80, s82")
                    e("s_mov_b32 s82, s80")
                    e("s_pack_ll_b32_b16 s84, s85, s84")
                    e(f"v_writelane_b32 v0, s84, {ls}")
        e.c("---- tail")
        for x in range(3):
            e(f"s_cmp_lt_u32 s{sX}, {3 - x}")
            e(f"s_cbranch_scc0 L_tail_done")
            if x == 0:
                e(f"s_cmp_lg_u32 s{sX}, 0")
                e("s_cbranch_scc1 L_nov67")
                g = self.group(63)
                e(g[0][0][1])
                for it in g[3:]:
                    self.put(it, 0)
                e("L_nov67:")
            for y in range(3):
                self.combine_site(64 + x)
            self.wait(("dma", 61 + x))
            self.barrier()
        e("L_tail_done:")
        e(f"s_cmp_ge_u32 s{sDone}, 13")
        e("s_cbranch_scc1 L_fin")
        self.combine_site(None)
        e("s_branch L_tail_done")
        e("L_fin:")
        self.barrier()
        OB = region(0)
        for i in range(4):
            e(f"ds_read_b64 {vr(hC + 2 * i, 2)}, v{hLa} offset:{i * 3200 + 384}")
        for j in range(12):
            i, a = divmod(j, 3)
            e(f"ds_read_b128 {vr(OB + 4 * j, 4)}, v{hRw} offset:{i * 3200 + a * 128}")
        e("s_waitcnt lgkmcnt(12)")
        for i in range(4):
            e(f"v_add_f32 v{hC + 2 * i}, v{hC + 2 * i}, v{hC + 2 * i + 1}")
        for i in range(4):
            e(f"v_rcp_f32 v{hC + 2 * i}, v{hC + 2 * i}")
        e("s_nop 0")
        for i in range(4):
            e(f"v_mul_f32 v{hC + 2 * i}, s{sOMG}, v{hC + 2 * i}")
        for j in range(12):
            i, a = divmod(j, 3)
            e(f"s_waitcnt lgkmcnt({11 - j})")
            self.combine_math(1, i, a, OB + 4 * j, hC + 2 * i, hCB + 8)
        if cfg.debug:
            e("s_waitcnt vmcnt(0)")
            stamp(e, cfg, sHStamp, 2)
            emit_dump(e, sHStamp, 3)
        if cfg.tl:
            e("s_load_dwordx2 s[4:5], s[0:1], 72")
            e("s_mov_b32 s6, 0x100000")
            e("s_mov_b32 s7, 0x20000")
            e(f"s_lshl_b32 s60, s2, 2")
            e(f"s_add_u32 s60, s60, s{sH}")
            e(f"s_lshl_b32 s60, s60, 9")
            e(f"s_add_u32 s60, s60, 0x80000")
            e("v_mbcnt_lo_u32_b32 v1, -1, 0")
            e("v_mbcnt_hi_u32_b32 v1, -1, v1")
            e("v_lshlrev_b32 v1, 2, v1")
            e("s_waitcnt lgkmcnt(0)")
            e("buffer_store_dword v0, v1, s[4:7], s60 offen")
        e("s_endpgm")

        e("L_combB:")

        def tree(lo, hi):
            if hi - lo == 1:
                if lo < 13:
                    self.combine_state(lo)
                    if lo == 12:
                        e(f"s_mov_b32 s{sC0}, 1000")
                e(f"s_setpc_b64 s[{sLink}:{sLink + 1}]")
                return
            mid = (lo + hi) // 2
            e(f"s_cmp_lt_u32 s{sDone}, {mid}")
            e(f"s_cbranch_scc0 L_cb_{mid}_{hi}")
            tree(lo, mid)
            e(f"L_cb_{mid}_{hi}:")
            tree(mid, hi)
        tree(0, 13)


HEADER = open("cdna_kernels/" + NAME + ".s.ref").read().split("; Override launch")[0]


def generate(cfg):
    e = Emit()
    e.L.append(HEADER.rstrip("\n"))
    e.L.append(f"; @launch grid=(256,1,1) block=(512,1,1) lds={LDS_TOTAL}")
    e('.amdgcn_target "amdgcn-amd-amdhsa--gfx950"')
    e(".text")
    e(f".globl {NAME}_kernel")
    e(".p2align 8")
    e(f".type {NAME}_kernel,@function")
    e(f"{NAME}_kernel:")
    e("s_cmp_ge_u32 s2, 256")
    e("s_cbranch_scc1 L_exit")
    e("s_load_dwordx16 s[36:51], s[0:1], 0")
    e("v_lshrrev_b32 v1, 6, v0")
    e(f"s_and_b32 s{sHead}, s2, 31")
    e(f"v_readfirstlane_b32 s{sW}, v1")
    e(f"s_lshr_b32 s{sP}, s2, 5")
    e(f"s_lshl_b32 s{sN}, s{sP}, 2")
    e(f"s_sub_u32 s{sN}, 60, s{sN}")
    e(f"s_cmp_lt_u32 s{sW}, 4")
    e("s_cbranch_scc1 L_compute")
    h = Helper(e, cfg)
    h.prologue()
    emit_compute(e, cfg)
    h.program()
    e("L_exit:")
    e("s_endpgm")
    e("L_code_end:")
    e.L.append(f""".section .rodata,"a"
.p2align 6
.amdhsa_kernel {NAME}_kernel
  .amdhsa_next_free_vgpr 256
  .amdhsa_next_free_sgpr 102
  .amdhsa_accum_offset 256
  .amdhsa_group_segment_fixed_size 0
  .amdhsa_kernarg_size 80
  .amdhsa_user_sgpr_count 2
  .amdhsa_user_sgpr_kernarg_segment_ptr 1
  .amdhsa_system_sgpr_workgroup_id_x 1
.end_amdhsa_kernel""")
    return e.text()


if __name__ == "__main__":
    cfg = Cfg()
    out = "cdna_kernels/" + NAME + ".s"
    for a in sys.argv[1:]:
        if a.startswith("-o"):
            out = a[2:]
        else:
            k, v = a.split("=", 1)
            assert hasattr(cfg, k), k
            setattr(cfg, k, eval(v))
    open(out, "w").write(generate(cfg))
    import subprocess
    r = subprocess.run(["clang", "-x", "assembler", "-target", "amdgcn-amd-amdhsa", "-mcpu=gfx950",
                        "-c", out, "-o", "chk.o"], capture_output=True, text=True)
    if r.returncode:
        print("ASSEMBLY FAILED", out, r.stderr[:1500])
        import os
        os.remove(out)
        sys.exit(1)
```

```python
import sys, struct, math

NAME = "standalone__memory_aug_memorizing_tr__prompt"
ROWB = 384
BLKB = 32 * ROWB
HEADB = 2048 * ROWB
KRG = 3104
KBLK = 4 * KRG
VSLOT, NVSLOT = KBLK, 5
KB = NVSLOT * VSLOT
KSLOT = 2 * KBLK
RBLK = 12864
LDS_TOTAL = 163840
RB = LDS_TOTAL - 4 * RBLK
EB = RB - 4 * RBLK
ROFF = RB - EB
PADROW = 400
BIAS = 16.0
assert KB + 4 * KBLK <= RB and EB >= 4 * VSLOT


def orow(i):
    return i * 3200 + 64 * (i >> 1)


def f2u(x):
    return struct.unpack("<I", struct.pack("<f", x))[0]


CSCALE = f2u(192 ** -0.5 * math.log2(math.e))
LOG2E = f2u(math.log2(math.e))
NINF = 0xFF800000


class Cfg:
    debug = False
    tl = False
    warm_code = True
    nt_kv = ""
    nt_q = "nt"
    nt_g = ""
    nt_out = "sc0 sc1 nt"
    nt_pf = ""
    nt_pf_from = 0
    nt_qa = None
    qcont = False
    pf2 = None
    pf = True
    pd = 1
    mfma_v = True
    mfma_s = True
    group = True
    bstart = 0.25
    lastbar = 7
    lastroom = 2
    endroom = 3
    wfirst = True
    endpub = (4, 8)
    endprio = 3
    win = 0
    pfx2 = True
    presites = 3
    tlbw = False
    tlbs = 65536
    m4prio = 3
    sdur = 2
    firstbar = 2
    sitemod = (2, 0)
    vfirst = False
    tailsites = 2
    lastsites = 3
    cl = [2, 4, 6, 8, 10, 12, 16, 20, 24, 26, 28, 30, 32, 34, 36, 38, 40, 42, 44, 46, 48, 50, 53, 56, 59]
    order = ("SB0 T+SB1a SB1b+SB2a T+SB2b SB3 T+q0 T+q1 T+q2 T+q3 SA0 T+SA1a SA2 T+SA1b SA3 T+MB0a MB0b+MB1a "
             "T+MB1b MB2 T+MB3a T+MB3b MA0 T+MA1a T+MA1b MA2 MA3")
    lat = 3
    vdur = 1
    late2 = True
    early3 = False
    pfat = ()
    pf0 = 2
    pdesc = 0
    sitew = 0.45
    sburst = 6
    swplan = (19, 16, 999)
    swstep = 3
    swbar = (240, 9999)
    wsite = (0.14, 0.36, 0.14, 0.36)
    ab_nojobs = False
    ab_nodma = False
    ab_idx = 0
    ab_coarse = 0
    ab_noburst = False
    ab = ""
    seq = 1
    stag = ()
    qfirst = 0
    dend = False
    dst = False
    cfirst = True
    wprio = None
    nt_outB = None
    rewarm = 0
    feww = False
    qrr = True
    pre = 0
    preprio = (2, 1, 0)
    pfskip = False
    pfearly = 0
    k0late = False
    idxlate = True
    pseg = None
    bmax = 0
    apost = 0
    apre = 0
    verbose = False
    voffs = (0,)
    dual = 1
    dualk = 1
    flo = False
    elastic = None
    rot = 0
    hostile = False
    probe = None
    dsw = False


class Emit:
    def __init__(self):
        self.L = []

    def __call__(self, s):
        for x in s.split("\n"):
            x = x.strip()
            if x:
                self.L.append(x if x.endswith(":") or x.startswith(".") else "  " + x)

    def c(self, s):
        self.L.append("  ; " + s)

    def text(self):
        return "\n".join(self.L) + "\n"


def vr(a, n):
    return f"v[{a}:{a + n - 1}]"


sW, sHead, sP, sN = 3, 52, 53, 54
SRD_Q, SRD_K, SRD_V, SRD_MK, SRD_MV, SRD_IDX, SRD_OUT = 8, 12, 16, 20, 24, 28, 32
sEv, sEvId, sThr = 55, 56, 57
sFbLink = 58
sMask0 = 64
sStamp = 12
sCScale = 96
sCMaskHi = 98
sRW = 99
sCOmg = 100
sHiHalf, sOddRow = 4, 6
sH, sG, sOMG, sC0, sDone = 55, 56, 57, 58, 59
sLink = 60
sT0, sT1, sT2, sT3 = 62, 63, 64, 65
sKoff, sVoff = 66, 67
sRowB, sRowA = 68, 69
sKl, sVl = 70, 71
sSw, sDir = 72, 73
sScale = 74
sMaskHi = 75
sRowB2, sRowA2 = 76, 77
s384 = 78
sX = 79
SRD_PF = 4
sHStamp = 80
sKlT, sVlT = 86, 90
sA0, sQl = 95, 96
sTl = 88
sSelLo, sSelHi = 92, 93
sEl = 94
sRot = 79
sNow, sBar = 86, 70
sCode = 98
sHl, sHoff = 100, 101

O0, Q0 = 0, 96
SB = [144, 160]
PB = [176, 184]
NM = 192
LS = 200
F0 = 208
ONES = 240
E0, NE = 244, 4
vAK, vAK2, vAV, vOR, vT1, vT2, vAL, vAO = 248, 249, 250, 251, 252, 253, 254, 255
MF16 = "v_mfma_f32_16x16x32_bf16"


def frag(f):
    return F0 + 4 * (f % 8)


def kread(f, par):
    kt, ks = divmod(f, 6)
    return [f"ds_read_b128 {vr(frag(f), 4)}, v{vAK} offset:{par * KBLK + kt * 4 * ROWB + ks * 64}"]


def vread_at(dt, r):
    return [f"ds_read_b64_tr_b16 {vr(r + 2 * t, 2)}, v{vAV} offset:{32 * dt + t * 4 * ROWB}" for t in range(2)]


def mfma_qk(f, q, par, c0=None):
    kt, ks = divmod(f, 6)
    d = SB[1 - par] + 8 * kt + 4 * q
    c = vr(d, 4) if ks else (c0 if c0 is not None else vr(NM + 4 * q, 4))
    return f"{MF16} {vr(d, 4)}, {vr(frag(f), 4)}, {vr(Q0 + 24 * q + 4 * ks, 4)}, {c}"


def mfma_pv(dt, q, r, par):
    o = O0 + 8 * dt + 4 * q
    return f"{MF16} {vr(o, 4)}, {vr(r, 4)}, {vr(PB[par] + 4 * q, 4)}, {vr(o, 4)}"


vIDX = LS + 4


def sparse_rs():
    return sum(1 for m, _ in SEQ if m[0] == "rs") == 1


def mfma_rs(q, par):
    if sparse_rs():
        return f"v_smfmac_f32_16x16x64_bf16 {vr(LS, 4)}, {vr(ONES, 4)}, {vr(PB[par], 8)}, v{vIDX}"
    return f"{MF16} {vr(LS + 4 * q, 4)}, {vr(ONES, 4)}, {vr(PB[par] + 4 * q, 4)}, {vr(LS + 4 * q, 4)}"


def E(i):
    if SEQ is SEQ13:
        return [E0, E0 + 1, E0 + 2, E0 + 3, LS + 5, LS + 6][i % 6]
    return E0 + i % NE


def preg(P_, k):
    kt, q, j = k >> 2, (k >> 1) & 1, k & 1
    return P_ + 4 * q + 2 * kt + j


SEQ = [
    ((0, 0), ["R7"]), ((0, 1), ["R8", "c4"]),
    ((1, 0), ["e11"]), ((1, 1), ["R9", "W"]),
    ((2, 0), ["e12"]), ((2, 1), ["R10", "c5"]),
    ((3, 0), ["e13"]), ((3, 1), ["R11", "o1"]),
    ((4, 0), ["c6", "W"]), ((4, 1), ["R12"]),
    ((5, 0), ["e14"]), ((5, 1), ["R13"]),
    ((6, 0), ["e15"]), ((6, 1), ["R14"]),
    ((7, 0), ["o2", "W"]), ((7, 1), ["R15"]),
    ((8, 0), ["c7", "t1"]), ((8, 1), ["R16"]),
    ((9, 0), ["o3", "t2"]), ((9, 1), ["R17"]),
    ((10, 0), ["cmp", "W"]), ((10, 1), ["R18"]),
    ((11, 0), ["chk", "swapK"]), ((11, 1), ["R19"]),
    ((12, 0), ["e0n"]), ((12, 1), ["R20"]),
    (("rs", 0), ["e1n"]),
    ((13, 0), ["c0n", "W"]), ((13, 1), ["R21"]),
    (("rs", 1), ["e2n"]),
    ((14, 0), ["e3n"]), ((14, 1), ["R22"]),
    ((15, 0), ["e4n"]), ((15, 1), ["R23"]),
    ((16, 0), ["bar", "c1n"]), ((16, 1), ["R24", "W"]),
    ((17, 0), ["e5n"]), ((17, 1), ["R25", "vmin"]),
    ((18, 0), ["e6n"]), ((18, 1), ["R26", "c2n"]),
    ((19, 0), ["e7n"]), ((19, 1), ["R27", "W"]),
    ((20, 0), ["e8n"]), ((20, 1), ["R28", "c3n"]),
    ((21, 0), ["e9n"]), ((21, 1), ["R29", "o0n"]),
    ((22, 0), ["ssub"]), ((22, 1), ["R30", "W"]),
    ((23, 0), ["e10n"]), ((23, 1), ["evt"]),
]
SEQ3 = [
    ((0, 0), ["R7", "c4"]), ((1, 0), ["e11"]), ((2, 0), ["e12"]),
    ((0, 1), ["R8", "c5"]), ((1, 1), ["R9", "o1"]), ((2, 1), ["R10", "W"]),
    ((3, 0), ["e13"]), ((4, 0), ["e14"]), ((5, 0), ["e15"]),
    ((3, 1), ["R11", "c6"]), ((4, 1), ["R12"]), ((5, 1), ["R13a", "W"]),
    ((6, 0), ["R13b", "c7"]), ((7, 0), ["o2", "t1"]), ((8, 0), ["o3", "t2"]),
    ((6, 1), ["R14"]), ((7, 1), ["R15"]), ((8, 1), ["R16a", "W"]),
    ((9, 0), ["R16b", "cmp"]), ((10, 0), ["swapK"]), ((11, 0), ["chk", "W"]),
    ((9, 1), ["R17"]), ((10, 1), ["R18"]), ((11, 1), ["R19"]),
    ((12, 0), ["e0n"]), ((12, 1), ["R20"]),
    (("rs", 0), ["e1n"]),
    ((13, 0), ["c0n", "W"]), ((13, 1), ["R21"]),
    (("rs", 1), ["e2n"]),
    ((14, 0), ["e3n"]), ((14, 1), ["R22"]),
    ((15, 0), ["e4n"]), ((15, 1), ["R23"]),
    ((16, 0), ["bar", "c1n"]), ((16, 1), ["R24", "W"]),
    ((17, 0), ["e5n"]), ((17, 1), ["R25", "vmin"]),
    ((18, 0), ["e6n"]), ((18, 1), ["R26", "c2n"]),
    ((19, 0), ["e7n"]), ((19, 1), ["R27", "W"]),
    ((20, 0), ["e8n"]), ((20, 1), ["R28", "c3n"]),
    ((21, 0), ["e9n"]), ((21, 1), ["R29", "o0n"]),
    ((22, 0), ["ssub"]), ((22, 1), ["R30", "W"]),
    ((23, 0), ["e10n"]), ((23, 1), ["evt"]),
]
SEQ4 = [
    ((0, 0), ["e10"]), ((0, 1), ["R8", "c4"]),
    ((1, 0), ["e11"]), ((1, 1), ["R9", "W"]),
    ((2, 0), ["e12"]), ((2, 1), ["R10", "c5"]),
    ((3, 0), ["e13"]), ((3, 1), ["R11", "W"]),
    ((4, 0), ["e14"]), ((4, 1), ["R12"]),
    ((5, 0), ["e15"]), ((5, 1), ["R13a", "W"]),
    ((6, 0), ["R13b", "c6"]), ((6, 1), ["R14a", "c7"]),
    ((7, 0), ["R14b", "o0"]), ((7, 1), ["R15a", "o1"]),
    ((8, 0), ["R15b", "o2"]), ((8, 1), ["R16a", "W"]),
    ((9, 0), ["R16b", "o3"]), ((9, 1), ["R17a", "cmp"]),
    ((10, 0), ["R17b", "t1"]), ((10, 1), ["R18a", "swapK"]),
    ((11, 0), ["R18b", "chk"]), ((11, 1), ["R19a", "W"]),
    ((12, 0), ["R19b", "t2"]), ((12, 1), ["R20a", "ssub"]),
    (("rs", 0), ["e0n"]),
    ((13, 0), ["R20b"]), ((13, 1), ["R21a", "W"]),
    (("rs", 1), ["e1n"]),
    ((14, 0), ["R21b", "c0n"]), ((14, 1), ["R22"]),
    ((15, 0), ["e2n"]), ((15, 1), ["R23a"]),
    ((16, 0), ["R23b", "bar"]), ((16, 1), ["R24", "W"]),
    ((17, 0), ["e3n"]), ((17, 1), ["R25", "c1n"]),
    ((18, 0), ["e4n"]), ((18, 1), ["R26", "vmin"]),
    ((19, 0), ["e5n"]), ((19, 1), ["R27", "W"]),
    ((20, 0), ["e6n"]), ((20, 1), ["R28", "c2n"]),
    ((21, 0), ["e7n"]), ((21, 1), ["R29", "c3n"]),
    ((22, 0), ["e8n"]), ((22, 1), ["R30", "W"]),
    ((23, 0), ["e9n"]), ((23, 1), ["R31", "evt"]),
]
PVPART = [
    ((12, 0), ["R19b", "t2"]), ((12, 1), ["W", "R20a"]),
    (("rs", 0), ["e0n"]),
    ((13, 0), ["R20b"]), ((13, 1), ["R21a"]),
    (("rs", 1), ["W", "e1n"]),
    ((14, 0), ["R21b", "c0n"]), ((14, 1), ["W", "R22"]),
    ((15, 0), ["e2n"]), ((15, 1), ["W", "R23"]),
    ((16, 0), ["bar", "e3n"]), ((16, 1), ["W", "R24", "vmin"]),
    ((17, 0), ["e4n"]), ((17, 1), ["W", "R25", "c1n"]),
    ((18, 0), ["e5n"]), ((18, 1), ["W", "R26"]),
    ((19, 0), ["e6n"]), ((19, 1), ["W", "R27", "c2n"]),
    ((20, 0), ["e7n"]), ((20, 1), ["W", "R28", "o0n"]),
    ((21, 0), ["e8n"]), ((21, 1), ["W", "R29", "c3n"]),
    ((22, 0), ["ssub", "e9n"]), ((22, 1), ["W", "R30"]),
    ((23, 0), ["W", "e10n"]), ((23, 1), ["evt"]),
]
SEQ5 = [
    ((0, 0), ["R7", "c4"]), ((0, 1), ["W", "R8", "o1"]),
    ((1, 0), ["e11"]), ((1, 1), ["W", "R9"]),
    ((2, 0), ["e12"]), ((2, 1), ["W", "R10", "c5"]),
    ((3, 0), ["e13"]), ((3, 1), ["W", "R11"]),
    ((4, 0), ["e14"]), ((4, 1), ["W", "R12"]),
    ((5, 0), ["e15"]), ((5, 1), ["W", "R13a", "c6"]),
    ((6, 0), ["R13b", "c7"]), ((6, 1), ["W", "R14a", "o2"]),
    ((7, 0), ["R14b"]), ((7, 1), ["W", "R15a", "o3"]),
    ((8, 0), ["R15b"]), ((8, 1), ["W", "R16a", "cmp"]),
    ((9, 0), ["R16b", "swapK"]), ((9, 1), ["W", "R17a"]),
    ((10, 0), ["R17b", "t1"]), ((10, 1), ["W", "R18"]),
    ((11, 0), ["chk"]), ((11, 1), ["W", "R19a"]),
] + PVPART
SEQ6 = [
    ((0, 0), ["W", "R7", "c4"]), ((1, 0), ["W", "e11"]), ((2, 0), ["e12"]),
    ((0, 1), ["R8", "o1"]), ((1, 1), ["R9", "c5"]), ((2, 1), ["W", "R10"]),
    ((3, 0), ["W", "e13"]), ((4, 0), ["W", "e14"]), ((5, 0), ["e15"]),
    ((3, 1), ["R11", "c6"]), ((4, 1), ["R12a", "c7"]), ((5, 1), ["W", "R12b", "o2"]),
    ((6, 0), ["W", "R13a", "o3"]), ((7, 0), ["W", "R13b", "cmp"]), ((8, 0), ["swapK", "t1"]),
    ((6, 1), ["R14"]), ((7, 1), ["R15a"]), ((8, 1), ["W", "R15b"]),
    ((9, 0), ["W", "R16a"]), ((10, 0), ["W", "R16b"]), ((11, 0), ["chk"]),
    ((9, 1), ["R17"]), ((10, 1), ["R18"]), ((11, 1), ["W", "R19a"]),
] + PVPART
SEQ7 = [
    ((0, 0), ["W", "R7", "c4"]), ((1, 0), ["W", "e10"]), ((2, 0), ["e11"]),
    ((0, 1), ["R8", "o1"]), ((1, 1), ["R9", "c5"]), ((2, 1), ["W", "R10"]),
    ((3, 0), ["W", "e12"]), ((4, 0), ["W", "e13"]), ((5, 0), ["e14"]),
    ((3, 1), ["R11", "c6"]), ((4, 1), ["R12a", "o2"]), ((5, 1), ["W", "R12b"]),
    ((6, 0), ["W", "e15"]), ((7, 0), ["W", "R13a", "c7"]), ((8, 0), ["R13b", "o3"]),
    ((6, 1), ["R14"]), ((7, 1), ["R15a", "cmp"]), ((8, 1), ["W", "R15b", "t1"]),
    ((9, 0), ["W", "R16a", "swapK"]), ((10, 0), ["W", "R16b"]), ((11, 0), ["chk"]),
    ((9, 1), ["R17"]), ((10, 1), ["R18"]), ((11, 1), ["W", "R19a"]),
    ((12, 0), ["R19b", "t2"]), ((12, 1), ["W", "R20a"]),
    (("rs", 0), ["e0n"]),
    ((13, 0), ["R20b"]), ((13, 1), ["R21a"]),
    (("rs", 1), ["W", "e1n"]),
    ((14, 0), ["R21b", "c0n"]), ((14, 1), ["W", "R22"]),
    ((15, 0), ["e2n"]), ((15, 1), ["W", "R23"]),
    ((16, 0), ["bar"]), ((16, 1), ["W", "R24", "vmin"]),
    ((17, 0), ["e3n"]), ((17, 1), ["W", "R25"]),
    ((18, 0), ["e4n"]), ((18, 1), ["W", "R26", "c1n"]),
    ((19, 0), ["e5n"]), ((19, 1), ["W", "R27"]),
    ((20, 0), ["e6n"]), ((20, 1), ["W", "R28", "c2n"]),
    ((21, 0), ["e7n"]), ((21, 1), ["W", "R29", "o0n"]),
    ((22, 0), ["ssub", "e8n"]), ((22, 1), ["W", "R30", "c3n"]),
    ((23, 0), ["W", "e9n"]), ((23, 1), ["evt"]),
]
SEQ8 = [
    ((0, 0), ["W", "R7", "c3"]), ((1, 0), ["W", "e8"]), ((2, 0), ["e9"]),
    ((0, 1), ["R8", "o0"]), ((1, 1), ["R9", "c4"]), ((2, 1), ["W", "R10", "o1"]),
    ((3, 0), ["W", "e10"]), ((4, 0), ["W", "e11"]), ((5, 0), ["e12"]),
    ((3, 1), ["R11", "c5"]), ((4, 1), ["R12"]), ((5, 1), ["W", "R13"]),
    ((6, 0), ["W", "e13"]), ((7, 0), ["W", "e14"]), ((8, 0), ["e15"]),
    ((6, 1), ["R14a", "c6"]), ((7, 1), ["R14b", "c7"]), ((8, 1), ["W", "R15a", "o2"]),
    ((9, 0), ["W", "R15b", "o3"]), ((10, 0), ["W", "R16a", "cmp"]), ((11, 0), ["R16b", "swapK"]),
    ((9, 1), ["R17a", "t1"]), ((10, 1), ["chk"]), ((11, 1), ["W", "R17b", "t2"]),
    ((12, 0), ["e0n"]), ((12, 1), ["W", "R18"]),
    ((13, 0), ["e1n"]), ((13, 1), ["W", "R19"]),
    ((14, 0), ["R20a", "c0n"]), ((14, 1), ["W", "R20b"]),
    (("rs", 0), ["e2n"]),
    ((15, 0), ["R21a"]), ((15, 1), ["W", "R21b"]),
    ((16, 0), ["R22a"]), ((16, 1), ["W", "R22b"]),
    ((17, 0), ["e3n"]), ((17, 1), ["W", "R23"]),
    (("rs", 1), ["bar"]),
    ((18, 0), ["R24", "c1n"]), ((18, 1), ["W", "R25", "vmin"]),
    ((19, 0), ["R26"]), ((19, 1), ["W", "R27"]),
    ((20, 0), ["e4n"]), ((20, 1), ["W", "R28"]),
    ((21, 0), ["e5n"]), ((21, 1), ["W", "R29"]),
    ((22, 0), ["ssub", "e6n"]), ((22, 1), ["W", "R30", "c2n"]),
    ((23, 0), ["W", "e7n"]), ((23, 1), ["evt"]),
]
SEQ9 = [x for x in SEQ8 if x[0] != ("rs", 0)]
SEQ9 = [(m, {(15, 0): ["e2n"], (15, 1): ["W", "R21"]}.get(m, g)) for m, g in SEQ9]
SEQ10 = [x for x in SEQ8 if x[0] != ("rs", 1)]
SEQ10 = [(m, {(18, 0): ["bar", "R24"], (19, 0): ["R26", "c1n"]}.get(m, g)) for m, g in SEQ10]
SEQ11 = [x for x in SEQ8 if x[0] != ("rs", 1)]
SEQ11 = [(m, {(18, 0): ["bar"], (18, 1): ["W", "R24", "R25"], (19, 0): ["R26", "c1n"], (19, 1): ["W", "R27", "vmin"]}.get(m, g)) for m, g in SEQ11]
SEQ12 = [
    ((0, 0), ["W", "R7", "c3"]), ((1, 0), ["W", "e9"]), ((2, 0), ["e10"]),
    ((0, 1), ["R8", "c4"]), ((1, 1), ["R9", "o0"]), ((2, 1), ["W", "R10", "o1"]),
    ((3, 0), ["W", "e11"]), ((4, 0), ["W", "e12"]), ((5, 0), ["e13"]),
    ((3, 1), ["R11", "c5"]), ((4, 1), ["R12a", "c6"]), ((5, 1), ["W", "R12b", "o2"]),
    ((6, 0), ["W", "e14"]), ((7, 0), ["W", "R13"]), ((8, 0), ["e15"]),
    ((6, 1), ["R14a", "t1"]), ((7, 1), ["R14b", "c7"]), ((8, 1), ["W", "R15a", "o3"]),
    ((9, 0), ["W", "R15b", "cmp"]), ((10, 0), ["W", "R16a", "swapK"]), ((11, 0), ["R16b", "t2"]),
    ((9, 1), ["R17a"]), ((10, 1), ["chk"]), ((11, 1), ["W", "R17b", "R18a"]),
    ((12, 0), ["e0n"]), ((12, 1), ["W", "R18b", "R19a"]),
    ((13, 0), ["e1n"]), ((13, 1), ["W", "R19b", "R20a"]),
    ((14, 0), ["e2n"]), ((14, 1), ["W", "R20b", "R21a"]),
    ((15, 0), ["e3n"]), ((15, 1), ["W", "R21b", "c0n"]),
    ((16, 0), ["R22a", "c1n"]), ((16, 1), ["W", "R22b"]),
    ((17, 0), ["e4n"]), ((17, 1), ["W", "R23"]),
    (("rs", 1), ["bar"]),
    ((18, 0), ["R24"]), ((18, 1), ["W", "R25", "vmin"]),
    ((19, 0), ["R26"]), ((19, 1), ["W", "R27"]),
    ((20, 0), ["e5n"]), ((20, 1), ["W", "R28"]),
    ((21, 0), ["e6n"]), ((21, 1), ["W", "R29", "c2n"]),
    ((22, 0), ["ssub", "e7n"]), ((22, 1), ["W", "R30"]),
    ((23, 0), ["W", "e8n"]), ((23, 1), ["evt"]),
]
SEQ13 = [
    ((0, 0), ["W", "R7"]), ((1, 0), ["W", "e7"]), ((2, 0), ["W", "e8"]),
    ((3, 0), ["W", "e9"]), ((4, 0), ["W", "e10"]), ((5, 0), ["e11"]),
    ((0, 1), ["R8", "c3"]), ((1, 1), ["R9", "c4"]), ((2, 1), ["R10", "c5"]),
    ((3, 1), ["R11", "o1"]), ((4, 1), ["R12a"]), ((5, 1), ["W", "R12b", "swapK"]),
    ((6, 0), ["W", "e12"]), ((7, 0), ["W", "e13"]), ((8, 0), ["W", "e14"]),
    ((9, 0), ["W", "e15"]), ((10, 0), ["W", "R13a", "c6"]), ((11, 0), ["R13b", "c7"]),
    ((6, 1), ["R14a", "o2"]), ((7, 1), ["R14b", "o3"]), ((8, 1), ["R15a", "cmp"]),
    ((9, 1), ["R15b"]), ((10, 1), ["chk"]), ((11, 1), ["W", "R16"]),
    ((12, 0), ["e0n"]), ((12, 1), ["W", "R17"]),
    ((13, 0), ["e1n"]), ((13, 1), ["W", "R18"]),
    ((14, 0), ["e2n"]), ((14, 1), ["W", "R19"]),
    ((15, 0), ["e3n"]), ((15, 1), ["W", "R20"]),
    ((16, 0), ["e4n"]), ((16, 1), ["W", "R21a", "c0n"]),
    ((17, 0), ["R21b", "c1n"]), ((17, 1), ["W", "R22a", "t1"]),
    ((18, 0), ["R22b", "t2"]), ((18, 1), ["W", "e5n"]),
    ((19, 0), ["R23"]),
    (("rs", 1), ["bar"]),
    ((19, 1), ["W", "R24", "vmin"]),
    ((20, 0), ["R25", "c2n"]), ((20, 1), ["W", "R26"]),
    ((21, 0), ["R27", "o0n"]), ((21, 1), ["W", "R28"]),
    ((22, 0), ["ssub", "R29"]), ((22, 1), ["W", "R30"]),
    ((23, 0), ["W", "e6n"]), ((23, 1), ["evt"]),
]
SEQ1 = SEQ
SEQ = SEQ13
for a_ in sys.argv:
    if a_.startswith("seq="):
        SEQ = {"13": SEQ13, "12": SEQ12, "9": SEQ9, "10": SEQ10, "11": SEQ11, "7": SEQ7, "8": SEQ8, "1": SEQ1, "3": SEQ3, "4": SEQ4, "5": SEQ5, "6": SEQ6}[a_[4:]]
if "feww=True" in sys.argv:
    DROP = {(0, 0), (1, 0), (3, 0), (4, 0), (6, 0), (7, 0), (9, 0), (10, 0),
            (12, 1), (14, 1), (16, 1), (18, 1), (20, 1), (22, 1)}
    SEQ = [(m, [t for t in g if not (t == "W" and m in DROP)]) for m, g in SEQ]
NFIRSTW = 1 if SEQ is SEQ13 or SEQ is SEQ12 else 3
NPRIME = 8 if SEQ is SEQ4 else 7


def is_sm(tok):
    return tok[0] in "eco" and tok[1].isdigit()


ALLTOK = [t for _, g in SEQ for t in g]
SM_FIRST = [t[:-1] for t in ALLTOK if is_sm(t) and t.endswith("n")]
SM_SECOND = [t for t in ALLTOK if is_sm(t) and not t.endswith("n")]


def sm_ins(t, S_, P_):
    i = int(t[1:])
    if t[0] == "e":
        return f"v_exp_f32 v{E(i)}, v{S_ + i}"
    if t[0] == "c":
        return f"v_cvt_pk_bf16_f32 v{preg(P_, i)}, v{E(2 * i)}, v{E(2 * i + 1)}"
    if i == 0:
        return f"v_or3_b32 v{vOR}, v{preg(P_, 0)}, v{preg(P_, 1)}, v{preg(P_, 2)}"
    if i < 3:
        return f"v_or3_b32 v{vOR}, v{vOR}, v{preg(P_, 2 * i + 1)}, v{preg(P_, 2 * i + 2)}"
    return f"v_bitop3_b32 v{vOR}, v{vOR}, v{preg(P_, 7)}, s{sThr} bitop3:0xa8"


def sm_seq(toks, S_, P_):
    out, last_exp = [], None
    for t in toks:
        i = int(t[1:])
        if t[0] == "c" and last_exp in (2 * i, 2 * i + 1):
            out.append("s_nop 0")
        out.append(sm_ins(t, S_, P_))
        last_exp = i if t[0] == "e" else None
    return out


def rtok(t):
    if t[-1] in "ab":
        return int(t[1:-1]), ["ab".index(t[-1])]
    n = int(t[1:])
    return n, ([0] if n % 24 < 12 else [0, 1])


def wait_counts():
    ev = []
    for rep in range(3):
        for m, g in SEQ:
            if m[0] != "rs":
                ev.append(("m", 24 * rep + m[0]))
            for t in g:
                if t[0] == "R":
                    n, hs = rtok(t)
                    ev += [("r", 24 * rep + n)] * len(hs)
                elif t == "W":
                    ev.append(("w", rep))
    res = []
    for k, x in enumerate(ev):
        if x == ("w", 1):
            need = -1
            for y in ev[k + 1:]:
                if y[0] == "w":
                    break
                if y[0] == "m":
                    need = max(need, y[1])
            issued = [y[1] for y in ev[:k] if y[0] == "r"]
            assert issued == sorted(issued)
            assert issued.count(need) == (1 if need % 24 < 12 else 2)
            res.append(sum(1 for n in issued if n > need))
    return res


STUBS = []


def chk_site(e, par):
    n = len(STUBS)
    STUBS.append(par)
    e(f"s_cbranch_vccnz L_stub{n}")
    e(f"L_chkret{n}:")


def V_T1():
    return f"v_add_u32 v{vT1}, {VSLOT}, v{vAV}"


def V_T2():
    return f"v_add_u32 v{vT2}, {hex((VSLOT - VSLOT * NVSLOT) & 0xffffffff)}, v{vAV}"


def V_MIN():
    return f"v_min_u32 v{vAV}, v{vT1}, v{vT2}"


def K_SWAP():
    return f"v_swap_b32 v{vAK}, v{vAK2}"


def mask_ins(S_, i):
    return f"v_cndmask_b32 v{S_ + i}, v{S_ + i}, v{vOR}, s[{sMask0 + 2 * i}:{sMask0 + 2 * i + 1}]"


ABL = [""]


def shifted_seq(k):
    q = list(SEQ)
    i = [n for n, (m, g) in enumerate(q) if "bar" in g][0]
    x = q.pop(i)
    q.insert(i - k, x)
    return q


def emit_step(e0, par, mask=False, ver="", SEQ=None):
    SEQ = SEQ or globals()["SEQ"]

    def e(x):
        ab = ABL[0]
        if "rs" in ab and f"{vr(ONES, 4)}" in x:
            return
        if "exp" in ab and (x.startswith("v_exp") or x.startswith("v_cvt_pk") or x.startswith("v_or3") or x.startswith("v_bitop")):
            return
        if "kr" in ab and x.startswith("ds_read_b128"):
            return
        if "vr" in ab and x.startswith("ds_read_b64_tr"):
            return
        if "nw" in ab and x.startswith("s_waitcnt"):
            return
        if "nswap" in ab and x.startswith("v_swap"):
            return
        if "keep" not in ab and ab and x.startswith("s_cbranch_vccnz"):
            return
        if ("kr" in ab or "vr" in ab) and x.startswith("s_waitcnt"):
            x = "s_waitcnt lgkmcnt(8)"
        e0(x)
    extra = {}
    wc = wait_counts()
    for m, toks in SEQ:
        f, q = m
        e(mfma_rs(q, par) if f == "rs" else (mfma_qk(f, q, par) if f < 12 else mfma_pv(f - 12, q, frag(f), par)))
        for x in extra.pop(m, []):
            e(x)
        for tok in toks:
            if tok[0] == "R":
                n, hs = rtok(tok)
                ins = kread(n, par) if n < 12 else (vread_at(n - 12, frag(n)) if n < 24 else kread(n - 24, 1 - par))
                ins = [ins[h] for h in hs]
            elif tok == "W":
                ins = [f"s_waitcnt lgkmcnt({min(14, wc.pop(0))})"]
            elif tok == "cmp":
                ins = [f"v_cmp_ne_u32 vcc, 0, v{vOR}"]
            elif tok == "chk":
                chk_site(e, par)
                ins = []
            elif tok == "swapK":
                ins = [K_SWAP()] if par == 1 else []
            elif tok == "t1":
                ins = [V_T1()]
            elif tok == "t2":
                ins = [V_T2()]
            elif tok == "vmin":
                ins = [V_MIN()]
            elif tok == "bar":
                ins = ["s_barrier"]
            elif tok == "ssub":
                ins = [] if mask else [f"s_sub_u32 s{sEv}, s{sEv}, 1"]
            elif tok == "evt":
                if mask:
                    ins = []
                else:
                    ins = ["s_cbranch_scc1 L_ev1"] if par == 0 else [f"s_cbranch_scc0 L_step0{ver}"]
            elif is_sm(tok):
                nxt = tok.endswith("n")
                if nxt and mask:
                    continue
                ins = [sm_ins(tok[:-1] if nxt else tok, SB[1 - par] if nxt else SB[par], PB[1 - par] if nxt else PB[par])]
            else:
                raise ValueError(tok)
            for x in ins:
                e(x)
    assert not extra


class LQ:
    def __init__(self, e):
        self.e, self.q = e, []

    def op(self, ins, tag):
        self.e(ins)
        self.q.append(tag)

    def wait(self, tag):
        idx = [i for i, t in enumerate(self.q) if t == tag]
        if idx:
            n = len(self.q) - 1 - idx[-1]
            self.e(f"s_waitcnt lgkmcnt({min(n, 14)})")
            self.q = self.q[idx[-1] + 1:]


def bar_sw(e, cfg, k):
    if cfg.dsw:
        e(f"s_memtime s[{sStamp + 4 + 4 * k}:{sStamp + 5 + 4 * k}]")
    e("s_barrier")
    if cfg.dsw:
        e(f"s_memtime s[{sStamp + 6 + 4 * k}:{sStamp + 7 + 4 * k}]")
        e("s_waitcnt lgkmcnt(0)")


def sstamp(e, cfg, k):
    if cfg.dst:
        e(f"s_memtime s[{sStamp + 2 * k}:{sStamp + 2 * k + 1}]")


def stamp(e, cfg, base, i):
    if cfg.dst:
        return
    if cfg.dsw:
        if base == sStamp and i == 2:
            e(f"s_memtime s[{base + 2}:{base + 3}]")
            e("s_waitcnt lgkmcnt(0)")
        return
    if cfg.debug:
        e(f"s_memtime s[{base + 2 * i}:{base + 2 * i + 1}]")
        e("s_waitcnt lgkmcnt(0)")


def mask_words(r):
    kt, q, i = r >> 3, (r >> 2) & 1, r & 3
    m = 0
    for l in range(64):
        n, g = l & 15, l >> 4
        if 8 * i + g + 4 * kt > 8 * (n & 3) + (n >> 2) + 4 * q:
            m |= 1 << l
    return m & 0xffffffff, m >> 32


def emit_gate(e, sraw, st, v, sg, somg):
    e(f"s_lshl_b32 s{st}, s{sraw}, 16")
    e(f"s_and_b32 s{sraw}, s{sraw}, 0xffff0000")
    e(f"s_bitcmp1_b32 s{sHead}, 0")
    e(f"s_cselect_b32 s{st}, s{sraw}, s{st}")
    e(f"v_mov_b32 v{v}, s{st}")
    e(f"v_mul_f32 v{v}, {hex(LOG2E)}, v{v}")
    e(f"v_exp_f32 v{v}, -v{v}")
    e("s_nop 0")
    e(f"v_add_f32 v{v}, 1.0, v{v}")
    e(f"v_rcp_f32 v{v}, v{v}")
    e("s_nop 0")
    e(f"v_cvt_pk_bf16_f32 v{v}, v{v}, v{v}")
    e(f"v_lshlrev_b32 v{v}, 16, v{v}")
    if somg is not None:
        e(f"v_sub_f32 v{v}, 1.0, v{v}")
        e(f"v_cvt_pk_bf16_f32 v{v}, v{v}, v{v}")
        e(f"v_lshlrev_b32 v{v}, 16, v{v}")
    e("s_nop 0")
    e(f"v_readfirstlane_b32 s{sg if somg is None else somg}, v{v}")


def bf16_round(x):
    u = f2u(x)
    return ((u + 0x7fff + ((u >> 16) & 1)) >> 16) & 0xffff


def bf16_val(h):
    return struct.unpack("<f", struct.pack("<I", h << 16))[0]


C_EXACT = 192 ** -0.5 * math.log2(math.e)
C_HI = bf16_round(C_EXACT)
C_LO = bf16_round(C_EXACT - bf16_val(C_HI))


def q_frag_reads(e, op):
    e(f"v_min_u32 v{vT1}, v{vAK}, v{vAK2}")
    e(f"v_add_u32 v{vT1}, s{sRW}, v{vT1}")
    for q in range(2):
        for ks in range(6):
            op(f"ds_read_b128 {vr(Q0 + 24 * q + 4 * ks, 4)}, v{vT1} offset:{RB - KB + q * 4 * ROWB + ks * 64}")


def row_max(e, S_, a, b):
    for q, r in ((0, a), (1, b)):
        x = [S_ + 4 * q + i for i in range(4)] + [S_ + 8 + 4 * q + i for i in range(4)]
        e(f"v_max3_f32 v{r}, v{x[0]}, v{x[1]}, v{x[2]}")
        e(f"v_max3_f32 v{r}, v{r}, v{x[3]}, v{x[4]}")
        e(f"v_max3_f32 v{r}, v{r}, v{x[5]}, v{x[6]}")
        e(f"v_max_f32 v{r}, v{r}, v{x[7]}")
    e("s_nop 1")
    e(f"v_permlane32_swap_b32 v{a}, v{b}")
    e(f"v_max_f32 v{a}, v{a}, v{b}")
    e(f"v_mov_b32 v{b}, v{a}")
    e("s_nop 1")
    e(f"v_permlane16_swap_b32 v{a}, v{b}")
    e(f"v_max_f32 v{a}, v{a}, v{b}")
    e(f"v_mov_b32 v{b}, v{a}")
    e("s_nop 1")
    e(f"v_permlane32_swap_b32 v{a}, v{b}")


def scale_ins(regs, T):
    o = []
    for k, r in enumerate(regs):
        o.append(f"v_lshlrev_b32 v{T + 2 * k}, 16, v{r}")
        o.append(f"v_and_b32 v{T + 2 * k + 1}, s{sCMaskHi}, v{r}")
    for k, r in enumerate(regs):
        o.append(f"v_pk_mul_f32 {vr(T + 2 * k, 2)}, {vr(T + 2 * k, 2)}, s[{sCScale}:{sCScale + 1}]")
    for k, r in enumerate(regs):
        o.append(f"v_cvt_pk_bf16_f32 v{r}, v{T + 2 * k}, v{T + 2 * k + 1}")
    return o


def emit_last(e, cfg, par, end):
    lq = LQ(e)
    reg = 0 if end else ROFF
    for n in range(8):
        for x in vread_at(n, frag(n)):
            lq.op(x, ("v", n))
    if not end:
        e(f"v_mov_b32 v{vOR}, {hex(NINF)}")
        for i in range(16):
            e(mask_ins(SB[par], i))
    for x in sm_seq(([] if end else SM_FIRST) + SM_SECOND, SB[par], PB[par]):
        e(x)
    e(f"v_cmp_ne_u32 vcc, 0, v{vOR}")
    lq.wait(("v", 0))
    chk_site(e, par)
    t0, t1 = E0, E0 + 1
    pend = [f"v_cndmask_b32 v{t0}, v{LS}, v{LS + 4}, s[{sHiHalf}:{sHiHalf + 1}]"]
    if sparse_rs():
        pend = [f"v_add_f32 v{t0}, v{LS}, v{LS + 1}", f"v_add_f32 v{t1}, v{LS + 2}, v{LS + 3}",
                f"v_cndmask_b32 v{t0}, v{t0}, v{t1}, s[{sHiHalf}:{sHiHalf + 1}]"]
    pend += [
            f"v_rcp_f32 v{t0}, v{t0}",
            None,
            f"v_mul_f32 v{t0}, s{sCOmg}, v{t0}",
            f"v_cvt_pk_bf16_f32 v{vOR}, v{t0}, v{t0}",
            f"v_lshlrev_b32 v{t1}, 16, v{vOR}",
            f"v_sub_f32 v{t0}, v{t0}, v{t1}",
            f"v_cvt_pk_bf16_f32 v{t0}, v{t0}, v{t0}",
            f"v_cndmask_b32 v{vOR}, v{vOR}, v{t0}, s[{sOddRow}:{sOddRow + 1}]"]
    if not cfg.flo:
        pend = pend[:-4]
    writes = [f"ds_write_b32 v{vAL}, v{vOR} offset:{reg + 384}"]
    qrd = []
    if end:
        pend += writes
    else:
        q_frag_reads(qrd.append, qrd.append)
    epi = []
    for dt in range(12):
        for q in range(2):
            r = O0 + 8 * dt + 4 * q
            epi.append((dt, f"v_cvt_pk_bf16_f32 v{r}, v{r}, v{r + 1}"))
            epi.append((dt, f"v_cvt_pk_bf16_f32 v{r + 1}, v{r + 2}, v{r + 3}"))
            w = f"ds_write_b64 v{vAO}, {vr(r, 2)} offset:{reg + q * 4 * PADROW + dt * 32}"
            if end:
                epi.append((dt, w))
                if dt in cfg.endpub and q == 0:
                    epi.append((dt, "*"))
            else:
                writes.append(w)
    since = {}

    def tick():
        for b in since:
            since[b] += 1

    def out(x, dt=None):
        if x == "*":
            assert not pend
            lq.wait(("w", dt - 1))
            if cfg.dend and dt == 4:
                e("s_memtime s[14:15]")
            e("s_barrier")
            if cfg.dend and dt == 4:
                e("s_waitcnt lgkmcnt(0)")
        elif x.startswith("ds_"):
            lq.op(x, ("w", dt))
        else:
            e(x)
        tick()

    e(mfma_rs(0, par))
    if not sparse_rs():
        e(mfma_rs(1, par))
    since["rs"] = 0
    room_ = cfg.endroom if end else cfg.lastroom
    for dt in range(12):
        for q in range(2):
            e(mfma_pv(dt, q, frag(dt), par))
            tick()
            room = room_
            if q == 1:
                since[dt] = 0
                if dt + 1 < 12:
                    lq.wait(("v", dt + 1))
                if dt + 8 < 12:
                    for x in vread_at(dt + 8, frag(dt + 8)):
                        lq.op(x, ("v", dt + 8))
                        tick()
                    room -= 2
                if dt == cfg.lastbar and not end:
                    bar_sw(e, cfg, 0)
            while room > 0 and qrd:
                out(qrd.pop(0))
                room -= 1
            while room > 0 and pend and since["rs"] >= 8:
                x = pend.pop(0)
                if x is None:
                    break
                out(x)
                room -= 1
            if pend and pend[0] is None:
                pend.pop(0)
                continue
            nv = room_ - room
            while room > 0 and epi and since.get(epi[0][0], -1) >= 8:
                if cfg.wfirst and epi[0][1].startswith("ds_") and nv > 0:
                    break
                d, x = epi.pop(0)
                out(x, d)
                room -= 1
                nv += 1
    assert not pend and not qrd
    if cfg.wfirst and end:
        rest, epi, cur = epi, [], []
        for it in rest + [(None, "*")]:
            if it[1] == "*":
                epi += [x for x in cur if not x[1].startswith("ds_")] + [x for x in cur if x[1].startswith("ds_")]
                cur = []
                if it[0] is not None:
                    epi.append(it)
            else:
                cur.append(it)
    while epi:
        need = 8 - since[epi[0][0]]
        if need > 0:
            e(f"s_nop {need - 1}")
            for b in since:
                since[b] += need
        d, x = epi.pop(0)
        out(x, d)
    return writes


def emit_first(e, cfg, par):
    lq = LQ(e)
    S_, P_ = SB[1 - par], PB[1 - par]
    for f in range(8):
        lq.op(kread(f, par)[0], f)
    zero = [f"v_mov_b64 {vr(r, 2)}, 0" for r in list(range(O0, O0 + 96, 2)) + list(range(LS, LS + (4 if sparse_rs() else 8), 2))]
    for x in zero[:12]:
        e(x)
    zero = zero[12:]
    for f in range(12):
        if f in (0, 1, 3, 6, 9):
            lq.wait({0: 0, 1: 2, 3: 5, 6: 8, 9: 11}[f])
        for q in range(2):
            e(mfma_qk(f, q, par, "0"))
            room = 2
            if q == 1 and f + 8 < 12:
                lq.op(kread(f + 8, par)[0], f + 8)
                room -= 1
            for k in range(room):
                if zero:
                    e(zero.pop(0))
    assert not zero
    if par == 1:
        e(K_SWAP())
    def barprime():
        bar_sw(e, cfg, 3)
        for f in range(NPRIME):
            e(kread(f, 1 - par)[0])
    if cfg.firstbar == 0:
        barprime()
    else:
        e("s_nop 5")
    e(f"s_cmp_eq_u32 s{sEvId}, 0")
    e(f"s_cbranch_scc1 L_nomask{par}")
    e(f"v_mov_b32 v{vOR}, {hex(NINF)}")
    for i in range(16):
        e(mask_ins(S_, i))
    e(f"L_nomask{par}:")
    vT3, vT4 = E0 + 2, E0 + 3
    row_max(e, S_, vT1, vT3)
    if cfg.firstbar == 1:
        barprime()
    e(f"v_sub_f32 v{vT1}, {hex(f2u(-BIAS))}, v{vT1}")
    e(f"v_sub_f32 v{vT3}, {hex(f2u(-BIAS))}, v{vT3}")
    e(f"v_mov_b32 v{vT2}, v{vT1}")
    e(f"v_mov_b32 v{vT4}, v{vT3}")
    e(f"s_sub_u32 s{sEv}, s{sEv}, 1")
    for i in range(0, 16, 2):
        t = vT3 if (i >> 2) & 1 else vT1
        e(f"v_pk_add_f32 {vr(S_ + i, 2)}, {vr(S_ + i, 2)}, {vr(t, 2)}")
    for i in range(0, 8, 2):
        e(f"v_mov_b64 {vr(NM + i, 2)}, {vr(vT3 if i >= 4 else vT1, 2)}")
    if cfg.firstbar == 2:
        barprime()
    for x in sm_seq(SM_FIRST, S_, P_):
        e(x)
    if cfg.firstbar == 3:
        barprime()
    e(f"s_waitcnt lgkmcnt({NPRIME - NFIRSTW})")
    if cfg.dsw:
        e(f"s_memtime s[{sStamp + 20}:{sStamp + 21}]")
        e("s_waitcnt lgkmcnt(0)")
    e(f"s_cbranch_scc1 L_ev{1 - par}")
    if cfg.dual is not None:
        e(f"s_bitcmp1_b32 s{sW}, {cfg.dual}")
        e(f"s_cbranch_scc1 L_step{1 - par}b")
    e(f"s_branch L_step{1 - par}")


WARMD = 100


NPR = [0]


def set_prio(e, cfg):
    e("s_setprio 2")
    if cfg.wprio is not None:
        NPR[0] += 1
        e(f"s_bitcmp1_b32 s{sW}, {cfg.wprio}")
        e(f"s_cbranch_scc1 L_pr{NPR[0]}")
        e("s_setprio 1")
        e(f"L_pr{NPR[0]}:")


def emit_compute(e, cfg, inject=None):
    e("L_compute:")
    set_prio(e, cfg)
    sstamp(e, cfg, 0)
    if cfg.probe:
        e("s_memrealtime s[12:13]")
    stamp(e, cfg, sStamp, 0)
    if cfg.debug and not cfg.dsw:
        e(f"s_memrealtime s[{sStamp + 14}:{sStamp + 15}]")
    L, A, B_, C_ = 60, 61, 62, 63
    e(f"v_and_b32 v{L}, 63, v0")
    e(f"v_lshrrev_b32 v{A}, 3, v{L}")
    e(f"v_and_b32 v{B_}, 7, v{L}")
    e(f"v_mul_u32_u24 v65, {ROWB}, v{A}")
    e(f"v_lshl_add_u32 v64, v{B_}, 4, v65")
    e(f"s_add_u32 s60, s{sN}, s{sW}")
    e(f"s_sub_u32 s{sEv}, s60, 1")
    e(f"s_mul_i32 s60, s60, {BLKB}")
    e(f"s_add_u32 s61, s60, {16 * ROWB}")
    e(f"s_mul_i32 s62, s{sHead}, {HEADB}")
    e(f"s_mov_b32 s{SRD_Q + 2}, {HEADB}")
    e(f"s_mov_b32 s{SRD_Q + 3}, 0x20000")
    e("s_waitcnt lgkmcnt(0)")
    sstamp(e, cfg, 1)
    e(f"s_add_u32 s{SRD_Q}, s36, s62")
    e(f"s_addc_u32 s{SRD_Q + 1}, s37, 0")
    e(f"s_lshr_b32 s62, s{sHead}, 1")
    e(f"s_lshl_b32 s62, s62, 2")
    e(f"s_load_dword s63, s[48:49], s62")
    e(f"s_lshr_b32 s{sEvId}, s{sHead}, 3")
    for j in range(12):
        i, a = divmod(j, 3)
        if cfg.qrr and j % 3 == 0:
            e(f"s_setprio {3 - j // 3}")
        for (jj, cls, w) in cfg.stag:
            if jj == j:
                e(f"s_cmp_lt_u32 s{sEvId}, {cls}")
                e(f"s_cbranch_scc1 L_stag{jj}_{cls}")
                e(f"s_waitcnt {w}")
                e(f"L_stag{jj}_{cls}:")
        e(f"buffer_load_dwordx4 {vr(4 * j, 4)}, v64, s[{SRD_Q}:{SRD_Q + 3}], s{60 + (i >> 1)} offen "
          f"offset:{(i & 1) * 3072 + a * 128} {cfg.nt_q}")
    if cfg.qrr:
        e("s_setprio 2")
    sstamp(e, cfg, 2)
    if inject:
        e("s_branch L_comp2")
        inject()
        e("L_comp2:")
    if cfg.qfirst:
        e("s_barrier")
    e(f"s_mul_i32 s{sRW}, s{sW}, {RBLK}")
    e(f"v_add_u32 v65, s{sRW}, v64")
    e(f"v_add_u32 v65, {RB}, v65")
    e(f"v_and_b32 v{A}, 3, v{L}")
    e(f"v_bfe_u32 v{B_}, v{L}, 2, 2")
    e(f"v_lshrrev_b32 v{C_}, 4, v{L}")
    e(f"v_mul_u32_u24 v66, {KRG}, v{A}")
    e(f"v_mul_u32_u24 v67, {ROWB}, v{B_}")
    e(f"v_add_u32 v66, v66, v67")
    e(f"v_lshl_add_u32 v66, v{C_}, 4, v66")
    e(f"v_add_u32 v{vAK2}, {KB}, v66")
    e(f"v_add_u32 v{vAK}, {KB + KSLOT}, v66")
    e(f"v_mul_u32_u24 v66, {KRG}, v{B_}")
    e(f"v_mul_u32_u24 v67, {ROWB}, v{C_}")
    e(f"v_add_u32 v66, v66, v67")
    e(f"v_lshl_add_u32 v{vAV}, v{A}, 3, v66")
    e(f"v_mul_u32_u24 v66, 3200, v{A}")
    e(f"v_lshrrev_b32 v67, 1, v{A}")
    e(f"v_lshl_add_u32 v66, v67, 6, v66")
    e(f"v_mul_u32_u24 v67, {PADROW}, v{B_}")
    e(f"v_add3_u32 v66, v66, v67, s{sRW}")
    e(f"v_add_u32 v66, {EB}, v66")
    e(f"v_and_b32 v67, 1, v{A}")
    e(f"v_xor_b32 v67, v67, v{C_}")
    e(f"v_lshl_add_u32 v{vAO}, v67, 3, v66")
    e(f"v_and_b32 v67, 1, v{C_}")
    e(f"v_lshl_add_u32 v66, v67, 2, v66")
    e(f"v_lshrrev_b32 v67, 1, v{C_}")
    e(f"v_mul_u32_u24 v67, {4 * PADROW}, v67")
    e(f"v_add_u32 v{vAL}, v66, v67")
    for i in range(4):
        e(f"v_mov_b32 v{ONES + i}, 0x3f803f80")
    if sparse_rs():
        e(f"v_bfe_i32 v66, v{L}, 1, 1")
        e(f"v_bfe_i32 v67, v{L}, 5, 1")
        e(f"v_xor_b32 v66, v66, v67")
        for i in range(4):
            e(f"v_bfi_b32 v{ONES + i}, v66, 0, v{ONES + i}")
        e(f"v_bfe_i32 v66, v{L}, 0, 1")
        e(f"v_and_b32 v66, 0xaaaaaaaa, v66")
        e(f"v_or_b32 v{vIDX}, 0x44444444, v66")
    for i in range(16):
        lo, hi = mask_words(i)
        e(f"s_mov_b32 s{sMask0 + 2 * i}, {hex(lo)}")
        e(f"s_mov_b32 s{sMask0 + 2 * i + 1}, {hex(hi)}")
    e(f"s_mov_b32 s{sHiHalf}, 0")
    e(f"s_mov_b32 s{sHiHalf + 1}, -1")
    e(f"s_mov_b32 s{sOddRow}, 0xffff0000")
    e(f"s_mov_b32 s{sOddRow + 1}, 0xffff0000")
    e(f"s_mov_b32 s{sEvId}, 0")
    e(f"s_mov_b32 s{sThr}, 0x40004000")
    e(f"s_mov_b32 s{sCScale}, {hex(CSCALE)}")
    e(f"s_mov_b32 s{sCScale + 1}, {hex(CSCALE)}")
    e(f"s_mov_b32 s{sCMaskHi}, 0xffff0000")
    e("s_waitcnt lgkmcnt(0)")
    emit_gate(e, 63, 62, 48, None, sCOmg)
    for j in range(12):
        i, a = divmod(j, 3)
        if j == 0:
            sstamp(e, cfg, 3)
        e(f"s_waitcnt vmcnt({11 - j})")
        if j in (0, 4, 8, 11):
            sstamp(e, cfg, {0: 4, 4: 5, 8: 6, 11: 7}[j])
        for x in scale_ins(range(4 * j, 4 * j + 4), 48):
            e(x)
        e(f"ds_write_b128 v65, {vr(4 * j, 4)} offset:{i * KRG + a * 128}")
    q_frag_reads(e, e)
    e("s_waitcnt lgkmcnt(0)")
    sstamp(e, cfg, 8)
    stamp(e, cfg, sStamp, 9)
    e("s_barrier")
    sstamp(e, cfg, 9)
    if cfg.dst:
        e("s_waitcnt lgkmcnt(0)")
    stamp(e, cfg, sStamp, 1)
    if cfg.probe:
        e("s_memrealtime s[14:15]")
        e("s_memtime s[20:21]")
        e("s_waitcnt lgkmcnt(0)")
    e("L_first1:")
    emit_first(e, cfg, 1)

    if cfg.dual is not None:
        e(".p2align 6")
        for par in (0, 1):
            e(f"L_step{par}b:")
            emit_step(e, par, ver="b", SEQ=shifted_seq(cfg.dualk))
        e("s_branch L_ev0")
    e(".p2align 6")
    e("L_step0:")
    emit_step(e, 0)
    e("L_step1:")
    emit_step(e, 1)

    extra_ = set()
    for mpar in (0, 1):
        e(f"L_ev{mpar}:")
        if mpar == 1:
            e(f"s_cmp_eq_u32 s{sEvId}, 0")
            e("s_cbranch_scc0 L_end")
        emit_step(e, mpar, mask=True)
        par = 1 - mpar
        stamp(e, cfg, sStamp, 2)
        writes = emit_last(e, cfg, par, False)
        e("s_setprio 0")
        work = [f"v_add_u32 v{vT1}, {4 * VSLOT}, v{vAV}", f"v_subrev_u32 v{vT2}, {VSLOT}, v{vAV}", V_MIN()]
        if par == 0:
            work.append(K_SWAP())
        CH, CL, M = F0, F0 + 2, F0 + 4
        work += [f"v_mbcnt_lo_u32_b32 v{M + 1}, -1, 0",
                 f"v_mbcnt_hi_u32_b32 v{M + 1}, -1, v{M + 1}",
                 f"v_and_b32 v{M}, 1, v{M + 1}",
                 f"v_lshlrev_b32 v{M}, 4, v{M}",
                 f"v_bfe_i32 v{M + 1}, v{M + 1}, 1, 1",
                 f"s_mov_b32 s60, {hex(C_HI)}",
                 f"s_mov_b32 s61, {hex(C_LO)}",
                 f"v_lshlrev_b32 v{CH + 1}, v{M}, s60",
                 f"v_lshlrev_b32 v{CL + 1}, v{M}, s61",
                 f"v_bfi_b32 v{CH}, v{M + 1}, 0, v{CH + 1}",
                 f"v_bfi_b32 v{CL}, v{M + 1}, 0, v{CL + 1}",
                 f"v_and_b32 v{CH + 1}, v{M + 1}, v{CH + 1}",
                 f"v_and_b32 v{CL + 1}, v{M + 1}, v{CL + 1}"]
        work += [f"s_add_u32 s60, s{sN}, s{sW}", f"s_sub_u32 s{sEv}, 63, s60", f"s_mov_b32 s{sEvId}, 2"]
        D = lambda k: F0 + 8 + 4 * (k % 6)
        for k in range(24 + 4):
            if k < 24:
                work.append(f"v_mfma_f32_4x4x4_16b_bf16 {vr(D(k), 4)}, {vr(CH, 2)}, {vr(Q0 + 2 * k, 2)}, 0")
            if k >= 4:
                work.append(f"v_cvt_pk_bf16_f32 v{Q0 + 2 * (k - 4)}, v{D(k - 4)}, v{D(k - 4) + 1}")
            elif k > 0:
                work.append("s_nop 0")
            if 1 <= k < 25:
                work.append(f"v_mfma_f32_4x4x4_16b_bf16 {vr(D(k - 1), 4)}, {vr(CL, 2)}, {vr(Q0 + 2 * (k - 1), 2)}, {vr(D(k - 1), 4)}")
            if k >= 4:
                work.append(f"v_cvt_pk_bf16_f32 v{Q0 + 2 * (k - 4) + 1}, v{D(k - 4) + 2}, v{D(k - 4) + 3}")
        n1, w1, n2 = cfg.swplan
        for x in work[:n1]:
            if "v_mfma" in x and "q" not in extra_:
                e("s_waitcnt lgkmcnt(0)")
                extra_.add("q")
            e(x)
        e("s_waitcnt lgkmcnt(0)")
        extra_.discard("q")
        for x in writes[:w1]:
            e(x)
        stamp(e, cfg, sStamp, 3)
        bar_sw(e, cfg, 1)
        for x in work[n1:n2]:
            e(x)
        for x in writes[w1:]:
            e(x)
        e("s_waitcnt lgkmcnt(0)")
        stamp(e, cfg, sStamp, 4)
        bar_sw(e, cfg, 2)
        for x in work[n2:]:
            e(x)
        set_prio(e, cfg)
        if par == 0:
            e("s_branch L_first1")
        else:
            emit_first(e, cfg, 0)

    e("L_end:")
    stamp(e, cfg, sStamp, 5)
    if cfg.probe:
        e("s_memrealtime s[16:17]")
        e("s_memtime s[22:23]")
        e("s_waitcnt lgkmcnt(0)")
    if cfg.dend:
        e("s_memtime s[12:13]")
        e("s_waitcnt lgkmcnt(0)")
    emit_last(e, cfg, 1, True)
    e("s_waitcnt lgkmcnt(0)")
    if cfg.dend:
        e("s_memtime s[16:17]")
    e("s_barrier")
    if cfg.dend:
        e("s_waitcnt lgkmcnt(0)")
        emit_dump(e, 12, 3)
    stamp(e, cfg, sStamp, 6)
    if cfg.probe:
        e("s_load_dwordx2 s[4:5], s[0:1], 72")
        e("s_mov_b32 s6, 0x100000")
        e("s_mov_b32 s7, 0x20000")
        e("s_sub_u32 s22, s22, s20")
        e("s_lshl_b32 s60, s2, 5")
        e("v_mov_b32 v0, s12\nv_mov_b32 v1, s14\nv_mov_b32 v2, s16\nv_mov_b32 v3, s22\nv_mov_b32 v4, 0")
        e("s_waitcnt lgkmcnt(0)")
        e("buffer_store_dwordx3 v[0:2], v4, s[4:7], s60 offen" if cfg.pseg else "buffer_store_dwordx4 v[0:3], v4, s[4:7], s60 offen")
    if cfg.probe == 1:
        e("s_getreg_b32 s61, hwreg(HW_REG_XCC_ID)")
        e("s_getreg_b32 s62, hwreg(HW_REG_HW_ID)")
        e("s_lshl_b32 s60, s2, 3")
        e("s_add_u32 s60, s60, 0x10000")
        e("v_mov_b32 v6, s61\nv_mov_b32 v7, s62")
        e("buffer_store_dwordx2 v[6:7], v4, s[4:7], s60 offen")
    if cfg.dsw or cfg.dst:
        emit_dump(e, sStamp, 11)
    elif cfg.debug:
        e(f"s_memrealtime s[{sStamp + 16}:{sStamp + 17}]")
        e("s_waitcnt lgkmcnt(0)")
        emit_dump(e, sStamp, 10)
    e("s_endpgm")

    for n, par in enumerate(STUBS):
        e(f"L_stub{n}:")
        e(f"s_call_b64 s[{sFbLink}:{sFbLink + 1}], L_fb{par}")
        e(f"s_branch L_chkret{n}")
    for par in (0, 1):
        Sc, Sn, Pc = SB[par], SB[1 - par], PB[par]
        d0, d1, t0, t1 = E0, E0 + 1, E0 + 2, E0 + 3
        e(f"L_fb{par}:")
        row_max(e, Sc, d0, d1)
        for d in (d0, d1):
            e(f"v_add_f32 v{d}, {hex(f2u(BIAS))}, v{d}")
        for d in (d0, d1):
            e(f"v_max_f32 v{d}, 0, v{d}")
        e(f"v_exp_f32 v{t0}, -v{d0}")
        e(f"v_exp_f32 v{t1}, -v{d1}")
        e("s_nop 0")
        for r in list(range(O0, O0 + 96)) + ([] if sparse_rs() else list(range(LS, LS + 8))):
            e(f"v_mul_f32 v{r}, v{r}, v{t1 if (r >> 2) & 1 else t0}")
        for r in range(4 if sparse_rs() else 0):
            e(f"v_mul_f32 v{LS + r}, v{LS + r}, v{t1 if r >= 2 else t0}")
        for r in list(range(Sc, Sc + 16)) + list(range(Sn, Sn + 16)) + list(range(NM, NM + 8)):
            e(f"v_sub_f32 v{r}, v{r}, v{d1 if (r >> 2) & 1 else d0}")
        for k in range(8):
            e(f"v_exp_f32 v{t0}, v{Sc + 2 * k}")
            e(f"v_exp_f32 v{t1}, v{Sc + 2 * k + 1}")
            e("s_nop 0")
            e(f"v_cvt_pk_bf16_f32 v{preg(Pc, k)}, v{t0}, v{t1}")
        e(f"s_setpc_b64 s[{sFbLink}:{sFbLink + 1}]")


def emit_dump(e, base, n):
    e("s_load_dwordx2 s[4:5], s[0:1], 72")
    e("s_mov_b32 s6, 0x100000")
    e("s_mov_b32 s7, 0x20000")
    e(f"s_lshl_b32 s60, s2, 3")
    e(f"s_add_u32 s60, s60, s{sW}")
    e(f"s_lshl_b32 s60, s60, 7")
    e("v_mov_b32 v1, s60")
    e("s_waitcnt lgkmcnt(0)")
    for i in range(n):
        e(f"v_mov_b32 v2, s{base + 2 * i}")
        e(f"buffer_store_dword v2, v1, s[4:7], 0 offen offset:{4 * i}")
        e("s_waitcnt vmcnt(0)")


hM1, hG, hRw, hLc, hI0, hI1, hPf, hLa = 0, 1, 2, 3, 4, 5, 6, 7
hT = 8
hPfD = 16
hCo0 = 18
hCB = 20
hIDX = 32
hC = 40
hX = 48
hLin, hM0 = 56, 57
hCv = 58
hL = 62
hRG = 64
hCo = [hCo0, hL]
M4 = "v_mfma_f32_4x4x4_16b_bf16"
hTLr = hI1


def slot_reg(R, sl, k):
    return R + 8 * (k >> 2) + 4 * sl + (k & 3)


def region(n):
    return hRG + 24 * n


def cost(x):
    if isinstance(x, tuple):
        return 150 if x[0] == "site" else 0
    if "v_mfma" in x:
        return 60
    op = x.split()[0]
    if op.startswith("v_fmac") or op.startswith("v_mad") or op.startswith("v_fma") or op.startswith("v_lshl_"):
        return 16
    if op in ("v_exp_f32", "v_rcp_f32"):
        return 18
    if op.startswith("v_"):
        return 10
    if op.startswith("ds_"):
        return 20
    return 5


class Helper:
    def __init__(self, e, cfg):
        self.e = e
        self.cfg = cfg
        self.vm = []
        self.nsite = 0
        self.steady = False
        self.nearly, self.ool = 0, []

    def vmem(self, ins, tag, weight=1):
        w = self.cfg.win
        if w and self.steady and len(self.vm) >= w:
            self.e(f"s_waitcnt vmcnt({w - 1})")
            self.vm = self.vm[-(w - 1):]
        self.e(ins)
        self.vm.append((tag, weight))
        assert len(self.vm) <= 56, len(self.vm)

    def wait(self, tag):
        idx = [i for i, t in enumerate(self.vm) if t[0] == tag]
        if not idx:
            return
        last = idx[-1]
        n = sum(w for _, w in self.vm[last + 1:])
        self.e(f"s_waitcnt vmcnt({n})")
        self.vm = self.vm[last + 1:]

    def early_point(self):
        tlate, first, stride = self.cfg.elastic
        ls = self.cur_ls
        self.kitem += 1
        k = self.kitem - 1
        if k < first or (k - first) % stride or any(it[2] == ("dma", ls - 3) for it in self.rest):
            return
        idx = [i for i, t in enumerate(self.vm) if t[0] == ("dma", ls - 3)]
        self.nearly += 1
        n = self.nearly
        self.e(f"s_memtime s[{sNow}:{sNow + 1}]")
        self.e("s_waitcnt lgkmcnt(0)")
        self.e(f"s_sub_u32 s{sNow}, s{sNow}, s{sBar}")
        self.e(f"s_cmp_ge_u32 s{sNow}, s{sEl}")
        self.e(f"s_cbranch_scc1 L_early{n}")
        self.e(f"L_eback{n}:")
        wait = [f"s_waitcnt vmcnt({len(self.vm) - 1 - idx[-1]})"] if idx else []
        self.ool += [f"L_early{n}:"] + wait + ["s_barrier", f"s_memtime s[{sBar}:{sBar + 1}]",
                                               f"s_mov_b32 s{sEl}, -1", f"s_branch L_eback{n}"]
        self.used_early = True

    def put(self, item, weight=1):
        pre, ins, tag, suf = item
        if ins is None:
            return
        if self.cfg.elastic and self.steady:
            self.early_point()
            self.rest = self.rest[1:]
        for x in pre:
            self.e(x)
        if isinstance(ins, list):
            for y in ins:
                self.vmem(y, tag, 0)
        else:
            self.vmem(ins, tag, weight)
        for x in suf:
            self.e(x)

    def dma3(self, srd, so, m0src, pre, tag, fl):
        items = []
        for j in range(3):
            p = []
            if j == 0:
                p = [m0src] + (pre if pre else ["s_nop 0"])
            items.append((p, f"buffer_load_dwordx4 v{hLin}, s[{srd}:{srd + 3}], s{so} offen offset:{j * 1024} {fl} lds", tag, []))
        return items

    def group(self, g):
        pos = g + 5
        pre = [f"s_mov_b32 s{sVoff}, s{sKoff}", f"s_add_u32 s{sKoff}, s{sKoff}, s{sDir}"]
        if self.cfg.rot and 0 < pos < 32 and pos % 4 == 0:
            pre += [f"s_cmp_ge_u32 s{sKoff}, {32 * BLKB}", f"s_cselect_b32 s{sKoff}, s{sHoff}, s{sKoff}"]
        if self.cfg.rot and pos == 32:
            pre += [f"s_add_u32 s{sKoff}, s{sHoff}, {32 * BLKB}"]
        if pos >= 36 and pos % 4 == 0:
            pre += [f"s_cmp_eq_u32 s{sN}, {pos - 4}",
                    f"s_cselect_b32 s{sKoff}, s{sA0}, s{sKoff}",
                    f"s_cselect_b32 s{sDir}, {hex((-BLKB) & 0xffffffff)}, s{sDir}"]
        tag = ("dma", g)
        mk = f"s_add_u32 m0, s{sHl}, {KB + ((pos + 3) % 4) * KBLK}"
        mv = f"s_add_u32 m0, s{sHl}, {((pos - 1) % NVSLOT) * VSLOT}"
        if pos == 0:
            return self.dma3(SRD_K, sKoff, mk, None, tag, self.cfg.nt_kv)
        if pos == 68:
            return self.dma3(SRD_V, sKoff, mv, None, tag, self.cfg.nt_kv)
        return (self.dma3(SRD_K, sKoff, mk, pre, tag, self.cfg.nt_kv)
                + self.dma3(SRD_V, sVoff, mv, None, tag, self.cfg.nt_kv))

    def pf_item(self):
        self.npf = getattr(self, "npf", 0) + 1
        fl = self.cfg.nt_pf if 4 * (self.npf - 1) >= self.cfg.nt_pf_from else ""
        if self.cfg.pfx2:
            ins = f"buffer_load_dwordx2 {vr(hPfD, 2)}, v{hPf}, s[{SRD_PF}:{SRD_PF + 3}], 0 offen offset:60 {fl}"
        else:
            ins = f"buffer_load_dword v{hPfD}, v{hPf}, s[{SRD_PF}:{SRD_PF + 3}], 0 offen {fl}"
        if self.cfg.pf2 is not None and fl:
            ins = [ins, ins.replace(fl, self.cfg.pf2)]
        k = self.npf
        if self.cfg.rot and k < 8:
            return ([], ins, ("pf",), [f"s_cmp_eq_u32 s{sRot}, {8 - k}",
                                       f"s_mov_b32 s{sT1}, {4 * BLKB}",
                                       f"s_cselect_b32 s{sT1}, {hex((-28 * BLKB) & 0xffffffff)}, s{sT1}",
                                       f"v_add_u32 v{hPf}, s{sT1}, v{hPf}"])
        if self.cfg.rot and k == 8:
            return ([], ins, ("pf",), [f"s_add_u32 s{sT1}, s{sRot}, 7", f"s_and_b32 s{sT1}, s{sT1}, 7",
                                       f"s_sub_u32 s{sT1}, 8, s{sT1}", f"s_mul_i32 s{sT1}, s{sT1}, {4 * BLKB}",
                                       f"v_add_u32 v{hPf}, s{sT1}, v{hPf}"])
        return ([], ins, ("pf",), [f"v_add_u32 v{hPf}, {4 * BLKB}, v{hPf}"])

    def q_items(self, i):
        fl = self.cfg.nt_q if self.cfg.nt_qa is None else self.cfg.nt_qa
        if self.cfg.qcont:
            return self.dma3(SRD_Q, sT2, f"s_add_u32 m0, s{sHl}, {RB + i * RBLK}",
                             [f"s_sub_u32 s{sT2}, s{sA0}, {i * BLKB}"], ("qa", i), fl)
        return self.dma3(SRD_Q, sT2, f"s_add_u32 m0, s{sQl}, {i * KRG}",
                         [f"s_add_u32 s{sT2}, s{sRowA}, {i * 3072}"], ("qa", i), fl)

    def q_reads(self, tile, i, q):
        return ([("wait", ("qa", i))] if tile else []) + [
            f"ds_read_b128 {vr(q + 4 * a, 4)}, v{hRw} offset:{ROFF + i * KRG + a * 128}" for a in range(3)]

    def job_items(self, job):
        kind, tile, i = job
        srd = SRD_MK if kind == "s" else SRD_MV
        tag = ("job", job)
        items = []
        p = hIDX + 4 * tile + i
        R = region(4 * tile + i)
        for sl in range(2):
            for a in range(3):
                pre = []
                if a == 0:
                    pre = [f"v_and_b32 v{hI0}, 0xffff, v{p}" if sl == 0 else f"v_lshrrev_b32 v{hI0}, 16, v{p}",
                           f"v_mad_u32_u24 v{hI0}, v{hI0}, s{s384}, v{hLc}"]
                items.append((pre, f"buffer_load_dwordx4 {vr(R + 8 * a + 4 * sl, 4)}, v{hI0}, s[{srd}:{srd + 3}], 0 offen "
                              f"offset:{a * 128} {self.cfg.nt_g}", tag, []))
        return items

    def job_ops(self, job, qbuf=None):
        kind, tile, i = job
        R = region(4 * tile + i)
        cp = hC + 4 * tile + i
        o = [("wait", ("job", job))]
        dp = " row_mask:0xf bank_mask:0xf"
        pr = self.cfg.m4prio
        if kind == "s":
            q = hCB if qbuf is None else qbuf
            if qbuf is None:
                o = self.q_reads(tile, i, q) + o
            D = [[hT, hT + 4], [hX, hX + 4]]
            o.append("s_waitcnt lgkmcnt(0)")
            b = [f"s_setprio {pr}"]
            for n in range(6):
                for sl in range(2):
                    d = D[sl][n & 1]
                    if n == 5:
                        pass
                    c = "0" if n < 2 else vr(d, 4)
                    b.append(f"{M4} {vr(d, 4)}, {vr(q + 2 * n, 2)}, {vr(slot_reg(R, sl, 2 * n), 2)}, {c}")
            b.append("s_setprio 0")
            o.append("\n".join(b))
            s0, s1, m = R, R + 1, R + 2
            o.append("s_nop 1")
            for par in range(2):
                for u in range(4):
                    for sl, s_ in ((0, s0), (1, s1)):
                        if par == 0 and u == 0:
                            o.append(f"v_mov_b32_dpp v{s_}, v{D[sl][0]} quad_perm:[0,0,0,0]{dp}")
                        else:
                            o.append(f"v_add_f32_dpp v{s_}, v{D[sl][par] + u}, v{s_} quad_perm:[{u},{u},{u},{u}]{dp}")
            o.append("|")
            o.append(f"v_add_f32_dpp v{s0}, v{s0}, v{s0} row_half_mirror{dp}")
            o.append(f"v_add_f32_dpp v{s1}, v{s1}, v{s1} row_half_mirror{dp}")
            o += [f"v_max_f32 v{m}, v{s0}, v{s1}",
                  f"v_sub_f32 v{s0}, v{s0}, v{m}",
                  f"v_sub_f32 v{s1}, v{s1}, v{m}"]
            if tile == 1:
                o += [f"v_mul_f32 v{s0}, s{sScale}, v{s0}", f"v_mul_f32 v{s1}, s{sScale}, v{s1}"]
            o += [f"v_exp_f32 v{s0}, v{s0}",
                  f"v_exp_f32 v{s1}, v{s1}",
                  "s_nop 0",
                  f"v_add_f32 v{m}, v{s0}, v{s1}",
                  f"v_rcp_f32 v{m}, v{m}",
                  "s_nop 0",
                  f"v_mul_f32 v{m}, s{sG}, v{m}",
                  f"v_mul_f32 v{s0}, v{s0}, v{m}",
                  f"v_mul_f32 v{s1}, v{s1}, v{m}",
                  f"v_cvt_pk_bf16_f32 v{cp}, v{s0}, v{s1}"]
            if self.cfg.ab_coarse:
                o.append(f"v_and_b32 v{cp}, {hex(self.cfg.ab_coarse)}, v{cp}")
        else:
            o = [f"v_perm_b32 v{hCv + 1}, v{cp}, v{cp}, s{sSelLo}",
                 f"v_perm_b32 v{hCv + 3}, v{cp}, v{cp}, s{sSelHi}",
                 f"v_and_b32 v{hCv}, v{hM0}, v{hCv + 1}",
                 f"v_and_b32 v{hCv + 1}, v{hM1}, v{hCv + 1}",
                 f"v_and_b32 v{hCv + 2}, v{hM0}, v{hCv + 3}",
                 f"v_and_b32 v{hCv + 3}, v{hM1}, v{hCv + 3}"] + o
            T = [hT, hT + 4, hX, hX + 4]
            A = lambda k: f"{M4} {vr(T[k % 4], 4)}, {vr(hCv, 2)}, {vr(R + 8 * (k >> 1) + 2 * (k & 1), 2)}, 0"
            B = lambda k: (f"{M4} {vr(R + 4 * k, 4)}, {vr(hCv + 2, 2)}, {vr(R + 8 * (k >> 1) + 4 + 2 * (k & 1), 2)}, "
                           f"{vr(T[k % 4], 4)}")
            o.append("\n".join(["s_nop 0", f"s_setprio {pr}", A(0), A(1), A(2), A(3), B(0), B(1), A(4), A(5),
                                 B(2), B(3), B(4), B(5), "s_setprio 0"]))
        return o

    def run_op(self, x):
        if self.cfg.ab_noburst and isinstance(x, str) and "v_mfma" in x:
            return
        if isinstance(x, tuple):
            if x[0] == "wait":
                self.wait(x[1])
            else:
                self.combine_site(x[1])
        else:
            self.e(x)

    def interleave(self, items, ops, start=0.0):
        tot = sum(cost(x) for x in ops)
        n = len(items)
        pos = [tot * (start + (1 - start) * k / max(n, 1)) for k in range(n)]
        if self.cfg.vfirst:
            pos = [0.0] * n
        acc, k = 0.0, 0
        for x in ops:
            while k < n and acc >= pos[k] - 1e-9:
                self.put(items[k])
                k += 1
            self.run_op(x)
            acc += cost(x)
        while k < n:
            self.put(items[k])
            k += 1

    def coef_ins(self, lp, co):
        return [f"v_and_b32 v{co[0]}, v{hM0}, v{lp}",
                f"v_and_b32 v{co[0] + 1}, v{hM1}, v{lp}",
                f"v_and_b32 v{co[1]}, v{hM0}, v{lp + 1}",
                f"v_and_b32 v{co[1] + 1}, v{hM1}, v{lp + 1}"][:4 if self.cfg.flo else 2]

    def comb_mfma1(self, tile, i, k, ob, co, u):
        R = region(4 * tile + i)
        return (f"v_mfma_f32_4x4x4_16b_bf16 {vr(R + 4 * k, 4)}, {vr(co[u], 2)}, {vr(ob + 2 * (k ^ (i & 1)), 2)}, "
                f"{vr(R + 4 * k, 4)}")

    def comb_mfma(self, tile, i, ob, co):
        return [self.comb_mfma1(tile, i, k, ob, co, u) for u in range(2 if self.cfg.flo else 1) for k in range(6)]

    def comb_out(self, tile, i, cols=(0, 1, 2)):
        R = region(4 * tile + i)
        so = ([sRowB, sRowA][tile]) if i < 2 else ([sRowB2, sRowA2][tile])
        o = []
        for a in cols:
            P = R + 8 * a
            for k in range(4):
                o.append(f"v_cvt_pk_bf16_f32 v{P + k}, v{P + 2 * k}, v{P + 2 * k + 1}")
            o.append(f"buffer_store_dwordx4 {vr(P, 4)}, v{hG}, s[{SRD_OUT}:{SRD_OUT + 3}], s{so} offen "
                     f"offset:{(i & 1) * 3072 + a * 128} "
                     f"{self.cfg.nt_outB if tile == 0 and self.cfg.nt_outB is not None else self.cfg.nt_out}")
        return o

    def combine_state(self, st):
        e = self.e
        e(f"s_mov_b32 s{sDone}, {st + 1}")
        if st % 2 == 1:
            e("s_waitcnt lgkmcnt(0)")
            for x in self.coef_ins(hL, hCo):
                e(x)
            e("s_nop 0")
            e("s_setprio 3")
            for x in self.comb_mfma(0, st // 2, hCB, hCo):
                e(x)
            e("s_setprio 0")
        nx = (st + 1) // 2
        if (st == 0 or st % 2 == 1) and nx < 4:
            for a in range(3):
                e(f"ds_read_b128 {vr(hCB + 4 * a, 4)}, v{hRw} offset:{ROFF + orow(nx) + a * 128}")
            e(f"ds_read_b64 {vr(hL, 2)}, v{hLa} offset:{ROFF + orow(nx) + 384}")
        if st > 0 and st % 2 == 0:
            for x in self.comb_out(0, st // 2 - 1):
                e(x)

    def combine_site(self, lstep):
        e = self.e
        self.nsite += 1
        label = f"L_cs{self.nsite}"
        if lstep is not None:
            e(f"s_cmp_gt_u32 s{sC0}, {lstep}")
            e(f"s_cbranch_scc1 {label}")
        e(f"s_call_b64 s[{sLink}:{sLink + 1}], L_combB")
        e(f"{label}:")

    def barrier(self):
        self.e("s_waitcnt lgkmcnt(0)")
        self.e("s_barrier")

    def prologue(self):
        e, cfg = self.e, self.cfg
        e("L_helper:")
        stamp(e, cfg, sHStamp, 0)
        if cfg.pre or cfg.k0late:
            e("s_setprio 3")
        e(f"s_sub_u32 s{sH}, s{sW}, 4")
        L, A, B_, C_ = 8, 9, 10, 11
        e(f"v_and_b32 v{L}, 63, v0")
        e(f"v_lshlrev_b32 v{hLin}, 4, v{L}")
        e(f"s_mul_i32 s60, s{sHead}, {HEADB}")
        e(f"s_mul_i32 s{sHoff}, s{sH}, 3072")
        e(f"s_mul_i32 s{sHl}, s{sH}, {KRG}")
        e(f"s_mov_b32 s{sKoff}, s{sHoff}")
        if cfg.rot:
            e(f"s_lshr_b32 s{sRot}, s{sHead}, 3")
            e(f"s_mul_i32 s{sRot}, s{sRot}, {cfg.rot}")
            e(f"s_add_u32 s{sRot}, s{sRot}, s{sHead}")
            e(f"s_and_b32 s{sRot}, s{sRot}, 7")
            e(f"s_mul_i32 s{sT1}, s{sRot}, {4 * BLKB}")
            e(f"s_add_u32 s{sKoff}, s{sKoff}, s{sT1}")
        e(f"s_mov_b32 s{sDir}, {BLKB}")
        for srd in (SRD_K, SRD_V, SRD_PF):
            e(f"s_mov_b32 s{srd + 2}, {HEADB}")
            e(f"s_mov_b32 s{srd + 3}, 0x20000")
        e("s_waitcnt lgkmcnt(0)")
        for n, srd in ((1, SRD_K), (2, SRD_V)):
            e(f"s_add_u32 s{srd}, s{36 + 2 * n}, s60")
            e(f"s_addc_u32 s{srd + 1}, s{37 + 2 * n}, 0")
        if cfg.qfirst != 1 and not cfg.k0late:
            for it in self.group(-5):
                self.put(it)
        for k in range(cfg.pre):
            e(f"s_setprio {cfg.preprio[k]}")
            for it in self.group(-4 + k):
                self.put(it)
        if cfg.pre:
            e("s_setprio 0")
        e(f"s_and_b32 s{sT2}, s{sP}, 3")
        e(f"s_lshl2_add_u32 s{sT2}, s{sH}, s{sT2}")
        e(f"s_mul_i32 s{sT2}, s{sT2}, 3072")
        if cfg.rot:
            e(f"s_add_u32 s{sT2}, s{sT2}, s{sT1}")
        e(f"v_lshlrev_b32 v{hPf}, {7 if cfg.pfx2 else 6}, v{L}")
        e(f"v_add_u32 v{hPf}, s{sT2}, v{hPf}")
        e(f"v_cmp_lt_u32 vcc, {23 if cfg.pfx2 else 47}, v{L}")
        e(f"v_mov_b32 v{C_}, 0x40000000")
        e(f"s_cmp_lt_u32 s{sP}, 4")
        e(f"s_cselect_b32 s{SRD_PF}, s{SRD_K}, s{SRD_V}")
        e(f"s_cselect_b32 s{SRD_PF + 1}, s{SRD_K + 1}, s{SRD_V + 1}")
        e(f"v_cndmask_b32 v{hPf}, v{hPf}, v{C_}, vcc")
        if cfg.pfskip:
            e(self.pf_item()[3][0])
        else:
            self.put(self.pf_item())
        if "D" in cfg.order.replace("+", " ").split():
            assert not cfg.rewarm and not cfg.tl
            e(f"v_add_u32 v{hI1}, {24 * BLKB}, v{hPf}")
        if cfg.k0late:
            e("s_setprio 0")
        e("s_branch L_helper2")

    def schedule(self, jobs, voff):
        e, cfg = self.e, self.cfg
        NI = 67
        order = cfg.order.split() if jobs else []
        cl = [c + voff for c in cfg.cl]
        assert len(cl) >= len(order)
        miss = {c: [] for c in cl}
        work = [[] for _ in range(NI)]
        vjobs, issue, done, first_issue = [], {}, {}, {}
        for c, toks in zip(cl, order):
            for tok in toks.split("+"):
                if tok == "T":
                    miss[c].append("T")
                    continue
                if tok == "D":
                    miss[c].append(([], f"buffer_load_dwordx2 {vr(hPfD, 2)}, v{hI1}, s[{SRD_PF}:{SRD_PF + 3}], 0 offen offset:60",
                                    ("pf",), [f"v_subrev_u32 v{hI1}, {4 * BLKB}, v{hI1}"]))
                    continue
                half = None
                if tok[-1] in "ab" and len(tok) == 4:
                    half, tok = "ab".index(tok[-1]), tok[:3]
                    job = ("s" if tok[0] == "S" else "v", "BA".index(tok[1]), int(tok[2]))
                    miss[c] += self.job_items(job)[3 * half:3 * half + 3]
                    first_issue.setdefault(tok, c)
                    if half == 1:
                        issue[tok] = c
                        if job[0] == "v":
                            vjobs.append((tok, job, c + cfg.lat))
                    continue
                first_issue.setdefault(tok, c)
                issue[tok] = c
                if tok[0] == "Q":
                    miss[c] += self.q_items(2 * int(tok[1])) + self.q_items(2 * int(tok[1]) + 1)
                    issue[f"q{2 * int(tok[1])}"] = issue[f"q{2 * int(tok[1]) + 1}"] = c
                    continue
                if tok[0] == "q":
                    miss[c] += self.q_items(int(tok[1]))
                    continue
                job = ("s" if tok[0] == "S" else "v", "BA".index(tok[1]), int(tok[2]))
                miss[c] += self.job_items(job)
                if job[0] == "v":
                    vjobs.append((tok, job, c + cfg.lat))
        for tok, c in list(issue.items()):
            if tok[0] == "S":
                tile, i = "BA".index(tok[1]), int(tok[2])
                t = c + cfg.lat
                if tile == 1 and t > 30:
                    work[30] += self.q_reads(1, i, region(i))
                    ops = self.job_ops(("s", 1, i), region(i))
                    assert first_issue[f"MB{i}"] > t + cfg.sdur
                else:
                    ops = self.job_ops(("s", tile, i))
                if tile == 1 and cfg.qcont:
                    qs = [issue[f"q{x}"] for x in range(4)]
                    assert max(qs) + 4 <= min(t, 30) and min(qs) > max(issue[f"SB{x}"] for x in range(4)) + cfg.lat
                if tile == 1:
                    assert issue[f"q{i}"] + 2 <= min(t, 30) and issue[f"q{i}"] > issue[f"SB{i}"] + cfg.lat
                h = ops.index("|")
                work[t] += ops[:h]
                work[t + 1] = ops[h + 1:] + work[t + 1]
                done[tok] = t + 1
        if cfg.idxlate:
            work[cl[0] - 1] += [("wait", ("idx",))] + [
                f"v_lshl_or_b32 v{hIDX + n}, v{region(7) + 2 * n + 1}, 16, v{region(7) + 2 * n}" for n in range(8)]
        work[32] = [f"v_sub_u32 v{hLa}, v{hG}, v{hLc}",
                    f"v_mul_u32_u24 v{hLa}, 25, v{hLa}",
                    f"s_mov_b32 s{sT0}, 0xaaab",
                    f"v_lshrrev_b32 v{hLa}, 3, v{hLa}",
                    f"v_mul_u32_u24 v{hLa}, s{sT0}, v{hLa}",
                    f"s_sub_u32 s{sT0}, s{sQl}, {ROFF}",
                    f"v_lshrrev_b32 v{hLa}, 17, v{hLa}",
                    f"v_add_u32 v{hLa}, s{sT0}, v{hLa}",
                    f"v_add_u32 v{hRw}, v{hLa}, v{hLc}"] + work[32]
        win = {}
        for k, (tok, job, t) in enumerate(vjobs):
            assert done["S" + tok[1:]] < first_issue[tok]
            nx = vjobs[k + 1][2] if k + 1 < len(vjobs) else NI
            win[tok] = (t, min(t + cfg.vdur, nx, NI))
            done[tok] = win[tok][1] - 1
        lastv = max([w[1] for w in win.values()] + [0])
        sites, ns = {}, 0
        for ls in range(35, NI):
            if not jobs:
                break
            allowed = 1 + 2 * sum(1 for u in range(4) if all(done[f"MB{x}"] < ls for x in range(u + 1)))
            want = cfg.lastsites if ls >= 64 else cfg.tailsites if ls >= lastv else (1 if (ls - voff) % cfg.sitemod[0] in cfg.sitemod[1:] else 0)
            for y in range(want):
                if ns < allowed or allowed == 9:
                    sites[ls] = sites.get(ls, 0) + 1
                    ns += 1
        for tok, job, t in vjobs:
            work[t] += self.job_ops(job)
        nxt_asc = 4 * (cfg.pf0 + len(cfg.pfat))
        explicit = "T" in cfg.order.replace("+", " ").split()
        for k, c in enumerate(cl):
            if explicit:
                for n, it in enumerate(miss[c]):
                    if it == "T":
                        if cfg.verbose:
                            print("touch", nxt_asc, "at", c, "first needed", nxt_asc - 4)
                        miss[c][n] = self.pf_item()
                        nxt_asc += 4
                continue
            horizon = (cl[k + 1] if k + 1 < len(cl) else NI) + 4
            while cfg.pf and nxt_asc < 64 and nxt_asc < horizon + cfg.pd:
                miss[c].append(self.pf_item())
                nxt_asc += 4
        if cfg.rewarm:
            assert not cfg.tl
            for c in (cl[1::cfg.rewarm] if isinstance(cfg.rewarm, int) else [x + voff for x in cfg.rewarm]):
                miss[c].append(([], f"global_load_dword v{hPfD}, v{hI1}, s[{sCode}:{sCode + 1}]", ("pf",), []))
        cls = sorted(c for c in cl if miss[c])
        queue = self.group(-2) if cfg.late2 and cfg.pre < 3 else []
        self.steady = True
        for ls in range(NI):
            e.c(f"---- interval {ls}")
            if ls - 1 <= 63 and not (cfg.ab_nodma and ls > 4):
                queue += self.group(ls - 1)
            if ls in cls:
                n = cfg.apre
                m = n + cfg.apost
                vm, queue = queue[:n] + miss[ls] + queue[n:m], queue[m:]
            else:
                prev = max([c for c in cls if c < ls] + [-2])
                nx = min([c for c in cls if c > ls] + [max(prev + 4, ls + 1)])
                future = sum(len(self.group(g - 1)) for g in range(ls + 1, nx) if g - 1 <= 63)
                n = min(len(queue), -(-(len(queue) + future) // (nx - ls)))
                if cfg.bmax and (ls - 1) in cls and nx - ls > 1:
                    n = min(n, cfg.bmax)
                vm, queue = queue[:n], queue[n:]
                if cfg.pf and ls in cfg.pfat:
                    vm = vm + [self.pf_item()]
            c = list(work[ls])
            for y in range(sites.get(ls, 0)):
                c.insert(len(c) // 2, ("site", ls))
            self.cur_ls, self.kitem, self.rest, self.used_early = ls, 0, list(vm), False
            self.interleave(vm, c, cfg.bstart if (ls - 1) in cls else 0.0)
            assert not any(it[2] == ("dma", ls - 3) for it in queue)
            if self.used_early:
                e(f"s_cmp_eq_u32 s{sEl}, -1")
                e(f"s_mov_b32 s{sEl}, {cfg.elastic[0]}")
                e(f"s_cbranch_scc1 L_skip{voff}_{ls}".replace("-", "m"))
            self.wait(("dma", ls - 3))
            if cfg.tl and ls < 63:
                e("s_memtime s[84:85]")
            self.barrier()
            if cfg.elastic:
                e(f"s_memtime s[{sBar}:{sBar + 1}]")
            if self.used_early:
                e(f"L_skip{voff}_{ls}:".replace("-", "m"))
            if cfg.pseg and ls in cfg.pseg:
                e(f"s_memtime s[{82 + 2 * cfg.pseg.index(ls)}:{83 + 2 * cfg.pseg.index(ls)}]")
            if cfg.tl and ls < 63:
                e("s_memtime s[80:81]")
                e("s_waitcnt lgkmcnt(0)")
                e("s_sub_u32 s84, s84, s82")
                e("s_sub_u32 s85, s80, s82")
                e("s_mov_b32 s82, s80")
                e("s_pack_ll_b32_b16 s84, s85, s84")
                e(f"v_writelane_b32 v{hTLr}, s84, {ls + 1}")
        assert not queue

    def program(self):
        e, cfg = self.e, self.cfg
        L, A, B_, C_ = 8, 9, 10, 11
        e("L_helper2:")
        if cfg.rewarm:
            e(f"s_getpc_b64 s[{sCode}:{sCode + 1}]")
            e("L_pc2:")
            e(f"s_sub_u32 s{sCode}, s{sCode}, L_pc2-L_ev0")
            e(f"s_subb_u32 s{sCode + 1}, s{sCode + 1}, 0")
            e(f"s_lshr_b32 s{sT2}, s2, 3")
            e(f"s_lshl2_add_u32 s{sT2}, s{sT2}, s{sH}")
            e(f"s_lshl_b32 s{sT2}, s{sT2}, 8")
            e(f"v_and_b32 v{hI1}, 3, v{L}")
            e(f"v_lshl_add_u32 v{hI1}, v{hI1}, 6, s{sT2}")
            e(f"v_min_u32 v{hI1}, L_code_end-L_ev0-4, v{hI1}")
        for n, srd in ((0, SRD_Q), (3, SRD_MK), (4, SRD_MV), (7, SRD_OUT)):
            e(f"s_add_u32 s{srd}, s{36 + 2 * n}, s60")
            e(f"s_addc_u32 s{srd + 1}, s{37 + 2 * n}, 0")
            e(f"s_mov_b32 s{srd + 2}, {HEADB}")
            e(f"s_mov_b32 s{srd + 3}, 0x20000")
        e(f"s_lshl_b32 s61, s{sHead}, 14")
        e(f"s_add_u32 s{SRD_IDX}, s46, s61")
        e(f"s_addc_u32 s{SRD_IDX + 1}, s47, 0")
        e(f"s_mov_b32 s{SRD_IDX + 2}, 16384")
        e(f"s_mov_b32 s{SRD_IDX + 3}, 0x20000")
        e(f"s_lshr_b32 s{sT0}, s{sHead}, 1")
        e(f"s_lshl_b32 s{sT0}, s{sT0}, 2")
        e(f"s_load_dword s{sT3}, s[48:49], s{sT0}")
        e(f"v_lshrrev_b32 v{A}, 3, v{L}")
        e(f"v_and_b32 v{hLc}, 7, v{L}")
        e(f"v_lshlrev_b32 v{hLc}, 4, v{hLc}")
        e(f"v_mul_u32_u24 v{hG}, {ROWB}, v{A}")
        e(f"v_add_u32 v{hG}, v{hG}, v{hLc}")
        e(f"s_add_u32 s{sT1}, s{sN}, s{sH}")
        e(f"s_mul_i32 s{sRowB}, s{sT1}, {BLKB}")
        e(f"s_sub_u32 s{sT2}, 63, s{sT1}")
        e(f"s_mul_i32 s{sRowA}, s{sT2}, {BLKB}")
        e(f"s_add_u32 s{sRowB2}, s{sRowB}, {16 * ROWB}")
        e(f"s_add_u32 s{sRowA2}, s{sRowA}, {16 * ROWB}")
        e(f"s_lshl_b32 s60, s{sT1}, 8")
        e(f"s_lshl_b32 s61, s{sT2}, 8")
        e(f"s_add_u32 s{sC0}, s{sT1}, 3")
        e(f"s_sub_u32 s{sA0}, 63, s{sN}")
        e(f"s_mul_i32 s{sA0}, s{sA0}, {BLKB}")
        e(f"s_add_u32 s{sA0}, s{sA0}, s{sHoff}")
        e(f"v_lshlrev_b32 v{B_}, 3, v{A}")
        def idx_loads():
            for tile in range(2):
                for i in range(4):
                    r = region(7) + 8 * tile + 2 * i
                    self.vmem(f"buffer_load_dwordx2 {vr(r, 2)}, v{B_}, s[{SRD_IDX}:{SRD_IDX + 3}], s{60 + tile} offen offset:{64 * i}",
                              ("idx",))
        if not cfg.idxlate:
            idx_loads()
        e(f"s_mul_i32 s{sQl}, s{sH}, {RBLK}")
        e(f"s_add_u32 s{sT2}, s{sQl}, {EB}")
        e(f"s_add_u32 s{sQl}, s{sQl}, {RB}")
        e(f"v_add_u32 v{hRw}, s{sT2}, v{hG}")
        e(f"s_mov_b32 s{sScale}, {hex(CSCALE)}")
        e(f"s_mov_b32 s{sMaskHi}, 0xffff0000")
        e(f"s_mov_b32 s{s384}, {ROWB}")
        if cfg.elastic:
            e(f"s_mov_b32 s{sEl}, {cfg.elastic[0]}")
        e(f"s_mov_b32 s{sSelLo}, 0x01000100")
        e(f"s_mov_b32 s{sSelHi}, 0x03020302")
        e(f"s_mov_b32 s{sDone}, 0")
        e("s_waitcnt lgkmcnt(0)")
        emit_gate(e, sT3, sT1, 14, sG, None)
        if cfg.tlbw:
            e(f"s_cmp_eq_u32 s{sH}, 0")
            e(f"s_cselect_b64 s[{sTl}:{sTl + 1}], s[{SRD_MK}:{SRD_MK + 1}], s[{SRD_MV}:{SRD_MV + 1}]")
            e(f"s_cmp_eq_u32 s{sH}, 2")
            e(f"s_cselect_b64 s[{sTl}:{sTl + 1}], s[{SRD_OUT}:{SRD_OUT + 1}], s[{sTl}:{sTl + 1}]")
            e(f"s_cmp_eq_u32 s{sH}, 3")
            e(f"s_cselect_b64 s[{sTl}:{sTl + 1}], s[{SRD_Q}:{SRD_Q + 1}], s[{sTl}:{sTl + 1}]")
            e(f"s_mov_b32 s{sTl + 2}, {HEADB}")
            e(f"s_mov_b32 s{sTl + 3}, 0x20000")
            e(f"v_mul_u32_u24 v{C_}, {cfg.tlbs}, v{L}")
            self.vmem(f"buffer_load_dword v{hPfD}, v{C_}, s[{sTl}:{sTl + 3}], 0 offen nt", ("pf",))
        if cfg.qfirst:
            e("s_barrier")
        if cfg.qfirst == 1 or cfg.k0late:
            for it in self.group(-5):
                self.put(it)
        if cfg.pre < 1:
            for it in self.group(-4):
                self.put(it)
        if cfg.pfearly:
            self.put(self.pf_item())
        if cfg.early3 and cfg.pre < 2:
            for it in self.group(-3):
                self.put(it)
        self.wait(("dma", -5))
        jobs = ([("s", 0, i) for i in range(4)] + [("s", 1, i) for i in range(4)]
                + [("v", 0, i) for i in range(4)] + [("v", 1, i) for i in range(4)])
        if cfg.ab_nojobs:
            jobs = []
        stamp(e, cfg, sHStamp, 1)
        e("s_barrier")
        if cfg.tl or (cfg.pseg and cfg.pseg[0] == -2):
            e("s_memtime s[82:83]")
        if not cfg.early3 and cfg.pre < 2:
            for it in self.group(-3):
                self.put(it)
        if not cfg.late2 and cfg.pre < 3:
            for it in self.group(-2):
                self.put(it)
        for x in range(cfg.pf0 - 1 - cfg.pfearly if cfg.pf else 0):
            self.put(self.pf_item())
        if cfg.idxlate:
            idx_loads()
        self.wait(("dma", -4))
        if not cfg.idxlate:
            self.wait(("idx",))
        for n in range(0 if cfg.idxlate else 8):
            e(f"v_lshl_or_b32 v{hIDX + n}, v{region(7) + 2 * n + 1}, 16, v{region(7) + 2 * n}")
            if cfg.ab_idx:
                e(f"v_and_b32 v{hIDX + n}, {hex(cfg.ab_idx * 0x10001)}, v{hIDX + n}")
        if cfg.tl:
            e("s_memtime s[84:85]")
        e("s_barrier")
        if cfg.elastic:
            e(f"s_memtime s[{sBar}:{sBar + 1}]")
        if cfg.tl:
            e("s_memtime s[80:81]")
            e("s_waitcnt lgkmcnt(0)")
            e("s_sub_u32 s84, s84, s82")
            e("s_sub_u32 s85, s80, s82")
            e("s_mov_b32 s82, s80")
            e("s_pack_ll_b32_b16 s84, s85, s84")
            e(f"v_writelane_b32 v{hTLr}, s84, 0")

        for x in [f"v_and_b32 v{hM1}, 16, v{hLc}",
                  f"s_mov_b32 s{sT0}, 0xffff",
                  f"v_lshlrev_b32 v{hM1}, v{hM1}, s{sT0}",
                  f"v_bfe_i32 v{hT}, v{hLc}, 5, 1",
                  f"v_bfi_b32 v{hM0}, v{hT}, 0, v{hM1}",
                  f"v_and_b32 v{hM1}, v{hT}, v{hM1}"]:
            e(x)
        vm0, npf0 = list(self.vm), self.npf
        nv = len(cfg.voffs)
        if nv > 1:
            e(f"s_lshr_b32 s{sT0}, s{sHead}, 3")
            e(f"s_and_b32 s{sT0}, s{sT0}, {nv - 1}")
            for v in range(1, nv):
                e(f"s_cmp_eq_u32 s{sT0}, {v}")
                e(f"s_cbranch_scc1 L_var{v}")
        for v, voff in enumerate(cfg.voffs):
            e(f"L_var{v}:")
            self.vm, self.npf = list(vm0), npf0
            self.schedule(jobs, voff)
            if v + 1 < nv:
                e("s_branch L_tail_done")
        e("L_tail_done:")
        obs = [hT, hT + 4, hIDX, hIDX + 4]
        cos = [[hC + 8 + 2 * i, hC + 2 * i] for i in range(4)]
        if cfg.dend:
            e("s_memtime s[64:65]" if False else "s_memtime s[80:81]")
        for y in range(cfg.presites):
            self.combine_site(67)
        e(f"s_setprio {cfg.endprio}")
        self.barrier()
        if cfg.dend:
            e("s_memtime s[82:83]")
            e("s_waitcnt lgkmcnt(0)")
        for i in range(4):
            e(f"ds_read_b64 {vr(hC + 2 * i, 2)}, v{hLa} offset:{orow(i) + 384}")
        for i in range(4):
            e(f"ds_read_b128 {vr(obs[i], 4)}, v{hRw} offset:{orow(i)}")
        e("s_waitcnt lgkmcnt(4)")
        for i in range(4):
            for x in self.coef_ins(hC + 2 * i, cos[i]):
                e(x)

        def acc_cols(a, bufs, left):
            for u in range(2 if cfg.flo else 1):
                for i in range(4):
                    if u == 0:
                        e(f"s_waitcnt lgkmcnt({3 - i + left})")
                    for k in (2 * a, 2 * a + 1):
                        e(self.comb_mfma1(1, i, k, bufs[i] - 4 * a, cos[i], u))

        def out_cols(a):
            for i in range(4):
                for x in self.comb_out(1, i, (a,)):
                    e(x)
        acc_cols(0, obs, 0)
        if cfg.dend:
            e("s_memtime s[84:85]")
        for a in (1, 2):
            if a == 1 or len(cfg.endpub) == 2:
                e("s_barrier")
            if cfg.dend:
                e(f"s_memtime s[{84 + 2 * a}:{85 + 2 * a}]")
                e("s_waitcnt lgkmcnt(0)")
            for i in range(4):
                e(f"ds_read_b128 {vr(obs[i], 4)}, v{hRw} offset:{orow(i) + 128 * a}")
            out_cols(a - 1)
            acc_cols(a, obs, 0)
        out_cols(2)
        e("L_rest:")
        e(f"s_cmp_ge_u32 s{sDone}, 9")
        e("s_cbranch_scc1 L_fin")
        self.combine_site(None)
        e("s_branch L_rest")
        e("L_fin:")
        if cfg.dend:
            e("s_memtime s[90:91]")
            e("s_waitcnt vmcnt(0)")
            e("s_memtime s[92:93]")
            e("s_waitcnt lgkmcnt(0)")
            emit_dump(e, 80, 7)
        if cfg.probe:
            e("s_load_dwordx2 s[4:5], s[0:1], 72")
            e("s_mov_b32 s6, 0x100000")
            e("s_mov_b32 s7, 0x20000")
            e("s_lshl_b32 s60, s2, 3")
            e(f"s_add_u32 s60, s60, s{sW}")
            e("s_lshl_b32 s60, s60, 2")
            e("s_waitcnt vmcnt(0)")
            e("s_memrealtime s[80:81]")
            e("s_waitcnt lgkmcnt(0)")
            e("v_mov_b32 v0, s80\nv_mov_b32 v4, 0")
            e("buffer_store_dword v0, v4, s[4:7], s60 offen")
            if cfg.pseg:
                e("s_sub_u32 s84, s84, s82")
                e("s_lshl_b32 s60, s2, 5")
                e("v_mov_b32 v1, s84")
                e("buffer_store_dword v1, v4, s[4:7], s60 offen offset:12")
        if cfg.debug:
            e("s_waitcnt vmcnt(0)")
            stamp(e, cfg, sHStamp, 2)
            emit_dump(e, sHStamp, 3)
        if cfg.tl:
            e("s_load_dwordx2 s[4:5], s[0:1], 72")
            e("s_mov_b32 s6, 0x100000")
            e("s_mov_b32 s7, 0x20000")
            e(f"s_lshl_b32 s60, s2, 2")
            e(f"s_add_u32 s60, s60, s{sH}")
            e(f"s_lshl_b32 s60, s60, 9")
            e(f"s_add_u32 s60, s60, 0x80000")
            e("v_mbcnt_lo_u32_b32 v1, -1, 0")
            e("v_mbcnt_hi_u32_b32 v1, -1, v1")
            e("v_lshlrev_b32 v1, 2, v1")
            e("s_waitcnt lgkmcnt(0)")
            e(f"buffer_store_dword v{hTLr}, v1, s[4:7], s60 offen")
        e("s_endpgm")

        for x in self.ool:
            e(x)
        e("L_combB:")

        def tree(lo, hi):
            if hi - lo == 1:
                self.combine_state(lo)
                if lo == 8:
                    e(f"s_mov_b32 s{sC0}, 1000")
                e(f"s_setpc_b64 s[{sLink}:{sLink + 1}]")
                return
            mid = (lo + hi) // 2
            e(f"s_cmp_lt_u32 s{sDone}, {mid}")
            e(f"s_cbranch_scc0 L_cb_{mid}_{hi}")
            tree(lo, mid)
            e(f"L_cb_{mid}_{hi}:")
            tree(mid, hi)
        tree(0, 9)


HEADER = open("cdna_kernels/" + NAME + ".s.ref").read().split("; Override launch")[0]


def generate(cfg):
    ABL[0] = cfg.ab
    e = Emit()
    e.L.append(HEADER.rstrip("\n"))
    if cfg.probe and cfg.probe != 1:
        e.L.append(f"; @launch kernel={NAME}_kernel grid=(256,1,1) block=(512,1,1) lds={LDS_TOTAL}")
        e.L.append(f"; @launch kernel=probe_kernel grid=(1,1,1) block=(64,1,1) lds=0")
    else:
        e.L.append(f"; @launch grid=(256,1,1) block=(512,1,1) lds={LDS_TOTAL}")
    e('.amdgcn_target "amdgcn-amd-amdhsa--gfx950"')
    e(".text")
    e(f".globl {NAME}_kernel")
    e(".p2align 8")
    e(f".type {NAME}_kernel,@function")
    e(f"{NAME}_kernel:")
    e("s_cmp_ge_u32 s2, 256")
    e("s_cbranch_scc1 L_exit")
    e("s_load_dwordx16 s[36:51], s[0:1], 0")
    if cfg.warm_code:
        e("s_getpc_b64 s[62:63]")
        e("L_pc:")
        e("s_lshr_b32 s60, s2, 3")
        big = len(cfg.voffs) > 1 or cfg.dual is not None
        e(f"s_lshl_b32 s60, s60, {11 if big else 10}")
        e(f"v_lshrrev_b32 v2, {4 if big else 5}, v0")
        e("v_lshl_add_u32 v2, v2, 6, s60")
        e(f"v_min_u32 v2, L_code_end-L_pc-4, v2")
        e(f"global_load_dword v{WARMD}, v2, s[62:63]")
    e("v_lshrrev_b32 v1, 6, v0")
    e(f"s_lshr_b32 s{sHead}, s2, 3" if cfg.hostile else f"s_and_b32 s{sHead}, s2, 31")
    e(f"v_readfirstlane_b32 s{sW}, v1")
    e(f"s_and_b32 s{sP}, s2, 7" if cfg.hostile else f"s_lshr_b32 s{sP}, s2, 5")
    e(f"s_lshl_b32 s{sN}, s{sP}, 2")
    e(f"s_sub_u32 s{sN}, 60, s{sN}")
    e(f"s_cmp_lt_u32 s{sW}, 4")
    h = Helper(e, cfg)
    if cfg.cfirst:
        e("s_cbranch_scc0 L_helper")
        emit_compute(e, cfg, h.prologue)
    else:
        e("s_cbranch_scc1 L_compute")
        h.prologue()
        emit_compute(e, cfg)
    h.program()
    e("L_exit:")
    e("s_endpgm")
    e("L_code_end:")
    if cfg.probe and cfg.probe != 1:
        kind, K = cfg.probe
        e(".globl probe_kernel\n.p2align 8\n.type probe_kernel,@function\nprobe_kernel:")
        e("s_cmp_ge_u32 s2, 1\ns_cbranch_scc1 P_exit")
        e("s_load_dwordx2 s[4:5], s[0:1], 72\ns_load_dwordx2 s[8:9], s[0:1], 64\ns_mov_b32 s6, 0x100000\ns_mov_b32 s7, 0x20000")
        e("s_mov_b32 s10, 256\ns_mov_b32 s11, 0x20000")
        e("v_lshlrev_b32 v1, 7, v0\ns_waitcnt lgkmcnt(0)")
        for j in range(4):
            e(f"buffer_load_dwordx4 v[{8 * j + 8}:{8 * j + 11}], v1, s[4:7], 0 offen offset:{32 * j}")
            e(f"buffer_load_dwordx4 v[{8 * j + 12}:{8 * j + 15}], v1, s[4:7], 0 offen offset:{32 * j + 16}")
        e("s_waitcnt vmcnt(0)\nv_readfirstlane_b32 s20, v8\ns_sub_u32 s20, s20, 0x10000")
        e("v_mov_b32 v2, -1\nv_mov_b32 v3, 0\nv_mov_b32 v4, 0\nv_mov_b32 v5, 0\nv_mov_b32 v6, 0\nv_mov_b32 v7, 0\nv_mov_b32 v41, 0")
        for j in range(4):
            b = 8 * j + 8
            for r in (0, 1, 2, 4, 5, 6, 7):
                e(f"v_subrev_u32 v{b + r}, s20, v{b + r}")
            e(f"v_max3_u32 v{b + 4}, v{b + 4}, v{b + 5}, v{b + 6}\nv_max_u32 v{b + 4}, v{b + 4}, v{b + 7}")
            e(f"v_min_u32 v2, v2, v{b}\nv_max_u32 v3, v3, v{b + 4}\nv_max_u32 v41, v41, v{b}")
            e(f"v_sub_u32 v40, v{b + 1}, v{b}\nv_add_u32 v4, v4, v40")
            e(f"v_sub_u32 v40, v{b + 2}, v{b + 1}\nv_add_u32 v5, v5, v40")
            e(f"v_add_u32 v6, v6, v{b + 3}")
            e(f"v_sub_u32 v40, v{b + 4}, v{b + 2}\nv_add_u32 v7, v7, v40")
        e("s_mov_b32 s22, -1\ns_mov_b32 s23, 0\ns_mov_b32 s24, 0\ns_mov_b32 s25, 0\ns_mov_b32 s26, 0\ns_mov_b32 s27, 0\ns_mov_b32 s28, 0\ns_mov_b32 s21, 0")
        e("P_red:")
        for r, op in ((2, "s_min_u32"), (3, "s_max_u32"), (4, "s_add_u32"), (5, "s_add_u32"), (6, "s_add_u32"), (7, "s_add_u32")):
            e(f"v_readlane_b32 s30, v{r}, s21\ns_nop 3\n{op} s{20 + r}, s{20 + r}, s30")
        e("v_readlane_b32 s30, v41, s21\ns_nop 3\ns_max_u32 s28, s28, s30")
        e("s_add_u32 s21, s21, 1\ns_cmp_lt_u32 s21, 64\ns_cbranch_scc1 P_red")
        e("s_sub_u32 s23, s23, s22\ns_sub_u32 s28, s28, s22\ns_lshl_b32 s23, s23, 8\ns_lshl_b32 s28, s28, 8\ns_lshr_b32 s26, s26, 4")
        for k in range(6):
            e(f"v_mov_b32 v2, s{23 + k}\nv_mov_b32 v3, 0\nbuffer_store_dword v2, v3, s[8:11], 0 offen offset:{4 * k}\ns_waitcnt vmcnt(0)")
        e(f"s_mul_i32 s31, s{23 + kind}, {K}\ns_lshr_b32 s31, s31, 8\ns_min_u32 s31, s31, 100000")
        e("s_memrealtime s[32:33]\ns_waitcnt lgkmcnt(0)")
        e("P_spin:\ns_memrealtime s[34:35]\ns_waitcnt lgkmcnt(0)\ns_sub_u32 s36, s34, s32\ns_cmp_lt_u32 s36, s31\ns_cbranch_scc1 P_spin")
        e("P_exit:\ns_endpgm")
    e.L.append(f""".section .rodata,"a"
.p2align 6
.amdhsa_kernel {NAME}_kernel
  .amdhsa_next_free_vgpr 256
  .amdhsa_next_free_sgpr 102
  .amdhsa_accum_offset 256
  .amdhsa_group_segment_fixed_size 0
  .amdhsa_kernarg_size 80
  .amdhsa_user_sgpr_count 2
  .amdhsa_user_sgpr_kernarg_segment_ptr 1
  .amdhsa_system_sgpr_workgroup_id_x 1
.end_amdhsa_kernel""")
    if cfg.probe and cfg.probe != 1:
        e.L.append(""".p2align 6
.amdhsa_kernel probe_kernel
  .amdhsa_next_free_vgpr 64
  .amdhsa_next_free_sgpr 64
  .amdhsa_accum_offset 64
  .amdhsa_group_segment_fixed_size 0
  .amdhsa_kernarg_size 80
  .amdhsa_user_sgpr_count 2
  .amdhsa_user_sgpr_kernarg_segment_ptr 1
  .amdhsa_system_sgpr_workgroup_id_x 1
.end_amdhsa_kernel""")
    return e.text()


if __name__ == "__main__":
    cfg = Cfg()
    out = "cdna_kernels/" + NAME + ".s"
    for a in sys.argv[1:]:
        if a.startswith("-o"):
            out = a[2:]
        else:
            k, v = a.split("=", 1)
            assert hasattr(cfg, k), k
            setattr(cfg, k, eval(v))
    open(out, "w").write(generate(cfg))
    import subprocess
    r = subprocess.run(["clang", "-x", "assembler", "-target", "amdgcn-amd-amdhsa", "-mcpu=gfx950",
                        "-c", out, "-o", "chk.o"], capture_output=True, text=True)
    if r.returncode:
        print("ASSEMBLY FAILED", out, r.stderr[:1500])
        import os
        os.remove(out)
        sys.exit(1)
```

```python
import sys, struct, math

NAME = "standalone__memory_aug_memorizing_tr__prompt"
ROWB = 384
BLKB = 32 * ROWB
HEADB = 2048 * ROWB
KRG = 3104
KBLK = 4 * KRG
VSLOT, NVSLOT = KBLK, 5
KB = NVSLOT * VSLOT
KSLOT = 2 * KBLK
RBLK = 12864
LDS_TOTAL = 163840
RB = LDS_TOTAL - 4 * RBLK
EB = RB - 4 * RBLK
ROFF = RB - EB
PADROW = 400
BIAS = 16.0
assert KB + 4 * KBLK <= RB and EB >= 4 * VSLOT


def orow(i):
    return i * 3200 + 64 * (i >> 1)


def f2u(x):
    return struct.unpack("<I", struct.pack("<f", x))[0]


CSCALE = f2u(192 ** -0.5 * math.log2(math.e))
LOG2E = f2u(math.log2(math.e))
NINF = 0xFF800000


class Cfg:
    debug = False
    tl = False
    warm_code = True
    nt_kv = ""
    nt_q = "nt"
    nt_g = ""
    nt_out = "sc0 sc1 nt"
    nt_pf = ""
    nt_pf_from = 0
    nt_qa = None
    qcont = False
    pf2 = None
    pf = True
    pd = 1
    mfma_v = True
    mfma_s = True
    group = True
    bstart = 0.25
    lastbar = 7
    lastroom = 2
    endroom = 3
    wfirst = True
    endpub = (4, 8)
    endprio = 3
    win = 0
    pfx2 = True
    presites = 3
    tlbw = False
    tlbs = 65536
    m4prio = 3
    sdur = 2
    firstbar = 2
    sitemod = (2, 0)
    vfirst = False
    tailsites = 2
    lastsites = 3
    cl = [2, 4, 6, 8, 10, 12, 16, 20, 24, 26, 28, 30, 32, 34, 36, 38, 40, 42, 44, 46, 48, 50, 53, 56, 59]
    order = ("SB0 T+SB1a SB1b+SB2a T+SB2b SB3 T+q0 T+q1 T+q2 T+q3 SA0 T+SA1a SA2 T+SA1b SA3 T+MB0a MB0b+MB1a "
             "T+MB1b MB2 T+MB3a T+MB3b MA0 T+MA1a T+MA1b MA2 MA3")
    lat = 3
    vdur = 1
    late2 = True
    early3 = False
    pfat = ()
    pf0 = 2
    pdesc = 0
    sitew = 0.45
    sburst = 6
    swplan = (19, 16, 999)
    swstep = 3
    swbar = (240, 9999)
    wsite = (0.14, 0.36, 0.14, 0.36)
    ab_nojobs = False
    ab_nodma = False
    ab_idx = 0
    ab_coarse = 0
    ab_noburst = False
    ab = ""
    seq = 1
    stag = ()
    qfirst = 0
    dend = False
    dst = False
    cfirst = True
    wprio = None
    nt_outB = None
    rewarm = 0
    feww = False
    qrr = True
    pre = 0
    preprio = (2, 1, 0)
    pfskip = False
    pfearly = 0
    k0late = False
    idxlate = True
    pseg = None
    bmax = 0
    apost = 0
    apre = 0
    verbose = False
    voffs = (0,)
    dual = 1
    dualk = 1
    flo = False
    elastic = None
    rot = 0
    hostile = False
    probe = None
    dsw = False


class Emit:
    def __init__(self):
        self.L = []

    def __call__(self, s):
        for x in s.split("\n"):
            x = x.strip()
            if x:
                self.L.append(x if x.endswith(":") or x.startswith(".") else "  " + x)

    def c(self, s):
        self.L.append("  ; " + s)

    def text(self):
        return "\n".join(self.L) + "\n"


def vr(a, n):
    return f"v[{a}:{a + n - 1}]"


sW, sHead, sP, sN = 3, 52, 53, 54
SRD_Q, SRD_K, SRD_V, SRD_MK, SRD_MV, SRD_IDX, SRD_OUT = 8, 12, 16, 20, 24, 28, 32
sEv, sEvId, sThr = 55, 56, 57
sFbLink = 58
sMask0 = 64
sStamp = 12
sCScale = 96
sCMaskHi = 98
sRW = 99
sCOmg = 100
sHiHalf, sOddRow = 4, 6
sH, sG, sOMG, sC0, sDone = 55, 56, 57, 58, 59
sLink = 60
sT0, sT1, sT2, sT3 = 62, 63, 64, 65
sKoff, sVoff = 66, 67
sRowB, sRowA = 68, 69
sKl, sVl = 70, 71
sSw, sDir = 72, 73
sScale = 74
sMaskHi = 75
sRowB2, sRowA2 = 76, 77
s384 = 78
sX = 79
SRD_PF = 4
sHStamp = 80
sKlT, sVlT = 86, 90
sA0, sQl = 95, 96
sTl = 88
sSelLo, sSelHi = 92, 93
sEl = 94
sRot = 79
sNow, sBar = 86, 70
sCode = 98
sHl, sHoff = 100, 101

O0, Q0 = 0, 96
SB = [144, 160]
PB = [176, 184]
NM = 192
LS = 200
F0 = 208
ONES = 240
E0, NE = 244, 4
vAK, vAK2, vAV, vOR, vT1, vT2, vAL, vAO = 248, 249, 250, 251, 252, 253, 254, 255
MF16 = "v_mfma_f32_16x16x32_bf16"


def frag(f):
    return F0 + 4 * (f % 8)


def kread(f, par):
    kt, ks = divmod(f, 6)
    return [f"ds_read_b128 {vr(frag(f), 4)}, v{vAK} offset:{par * KBLK + kt * 4 * ROWB + ks * 64}"]


def vread_at(dt, r):
    return [f"ds_read_b64_tr_b16 {vr(r + 2 * t, 2)}, v{vAV} offset:{32 * dt + t * 4 * ROWB}" for t in range(2)]


def mfma_qk(f, q, par, c0=None):
    kt, ks = divmod(f, 6)
    d = SB[1 - par] + 8 * kt + 4 * q
    c = vr(d, 4) if ks else (c0 if c0 is not None else vr(NM + 4 * q, 4))
    return f"{MF16} {vr(d, 4)}, {vr(frag(f), 4)}, {vr(Q0 + 24 * q + 4 * ks, 4)}, {c}"


def mfma_pv(dt, q, r, par):
    o = O0 + 8 * dt + 4 * q
    return f"{MF16} {vr(o, 4)}, {vr(r, 4)}, {vr(PB[par] + 4 * q, 4)}, {vr(o, 4)}"


vIDX = LS + 4


def sparse_rs():
    return sum(1 for m, _ in SEQ if m[0] == "rs") == 1


def mfma_rs(q, par):
    if sparse_rs():
        return f"v_smfmac_f32_16x16x64_bf16 {vr(LS, 4)}, {vr(ONES, 4)}, {vr(PB[par], 8)}, v{vIDX}"
    return f"{MF16} {vr(LS + 4 * q, 4)}, {vr(ONES, 4)}, {vr(PB[par] + 4 * q, 4)}, {vr(LS + 4 * q, 4)}"


def E(i):
    if SEQ is SEQ13:
        return [E0, E0 + 1, E0 + 2, E0 + 3, LS + 5, LS + 6][i % 6]
    return E0 + i % NE


def preg(P_, k):
    kt, q, j = k >> 2, (k >> 1) & 1, k & 1
    return P_ + 4 * q + 2 * kt + j


SEQ = [
    ((0, 0), ["R7"]), ((0, 1), ["R8", "c4"]),
    ((1, 0), ["e11"]), ((1, 1), ["R9", "W"]),
    ((2, 0), ["e12"]), ((2, 1), ["R10", "c5"]),
    ((3, 0), ["e13"]), ((3, 1), ["R11", "o1"]),
    ((4, 0), ["c6", "W"]), ((4, 1), ["R12"]),
    ((5, 0), ["e14"]), ((5, 1), ["R13"]),
    ((6, 0), ["e15"]), ((6, 1), ["R14"]),
    ((7, 0), ["o2", "W"]), ((7, 1), ["R15"]),
    ((8, 0), ["c7", "t1"]), ((8, 1), ["R16"]),
    ((9, 0), ["o3", "t2"]), ((9, 1), ["R17"]),
    ((10, 0), ["cmp", "W"]), ((10, 1), ["R18"]),
    ((11, 0), ["chk", "swapK"]), ((11, 1), ["R19"]),
    ((12, 0), ["e0n"]), ((12, 1), ["R20"]),
    (("rs", 0), ["e1n"]),
    ((13, 0), ["c0n", "W"]), ((13, 1), ["R21"]),
    (("rs", 1), ["e2n"]),
    ((14, 0), ["e3n"]), ((14, 1), ["R22"]),
    ((15, 0), ["e4n"]), ((15, 1), ["R23"]),
    ((16, 0), ["bar", "c1n"]), ((16, 1), ["R24", "W"]),
    ((17, 0), ["e5n"]), ((17, 1), ["R25", "vmin"]),
    ((18, 0), ["e6n"]), ((18, 1), ["R26", "c2n"]),
    ((19, 0), ["e7n"]), ((19, 1), ["R27", "W"]),
    ((20, 0), ["e8n"]), ((20, 1), ["R28", "c3n"]),
    ((21, 0), ["e9n"]), ((21, 1), ["R29", "o0n"]),
    ((22, 0), ["ssub"]), ((22, 1), ["R30", "W"]),
    ((23, 0), ["e10n"]), ((23, 1), ["evt"]),
]
SEQ3 = [
    ((0, 0), ["R7", "c4"]), ((1, 0), ["e11"]), ((2, 0), ["e12"]),
    ((0, 1), ["R8", "c5"]), ((1, 1), ["R9", "o1"]), ((2, 1), ["R10", "W"]),
    ((3, 0), ["e13"]), ((4, 0), ["e14"]), ((5, 0), ["e15"]),
    ((3, 1), ["R11", "c6"]), ((4, 1), ["R12"]), ((5, 1), ["R13a", "W"]),
    ((6, 0), ["R13b", "c7"]), ((7, 0), ["o2", "t1"]), ((8, 0), ["o3", "t2"]),
    ((6, 1), ["R14"]), ((7, 1), ["R15"]), ((8, 1), ["R16a", "W"]),
    ((9, 0), ["R16b", "cmp"]), ((10, 0), ["swapK"]), ((11, 0), ["chk", "W"]),
    ((9, 1), ["R17"]), ((10, 1), ["R18"]), ((11, 1), ["R19"]),
    ((12, 0), ["e0n"]), ((12, 1), ["R20"]),
    (("rs", 0), ["e1n"]),
    ((13, 0), ["c0n", "W"]), ((13, 1), ["R21"]),
    (("rs", 1), ["e2n"]),
    ((14, 0), ["e3n"]), ((14, 1), ["R22"]),
    ((15, 0), ["e4n"]), ((15, 1), ["R23"]),
    ((16, 0), ["bar", "c1n"]), ((16, 1), ["R24", "W"]),
    ((17, 0), ["e5n"]), ((17, 1), ["R25", "vmin"]),
    ((18, 0), ["e6n"]), ((18, 1), ["R26", "c2n"]),
    ((19, 0), ["e7n"]), ((19, 1), ["R27", "W"]),
    ((20, 0), ["e8n"]), ((20, 1), ["R28", "c3n"]),
    ((21, 0), ["e9n"]), ((21, 1), ["R29", "o0n"]),
    ((22, 0), ["ssub"]), ((22, 1), ["R30", "W"]),
    ((23, 0), ["e10n"]), ((23, 1), ["evt"]),
]
SEQ4 = [
    ((0, 0), ["e10"]), ((0, 1), ["R8", "c4"]),
    ((1, 0), ["e11"]), ((1, 1), ["R9", "W"]),
    ((2, 0), ["e12"]), ((2, 1), ["R10", "c5"]),
    ((3, 0), ["e13"]), ((3, 1), ["R11", "W"]),
    ((4, 0), ["e14"]), ((4, 1), ["R12"]),
    ((5, 0), ["e15"]), ((5, 1), ["R13a", "W"]),
    ((6, 0), ["R13b", "c6"]), ((6, 1), ["R14a", "c7"]),
    ((7, 0), ["R14b", "o0"]), ((7, 1), ["R15a", "o1"]),
    ((8, 0), ["R15b", "o2"]), ((8, 1), ["R16a", "W"]),
    ((9, 0), ["R16b", "o3"]), ((9, 1), ["R17a", "cmp"]),
    ((10, 0), ["R17b", "t1"]), ((10, 1), ["R18a", "swapK"]),
    ((11, 0), ["R18b", "chk"]), ((11, 1), ["R19a", "W"]),
    ((12, 0), ["R19b", "t2"]), ((12, 1), ["R20a", "ssub"]),
    (("rs", 0), ["e0n"]),
    ((13, 0), ["R20b"]), ((13, 1), ["R21a", "W"]),
    (("rs", 1), ["e1n"]),
    ((14, 0), ["R21b", "c0n"]), ((14, 1), ["R22"]),
    ((15, 0), ["e2n"]), ((15, 1), ["R23a"]),
    ((16, 0), ["R23b", "bar"]), ((16, 1), ["R24", "W"]),
    ((17, 0), ["e3n"]), ((17, 1), ["R25", "c1n"]),
    ((18, 0), ["e4n"]), ((18, 1), ["R26", "vmin"]),
    ((19, 0), ["e5n"]), ((19, 1), ["R27", "W"]),
    ((20, 0), ["e6n"]), ((20, 1), ["R28", "c2n"]),
    ((21, 0), ["e7n"]), ((21, 1), ["R29", "c3n"]),
    ((22, 0), ["e8n"]), ((22, 1), ["R30", "W"]),
    ((23, 0), ["e9n"]), ((23, 1), ["R31", "evt"]),
]
PVPART = [
    ((12, 0), ["R19b", "t2"]), ((12, 1), ["W", "R20a"]),
    (("rs", 0), ["e0n"]),
    ((13, 0), ["R20b"]), ((13, 1), ["R21a"]),
    (("rs", 1), ["W", "e1n"]),
    ((14, 0), ["R21b", "c0n"]), ((14, 1), ["W", "R22"]),
    ((15, 0), ["e2n"]), ((15, 1), ["W", "R23"]),
    ((16, 0), ["bar", "e3n"]), ((16, 1), ["W", "R24", "vmin"]),
    ((17, 0), ["e4n"]), ((17, 1), ["W", "R25", "c1n"]),
    ((18, 0), ["e5n"]), ((18, 1), ["W", "R26"]),
    ((19, 0), ["e6n"]), ((19, 1), ["W", "R27", "c2n"]),
    ((20, 0), ["e7n"]), ((20, 1), ["W", "R28", "o0n"]),
    ((21, 0), ["e8n"]), ((21, 1), ["W", "R29", "c3n"]),
    ((22, 0), ["ssub", "e9n"]), ((22, 1), ["W", "R30"]),
    ((23, 0), ["W", "e10n"]), ((23, 1), ["evt"]),
]
SEQ5 = [
    ((0, 0), ["R7", "c4"]), ((0, 1), ["W", "R8", "o1"]),
    ((1, 0), ["e11"]), ((1, 1), ["W", "R9"]),
    ((2, 0), ["e12"]), ((2, 1), ["W", "R10", "c5"]),
    ((3, 0), ["e13"]), ((3, 1), ["W", "R11"]),
    ((4, 0), ["e14"]), ((4, 1), ["W", "R12"]),
    ((5, 0), ["e15"]), ((5, 1), ["W", "R13a", "c6"]),
    ((6, 0), ["R13b", "c7"]), ((6, 1), ["W", "R14a", "o2"]),
    ((7, 0), ["R14b"]), ((7, 1), ["W", "R15a", "o3"]),
    ((8, 0), ["R15b"]), ((8, 1), ["W", "R16a", "cmp"]),
    ((9, 0), ["R16b", "swapK"]), ((9, 1), ["W", "R17a"]),
    ((10, 0), ["R17b", "t1"]), ((10, 1), ["W", "R18"]),
    ((11, 0), ["chk"]), ((11, 1), ["W", "R19a"]),
] + PVPART
SEQ6 = [
    ((0, 0), ["W", "R7", "c4"]), ((1, 0), ["W", "e11"]), ((2, 0), ["e12"]),
    ((0, 1), ["R8", "o1"]), ((1, 1), ["R9", "c5"]), ((2, 1), ["W", "R10"]),
    ((3, 0), ["W", "e13"]), ((4, 0), ["W", "e14"]), ((5, 0), ["e15"]),
    ((3, 1), ["R11", "c6"]), ((4, 1), ["R12a", "c7"]), ((5, 1), ["W", "R12b", "o2"]),
    ((6, 0), ["W", "R13a", "o3"]), ((7, 0), ["W", "R13b", "cmp"]), ((8, 0), ["swapK", "t1"]),
    ((6, 1), ["R14"]), ((7, 1), ["R15a"]), ((8, 1), ["W", "R15b"]),
    ((9, 0), ["W", "R16a"]), ((10, 0), ["W", "R16b"]), ((11, 0), ["chk"]),
    ((9, 1), ["R17"]), ((10, 1), ["R18"]), ((11, 1), ["W", "R19a"]),
] + PVPART
SEQ7 = [
    ((0, 0), ["W", "R7", "c4"]), ((1, 0), ["W", "e10"]), ((2, 0), ["e11"]),
    ((0, 1), ["R8", "o1"]), ((1, 1), ["R9", "c5"]), ((2, 1), ["W", "R10"]),
    ((3, 0), ["W", "e12"]), ((4, 0), ["W", "e13"]), ((5, 0), ["e14"]),
    ((3, 1), ["R11", "c6"]), ((4, 1), ["R12a", "o2"]), ((5, 1), ["W", "R12b"]),
    ((6, 0), ["W", "e15"]), ((7, 0), ["W", "R13a", "c7"]), ((8, 0), ["R13b", "o3"]),
    ((6, 1), ["R14"]), ((7, 1), ["R15a", "cmp"]), ((8, 1), ["W", "R15b", "t1"]),
    ((9, 0), ["W", "R16a", "swapK"]), ((10, 0), ["W", "R16b"]), ((11, 0), ["chk"]),
    ((9, 1), ["R17"]), ((10, 1), ["R18"]), ((11, 1), ["W", "R19a"]),
    ((12, 0), ["R19b", "t2"]), ((12, 1), ["W", "R20a"]),
    (("rs", 0), ["e0n"]),
    ((13, 0), ["R20b"]), ((13, 1), ["R21a"]),
    (("rs", 1), ["W", "e1n"]),
    ((14, 0), ["R21b", "c0n"]), ((14, 1), ["W", "R22"]),
    ((15, 0), ["e2n"]), ((15, 1), ["W", "R23"]),
    ((16, 0), ["bar"]), ((16, 1), ["W", "R24", "vmin"]),
    ((17, 0), ["e3n"]), ((17, 1), ["W", "R25"]),
    ((18, 0), ["e4n"]), ((18, 1), ["W", "R26", "c1n"]),
    ((19, 0), ["e5n"]), ((19, 1), ["W", "R27"]),
    ((20, 0), ["e6n"]), ((20, 1), ["W", "R28", "c2n"]),
    ((21, 0), ["e7n"]), ((21, 1), ["W", "R29", "o0n"]),
    ((22, 0), ["ssub", "e8n"]), ((22, 1), ["W", "R30", "c3n"]),
    ((23, 0), ["W", "e9n"]), ((23, 1), ["evt"]),
]
SEQ8 = [
    ((0, 0), ["W", "R7", "c3"]), ((1, 0), ["W", "e8"]), ((2, 0), ["e9"]),
    ((0, 1), ["R8", "o0"]), ((1, 1), ["R9", "c4"]), ((2, 1), ["W", "R10", "o1"]),
    ((3, 0), ["W", "e10"]), ((4, 0), ["W", "e11"]), ((5, 0), ["e12"]),
    ((3, 1), ["R11", "c5"]), ((4, 1), ["R12"]), ((5, 1), ["W", "R13"]),
    ((6, 0), ["W", "e13"]), ((7, 0), ["W", "e14"]), ((8, 0), ["e15"]),
    ((6, 1), ["R14a", "c6"]), ((7, 1), ["R14b", "c7"]), ((8, 1), ["W", "R15a", "o2"]),
    ((9, 0), ["W", "R15b", "o3"]), ((10, 0), ["W", "R16a", "cmp"]), ((11, 0), ["R16b", "swapK"]),
    ((9, 1), ["R17a", "t1"]), ((10, 1), ["chk"]), ((11, 1), ["W", "R17b", "t2"]),
    ((12, 0), ["e0n"]), ((12, 1), ["W", "R18"]),
    ((13, 0), ["e1n"]), ((13, 1), ["W", "R19"]),
    ((14, 0), ["R20a", "c0n"]), ((14, 1), ["W", "R20b"]),
    (("rs", 0), ["e2n"]),
    ((15, 0), ["R21a"]), ((15, 1), ["W", "R21b"]),
    ((16, 0), ["R22a"]), ((16, 1), ["W", "R22b"]),
    ((17, 0), ["e3n"]), ((17, 1), ["W", "R23"]),
    (("rs", 1), ["bar"]),
    ((18, 0), ["R24", "c1n"]), ((18, 1), ["W", "R25", "vmin"]),
    ((19, 0), ["R26"]), ((19, 1), ["W", "R27"]),
    ((20, 0), ["e4n"]), ((20, 1), ["W", "R28"]),
    ((21, 0), ["e5n"]), ((21, 1), ["W", "R29"]),
    ((22, 0), ["ssub", "e6n"]), ((22, 1), ["W", "R30", "c2n"]),
    ((23, 0), ["W", "e7n"]), ((23, 1), ["evt"]),
]
SEQ9 = [x for x in SEQ8 if x[0] != ("rs", 0)]
SEQ9 = [(m, {(15, 0): ["e2n"], (15, 1): ["W", "R21"]}.get(m, g)) for m, g in SEQ9]
SEQ10 = [x for x in SEQ8 if x[0] != ("rs", 1)]
SEQ10 = [(m, {(18, 0): ["bar", "R24"], (19, 0): ["R26", "c1n"]}.get(m, g)) for m, g in SEQ10]
SEQ11 = [x for x in SEQ8 if x[0] != ("rs", 1)]
SEQ11 = [(m, {(18, 0): ["bar"], (18, 1): ["W", "R24", "R25"], (19, 0): ["R26", "c1n"], (19, 1): ["W", "R27", "vmin"]}.get(m, g)) for m, g in SEQ11]
SEQ12 = [
    ((0, 0), ["W", "R7", "c3"]), ((1, 0), ["W", "e9"]), ((2, 0), ["e10"]),
    ((0, 1), ["R8", "c4"]), ((1, 1), ["R9", "o0"]), ((2, 1), ["W", "R10", "o1"]),
    ((3, 0), ["W", "e11"]), ((4, 0), ["W", "e12"]), ((5, 0), ["e13"]),
    ((3, 1), ["R11", "c5"]), ((4, 1), ["R12a", "c6"]), ((5, 1), ["W", "R12b", "o2"]),
    ((6, 0), ["W", "e14"]), ((7, 0), ["W", "R13"]), ((8, 0), ["e15"]),
    ((6, 1), ["R14a", "t1"]), ((7, 1), ["R14b", "c7"]), ((8, 1), ["W", "R15a", "o3"]),
    ((9, 0), ["W", "R15b", "cmp"]), ((10, 0), ["W", "R16a", "swapK"]), ((11, 0), ["R16b", "t2"]),
    ((9, 1), ["R17a"]), ((10, 1), ["chk"]), ((11, 1), ["W", "R17b", "R18a"]),
    ((12, 0), ["e0n"]), ((12, 1), ["W", "R18b", "R19a"]),
    ((13, 0), ["e1n"]), ((13, 1), ["W", "R19b", "R20a"]),
    ((14, 0), ["e2n"]), ((14, 1), ["W", "R20b", "R21a"]),
    ((15, 0), ["e3n"]), ((15, 1), ["W", "R21b", "c0n"]),
    ((16, 0), ["R22a", "c1n"]), ((16, 1), ["W", "R22b"]),
    ((17, 0), ["e4n"]), ((17, 1), ["W", "R23"]),
    (("rs", 1), ["bar"]),
    ((18, 0), ["R24"]), ((18, 1), ["W", "R25", "vmin"]),
    ((19, 0), ["R26"]), ((19, 1), ["W", "R27"]),
    ((20, 0), ["e5n"]), ((20, 1), ["W", "R28"]),
    ((21, 0), ["e6n"]), ((21, 1), ["W", "R29", "c2n"]),
    ((22, 0), ["ssub", "e7n"]), ((22, 1), ["W", "R30"]),
    ((23, 0), ["W", "e8n"]), ((23, 1), ["evt"]),
]
SEQ13 = [
    ((0, 0), ["W", "R7"]), ((1, 0), ["W", "e7"]), ((2, 0), ["W", "e8"]),
    ((3, 0), ["W", "e9"]), ((4, 0), ["W", "e10"]), ((5, 0), ["e11"]),
    ((0, 1), ["R8", "c3"]), ((1, 1), ["R9", "c4"]), ((2, 1), ["R10", "c5"]),
    ((3, 1), ["R11", "o1"]), ((4, 1), ["R12a"]), ((5, 1), ["W", "R12b", "swapK"]),
    ((6, 0), ["W", "e12"]), ((7, 0), ["W", "e13"]), ((8, 0), ["W", "e14"]),
    ((9, 0), ["W", "e15"]), ((10, 0), ["W", "R13a", "c6"]), ((11, 0), ["R13b", "c7"]),
    ((6, 1), ["R14a", "o2"]), ((7, 1), ["R14b", "o3"]), ((8, 1), ["R15a", "cmp"]),
    ((9, 1), ["R15b"]), ((10, 1), ["chk"]), ((11, 1), ["W", "R16"]),
    ((12, 0), ["e0n"]), ((12, 1), ["W", "R17"]),
    ((13, 0), ["e1n"]), ((13, 1), ["W", "R18"]),
    ((14, 0), ["e2n"]), ((14, 1), ["W", "R19"]),
    ((15, 0), ["e3n"]), ((15, 1), ["W", "R20"]),
    ((16, 0), ["e4n"]), ((16, 1), ["W", "R21a", "c0n"]),
    ((17, 0), ["R21b", "c1n"]), ((17, 1), ["W", "R22a", "t1"]),
    ((18, 0), ["R22b", "t2"]), ((18, 1), ["W", "e5n"]),
    ((19, 0), ["R23"]),
    (("rs", 1), ["bar"]),
    ((19, 1), ["W", "R24", "vmin"]),
    ((20, 0), ["R25", "c2n"]), ((20, 1), ["W", "R26"]),
    ((21, 0), ["R27", "o0n"]), ((21, 1), ["W", "R28"]),
    ((22, 0), ["ssub", "R29"]), ((22, 1), ["W", "R30"]),
    ((23, 0), ["W", "e6n"]), ((23, 1), ["evt"]),
]
SEQ1 = SEQ
SEQ = SEQ13
for a_ in sys.argv:
    if a_.startswith("seq="):
        SEQ = {"13": SEQ13, "12": SEQ12, "9": SEQ9, "10": SEQ10, "11": SEQ11, "7": SEQ7, "8": SEQ8, "1": SEQ1, "3": SEQ3, "4": SEQ4, "5": SEQ5, "6": SEQ6}[a_[4:]]
if "feww=True" in sys.argv:
    DROP = {(0, 0), (1, 0), (3, 0), (4, 0), (6, 0), (7, 0), (9, 0), (10, 0),
            (12, 1), (14, 1), (16, 1), (18, 1), (20, 1), (22, 1)}
    SEQ = [(m, [t for t in g if not (t == "W" and m in DROP)]) for m, g in SEQ]
NFIRSTW = 1 if SEQ is SEQ13 or SEQ is SEQ12 else 3
NPRIME = 8 if SEQ is SEQ4 else 7


def is_sm(tok):
    return tok[0] in "eco" and tok[1].isdigit()


ALLTOK = [t for _, g in SEQ for t in g]
SM_FIRST = [t[:-1] for t in ALLTOK if is_sm(t) and t.endswith("n")]
SM_SECOND = [t for t in ALLTOK if is_sm(t) and not t.endswith("n")]


def sm_ins(t, S_, P_):
    i = int(t[1:])
    if t[0] == "e":
        return f"v_exp_f32 v{E(i)}, v{S_ + i}"
    if t[0] == "c":
        return f"v_cvt_pk_bf16_f32 v{preg(P_, i)}, v{E(2 * i)}, v{E(2 * i + 1)}"
    if i == 0:
        return f"v_or3_b32 v{vOR}, v{preg(P_, 0)}, v{preg(P_, 1)}, v{preg(P_, 2)}"
    if i < 3:
        return f"v_or3_b32 v{vOR}, v{vOR}, v{preg(P_, 2 * i + 1)}, v{preg(P_, 2 * i + 2)}"
    return f"v_bitop3_b32 v{vOR}, v{vOR}, v{preg(P_, 7)}, s{sThr} bitop3:0xa8"


def sm_seq(toks, S_, P_):
    out, last_exp = [], None
    for t in toks:
        i = int(t[1:])
        if t[0] == "c" and last_exp in (2 * i, 2 * i + 1):
            out.append("s_nop 0")
        out.append(sm_ins(t, S_, P_))
        last_exp = i if t[0] == "e" else None
    return out


def rtok(t):
    if t[-1] in "ab":
        return int(t[1:-1]), ["ab".index(t[-1])]
    n = int(t[1:])
    return n, ([0] if n % 24 < 12 else [0, 1])


def wait_counts():
    ev = []
    for rep in range(3):
        for m, g in SEQ:
            if m[0] != "rs":
                ev.append(("m", 24 * rep + m[0]))
            for t in g:
                if t[0] == "R":
                    n, hs = rtok(t)
                    ev += [("r", 24 * rep + n)] * len(hs)
                elif t == "W":
                    ev.append(("w", rep))
    res = []
    for k, x in enumerate(ev):
        if x == ("w", 1):
            need = -1
            for y in ev[k + 1:]:
                if y[0] == "w":
                    break
                if y[0] == "m":
                    need = max(need, y[1])
            issued = [y[1] for y in ev[:k] if y[0] == "r"]
            assert issued == sorted(issued)
            assert issued.count(need) == (1 if need % 24 < 12 else 2)
            res.append(sum(1 for n in issued if n > need))
    return res


STUBS = []


def chk_site(e, par):
    n = len(STUBS)
    STUBS.append(par)
    e(f"s_cbranch_vccnz L_stub{n}")
    e(f"L_chkret{n}:")


def V_T1():
    return f"v_add_u32 v{vT1}, {VSLOT}, v{vAV}"


def V_T2():
    return f"v_add_u32 v{vT2}, {hex((VSLOT - VSLOT * NVSLOT) & 0xffffffff)}, v{vAV}"


def V_MIN():
    return f"v_min_u32 v{vAV}, v{vT1}, v{vT2}"


def K_SWAP():
    return f"v_swap_b32 v{vAK}, v{vAK2}"


def mask_ins(S_, i):
    return f"v_cndmask_b32 v{S_ + i}, v{S_ + i}, v{vOR}, s[{sMask0 + 2 * i}:{sMask0 + 2 * i + 1}]"


ABL = [""]


def shifted_seq(k):
    q = list(SEQ)
    i = [n for n, (m, g) in enumerate(q) if "bar" in g][0]
    x = q.pop(i)
    q.insert(i - k, x)
    return q


def emit_step(e0, par, mask=False, ver="", SEQ=None):
    SEQ = SEQ or globals()["SEQ"]

    def e(x):
        ab = ABL[0]
        if "rs" in ab and f"{vr(ONES, 4)}" in x:
            return
        if "exp" in ab and (x.startswith("v_exp") or x.startswith("v_cvt_pk") or x.startswith("v_or3") or x.startswith("v_bitop")):
            return
        if "kr" in ab and x.startswith("ds_read_b128"):
            return
        if "vr" in ab and x.startswith("ds_read_b64_tr"):
            return
        if "nw" in ab and x.startswith("s_waitcnt"):
            return
        if "nswap" in ab and x.startswith("v_swap"):
            return
        if "keep" not in ab and ab and x.startswith("s_cbranch_vccnz"):
            return
        if ("kr" in ab or "vr" in ab) and x.startswith("s_waitcnt"):
            x = "s_waitcnt lgkmcnt(8)"
        e0(x)
    extra = {}
    wc = wait_counts()
    for m, toks in SEQ:
        f, q = m
        e(mfma_rs(q, par) if f == "rs" else (mfma_qk(f, q, par) if f < 12 else mfma_pv(f - 12, q, frag(f), par)))
        for x in extra.pop(m, []):
            e(x)
        for tok in toks:
            if tok[0] == "R":
                n, hs = rtok(tok)
                ins = kread(n, par) if n < 12 else (vread_at(n - 12, frag(n)) if n < 24 else kread(n - 24, 1 - par))
                ins = [ins[h] for h in hs]
            elif tok == "W":
                ins = [f"s_waitcnt lgkmcnt({min(14, wc.pop(0))})"]
            elif tok == "cmp":
                ins = [f"v_cmp_ne_u32 vcc, 0, v{vOR}"]
            elif tok == "chk":
                chk_site(e, par)
                ins = []
            elif tok == "swapK":
                ins = [K_SWAP()] if par == 1 else []
            elif tok == "t1":
                ins = [V_T1()]
            elif tok == "t2":
                ins = [V_T2()]
            elif tok == "vmin":
                ins = [V_MIN()]
            elif tok == "bar":
                ins = ["s_barrier"]
            elif tok == "ssub":
                ins = [] if mask else [f"s_sub_u32 s{sEv}, s{sEv}, 1"]
            elif tok == "evt":
                if mask:
                    ins = []
                else:
                    ins = ["s_cbranch_scc1 L_ev1"] if par == 0 else [f"s_cbranch_scc0 L_step0{ver}"]
            elif is_sm(tok):
                nxt = tok.endswith("n")
                if nxt and mask:
                    continue
                ins = [sm_ins(tok[:-1] if nxt else tok, SB[1 - par] if nxt else SB[par], PB[1 - par] if nxt else PB[par])]
            else:
                raise ValueError(tok)
            for x in ins:
                e(x)
    assert not extra


class LQ:
    def __init__(self, e):
        self.e, self.q = e, []

    def op(self, ins, tag):
        self.e(ins)
        self.q.append(tag)

    def wait(self, tag):
        idx = [i for i, t in enumerate(self.q) if t == tag]
        if idx:
            n = len(self.q) - 1 - idx[-1]
            self.e(f"s_waitcnt lgkmcnt({min(n, 14)})")
            self.q = self.q[idx[-1] + 1:]


def bar_sw(e, cfg, k):
    if cfg.dsw:
        e(f"s_memtime s[{sStamp + 4 + 4 * k}:{sStamp + 5 + 4 * k}]")
    e("s_barrier")
    if cfg.dsw:
        e(f"s_memtime s[{sStamp + 6 + 4 * k}:{sStamp + 7 + 4 * k}]")
        e("s_waitcnt lgkmcnt(0)")


def sstamp(e, cfg, k):
    if cfg.dst:
        e(f"s_memtime s[{sStamp + 2 * k}:{sStamp + 2 * k + 1}]")


def stamp(e, cfg, base, i):
    if cfg.dst:
        return
    if cfg.dsw:
        if base == sStamp and i == 2:
            e(f"s_memtime s[{base + 2}:{base + 3}]")
            e("s_waitcnt lgkmcnt(0)")
        return
    if cfg.debug:
        e(f"s_memtime s[{base + 2 * i}:{base + 2 * i + 1}]")
        e("s_waitcnt lgkmcnt(0)")


def mask_words(r):
    kt, q, i = r >> 3, (r >> 2) & 1, r & 3
    m = 0
    for l in range(64):
        n, g = l & 15, l >> 4
        if 8 * i + g + 4 * kt > 8 * (n & 3) + (n >> 2) + 4 * q:
            m |= 1 << l
    return m & 0xffffffff, m >> 32


def emit_gate(e, sraw, st, v, sg, somg):
    e(f"s_lshl_b32 s{st}, s{sraw}, 16")
    e(f"s_and_b32 s{sraw}, s{sraw}, 0xffff0000")
    e(f"s_bitcmp1_b32 s{sHead}, 0")
    e(f"s_cselect_b32 s{st}, s{sraw}, s{st}")
    e(f"v_mov_b32 v{v}, s{st}")
    e(f"v_mul_f32 v{v}, {hex(LOG2E)}, v{v}")
    e(f"v_exp_f32 v{v}, -v{v}")
    e("s_nop 0")
    e(f"v_add_f32 v{v}, 1.0, v{v}")
    e(f"v_rcp_f32 v{v}, v{v}")
    e("s_nop 0")
    e(f"v_cvt_pk_bf16_f32 v{v}, v{v}, v{v}")
    e(f"v_lshlrev_b32 v{v}, 16, v{v}")
    if somg is not None:
        e(f"v_sub_f32 v{v}, 1.0, v{v}")
        e(f"v_cvt_pk_bf16_f32 v{v}, v{v}, v{v}")
        e(f"v_lshlrev_b32 v{v}, 16, v{v}")
    e("s_nop 0")
    e(f"v_readfirstlane_b32 s{sg if somg is None else somg}, v{v}")


def bf16_round(x):
    u = f2u(x)
    return ((u + 0x7fff + ((u >> 16) & 1)) >> 16) & 0xffff


def bf16_val(h):
    return struct.unpack("<f", struct.pack("<I", h << 16))[0]


C_EXACT = 192 ** -0.5 * math.log2(math.e)
C_HI = bf16_round(C_EXACT)
C_LO = bf16_round(C_EXACT - bf16_val(C_HI))


def q_frag_reads(e, op):
    e(f"v_min_u32 v{vT1}, v{vAK}, v{vAK2}")
    e(f"v_add_u32 v{vT1}, s{sRW}, v{vT1}")
    for q in range(2):
        for ks in range(6):
            op(f"ds_read_b128 {vr(Q0 + 24 * q + 4 * ks, 4)}, v{vT1} offset:{RB - KB + q * 4 * ROWB + ks * 64}")


def row_max(e, S_, a, b):
    for q, r in ((0, a), (1, b)):
        x = [S_ + 4 * q + i for i in range(4)] + [S_ + 8 + 4 * q + i for i in range(4)]
        e(f"v_max3_f32 v{r}, v{x[0]}, v{x[1]}, v{x[2]}")
        e(f"v_max3_f32 v{r}, v{r}, v{x[3]}, v{x[4]}")
        e(f"v_max3_f32 v{r}, v{r}, v{x[5]}, v{x[6]}")
        e(f"v_max_f32 v{r}, v{r}, v{x[7]}")
    e("s_nop 1")
    e(f"v_permlane32_swap_b32 v{a}, v{b}")
    e(f"v_max_f32 v{a}, v{a}, v{b}")
    e(f"v_mov_b32 v{b}, v{a}")
    e("s_nop 1")
    e(f"v_permlane16_swap_b32 v{a}, v{b}")
    e(f"v_max_f32 v{a}, v{a}, v{b}")
    e(f"v_mov_b32 v{b}, v{a}")
    e("s_nop 1")
    e(f"v_permlane32_swap_b32 v{a}, v{b}")


def scale_ins(regs, T):
    o = []
    for k, r in enumerate(regs):
        o.append(f"v_lshlrev_b32 v{T + 2 * k}, 16, v{r}")
        o.append(f"v_and_b32 v{T + 2 * k + 1}, s{sCMaskHi}, v{r}")
    for k, r in enumerate(regs):
        o.append(f"v_pk_mul_f32 {vr(T + 2 * k, 2)}, {vr(T + 2 * k, 2)}, s[{sCScale}:{sCScale + 1}]")
    for k, r in enumerate(regs):
        o.append(f"v_cvt_pk_bf16_f32 v{r}, v{T + 2 * k}, v{T + 2 * k + 1}")
    return o


def emit_last(e, cfg, par, end):
    lq = LQ(e)
    reg = 0 if end else ROFF
    for n in range(8):
        for x in vread_at(n, frag(n)):
            lq.op(x, ("v", n))
    if not end:
        e(f"v_mov_b32 v{vOR}, {hex(NINF)}")
        for i in range(16):
            e(mask_ins(SB[par], i))
    for x in sm_seq(([] if end else SM_FIRST) + SM_SECOND, SB[par], PB[par]):
        e(x)
    e(f"v_cmp_ne_u32 vcc, 0, v{vOR}")
    lq.wait(("v", 0))
    chk_site(e, par)
    t0, t1 = E0, E0 + 1
    pend = [f"v_cndmask_b32 v{t0}, v{LS}, v{LS + 4}, s[{sHiHalf}:{sHiHalf + 1}]"]
    if sparse_rs():
        pend = [f"v_add_f32 v{t0}, v{LS}, v{LS + 1}", f"v_add_f32 v{t1}, v{LS + 2}, v{LS + 3}",
                f"v_cndmask_b32 v{t0}, v{t0}, v{t1}, s[{sHiHalf}:{sHiHalf + 1}]"]
    pend += [
            f"v_rcp_f32 v{t0}, v{t0}",
            None,
            f"v_mul_f32 v{t0}, s{sCOmg}, v{t0}",
            f"v_cvt_pk_bf16_f32 v{vOR}, v{t0}, v{t0}",
            f"v_lshlrev_b32 v{t1}, 16, v{vOR}",
            f"v_sub_f32 v{t0}, v{t0}, v{t1}",
            f"v_cvt_pk_bf16_f32 v{t0}, v{t0}, v{t0}",
            f"v_cndmask_b32 v{vOR}, v{vOR}, v{t0}, s[{sOddRow}:{sOddRow + 1}]"]
    if not cfg.flo:
        pend = pend[:-4]
    writes = [f"ds_write_b32 v{vAL}, v{vOR} offset:{reg + 384}"]
    qrd = []
    if end:
        pend += writes
    else:
        q_frag_reads(qrd.append, qrd.append)
    epi = []
    for dt in range(12):
        for q in range(2):
            r = O0 + 8 * dt + 4 * q
            epi.append((dt, f"v_cvt_pk_bf16_f32 v{r}, v{r}, v{r + 1}"))
            epi.append((dt, f"v_cvt_pk_bf16_f32 v{r + 1}, v{r + 2}, v{r + 3}"))
            w = f"ds_write_b64 v{vAO}, {vr(r, 2)} offset:{reg + q * 4 * PADROW + dt * 32}"
            if end:
                epi.append((dt, w))
                if dt in cfg.endpub and q == 0:
                    epi.append((dt, "*"))
            else:
                writes.append(w)
    since = {}

    def tick():
        for b in since:
            since[b] += 1

    def out(x, dt=None):
        if x == "*":
            assert not pend
            lq.wait(("w", dt - 1))
            if cfg.dend and dt == 4:
                e("s_memtime s[14:15]")
            e("s_barrier")
            if cfg.dend and dt == 4:
                e("s_waitcnt lgkmcnt(0)")
        elif x.startswith("ds_"):
            lq.op(x, ("w", dt))
        else:
            e(x)
        tick()

    e(mfma_rs(0, par))
    if not sparse_rs():
        e(mfma_rs(1, par))
    since["rs"] = 0
    room_ = cfg.endroom if end else cfg.lastroom
    for dt in range(12):
        for q in range(2):
            e(mfma_pv(dt, q, frag(dt), par))
            tick()
            room = room_
            if q == 1:
                since[dt] = 0
                if dt + 1 < 12:
                    lq.wait(("v", dt + 1))
                if dt + 8 < 12:
                    for x in vread_at(dt + 8, frag(dt + 8)):
                        lq.op(x, ("v", dt + 8))
                        tick()
                    room -= 2
                if dt == cfg.lastbar and not end:
                    bar_sw(e, cfg, 0)
            while room > 0 and qrd:
                out(qrd.pop(0))
                room -= 1
            while room > 0 and pend and since["rs"] >= 8:
                x = pend.pop(0)
                if x is None:
                    break
                out(x)
                room -= 1
            if pend and pend[0] is None:
                pend.pop(0)
                continue
            nv = room_ - room
            while room > 0 and epi and since.get(epi[0][0], -1) >= 8:
                if cfg.wfirst and epi[0][1].startswith("ds_") and nv > 0:
                    break
                d, x = epi.pop(0)
                out(x, d)
                room -= 1
                nv += 1
    assert not pend and not qrd
    if cfg.wfirst and end:
        rest, epi, cur = epi, [], []
        for it in rest + [(None, "*")]:
            if it[1] == "*":
                epi += [x for x in cur if not x[1].startswith("ds_")] + [x for x in cur if x[1].startswith("ds_")]
                cur = []
                if it[0] is not None:
                    epi.append(it)
            else:
                cur.append(it)
    while epi:
        need = 8 - since[epi[0][0]]
        if need > 0:
            e(f"s_nop {need - 1}")
            for b in since:
                since[b] += need
        d, x = epi.pop(0)
        out(x, d)
    return writes


def emit_first(e, cfg, par):
    lq = LQ(e)
    S_, P_ = SB[1 - par], PB[1 - par]
    for f in range(8):
        lq.op(kread(f, par)[0], f)
    zero = [f"v_mov_b64 {vr(r, 2)}, 0" for r in list(range(O0, O0 + 96, 2)) + list(range(LS, LS + (4 if sparse_rs() else 8), 2))]
    for x in zero[:12]:
        e(x)
    zero = zero[12:]
    for f in range(12):
        if f in (0, 1, 3, 6, 9):
            lq.wait({0: 0, 1: 2, 3: 5, 6: 8, 9: 11}[f])
        for q in range(2):
            e(mfma_qk(f, q, par, "0"))
            room = 2
            if q == 1 and f + 8 < 12:
                lq.op(kread(f + 8, par)[0], f + 8)
                room -= 1
            for k in range(room):
                if zero:
                    e(zero.pop(0))
    assert not zero
    if par == 1:
        e(K_SWAP())
    def barprime():
        bar_sw(e, cfg, 3)
        for f in range(NPRIME):
            e(kread(f, 1 - par)[0])
    if cfg.firstbar == 0:
        barprime()
    else:
        e("s_nop 5")
    e(f"s_cmp_eq_u32 s{sEvId}, 0")
    e(f"s_cbranch_scc1 L_nomask{par}")
    e(f"v_mov_b32 v{vOR}, {hex(NINF)}")
    for i in range(16):
        e(mask_ins(S_, i))
    e(f"L_nomask{par}:")
    vT3, vT4 = E0 + 2, E0 + 3
    row_max(e, S_, vT1, vT3)
    if cfg.firstbar == 1:
        barprime()
    e(f"v_sub_f32 v{vT1}, {hex(f2u(-BIAS))}, v{vT1}")
    e(f"v_sub_f32 v{vT3}, {hex(f2u(-BIAS))}, v{vT3}")
    e(f"v_mov_b32 v{vT2}, v{vT1}")
    e(f"v_mov_b32 v{vT4}, v{vT3}")
    e(f"s_sub_u32 s{sEv}, s{sEv}, 1")
    for i in range(0, 16, 2):
        t = vT3 if (i >> 2) & 1 else vT1
        e(f"v_pk_add_f32 {vr(S_ + i, 2)}, {vr(S_ + i, 2)}, {vr(t, 2)}")
    for i in range(0, 8, 2):
        e(f"v_mov_b64 {vr(NM + i, 2)}, {vr(vT3 if i >= 4 else vT1, 2)}")
    if cfg.firstbar == 2:
        barprime()
    for x in sm_seq(SM_FIRST, S_, P_):
        e(x)
    if cfg.firstbar == 3:
        barprime()
    e(f"s_waitcnt lgkmcnt({NPRIME - NFIRSTW})")
    if cfg.dsw:
        e(f"s_memtime s[{sStamp + 20}:{sStamp + 21}]")
        e("s_waitcnt lgkmcnt(0)")
    e(f"s_cbranch_scc1 L_ev{1 - par}")
    if cfg.dual is not None:
        e(f"s_bitcmp1_b32 s{sW}, {cfg.dual}")
        e(f"s_cbranch_scc1 L_step{1 - par}b")
    e(f"s_branch L_step{1 - par}")


WARMD = 100


NPR = [0]


def set_prio(e, cfg):
    e("s_setprio 2")
    if cfg.wprio is not None:
        NPR[0] += 1
        e(f"s_bitcmp1_b32 s{sW}, {cfg.wprio}")
        e(f"s_cbranch_scc1 L_pr{NPR[0]}")
        e("s_setprio 1")
        e(f"L_pr{NPR[0]}:")


def emit_compute(e, cfg, inject=None):
    e("L_compute:")
    set_prio(e, cfg)
    sstamp(e, cfg, 0)
    if cfg.probe:
        e("s_memrealtime s[12:13]")
    stamp(e, cfg, sStamp, 0)
    if cfg.debug and not cfg.dsw:
        e(f"s_memrealtime s[{sStamp + 14}:{sStamp + 15}]")
    L, A, B_, C_ = 60, 61, 62, 63
    e(f"v_and_b32 v{L}, 63, v0")
    e(f"v_lshrrev_b32 v{A}, 3, v{L}")
    e(f"v_and_b32 v{B_}, 7, v{L}")
    e(f"v_mul_u32_u24 v65, {ROWB}, v{A}")
    e(f"v_lshl_add_u32 v64, v{B_}, 4, v65")
    e(f"s_add_u32 s60, s{sN}, s{sW}")
    e(f"s_sub_u32 s{sEv}, s60, 1")
    e(f"s_mul_i32 s60, s60, {BLKB}")
    e(f"s_add_u32 s61, s60, {16 * ROWB}")
    e(f"s_mul_i32 s62, s{sHead}, {HEADB}")
    e(f"s_mov_b32 s{SRD_Q + 2}, {HEADB}")
    e(f"s_mov_b32 s{SRD_Q + 3}, 0x20000")
    e("s_waitcnt lgkmcnt(0)")
    sstamp(e, cfg, 1)
    e(f"s_add_u32 s{SRD_Q}, s36, s62")
    e(f"s_addc_u32 s{SRD_Q + 1}, s37, 0")
    e(f"s_lshr_b32 s62, s{sHead}, 1")
    e(f"s_lshl_b32 s62, s62, 2")
    e(f"s_load_dword s63, s[48:49], s62")
    e(f"s_lshr_b32 s{sEvId}, s{sHead}, 3")
    for j in range(12):
        i, a = divmod(j, 3)
        if cfg.qrr and j % 3 == 0:
            e(f"s_setprio {3 - j // 3}")
        for (jj, cls, w) in cfg.stag:
            if jj == j:
                e(f"s_cmp_lt_u32 s{sEvId}, {cls}")
                e(f"s_cbranch_scc1 L_stag{jj}_{cls}")
                e(f"s_waitcnt {w}")
                e(f"L_stag{jj}_{cls}:")
        e(f"buffer_load_dwordx4 {vr(4 * j, 4)}, v64, s[{SRD_Q}:{SRD_Q + 3}], s{60 + (i >> 1)} offen "
          f"offset:{(i & 1) * 3072 + a * 128} {cfg.nt_q}")
    if cfg.qrr:
        e("s_setprio 2")
    sstamp(e, cfg, 2)
    if inject:
        e("s_branch L_comp2")
        inject()
        e("L_comp2:")
    if cfg.qfirst:
        e("s_barrier")
    e(f"s_mul_i32 s{sRW}, s{sW}, {RBLK}")
    e(f"v_add_u32 v65, s{sRW}, v64")
    e(f"v_add_u32 v65, {RB}, v65")
    e(f"v_and_b32 v{A}, 3, v{L}")
    e(f"v_bfe_u32 v{B_}, v{L}, 2, 2")
    e(f"v_lshrrev_b32 v{C_}, 4, v{L}")
    e(f"v_mul_u32_u24 v66, {KRG}, v{A}")
    e(f"v_mul_u32_u24 v67, {ROWB}, v{B_}")
    e(f"v_add_u32 v66, v66, v67")
    e(f"v_lshl_add_u32 v66, v{C_}, 4, v66")
    e(f"v_add_u32 v{vAK2}, {KB}, v66")
    e(f"v_add_u32 v{vAK}, {KB + KSLOT}, v66")
    e(f"v_mul_u32_u24 v66, {KRG}, v{B_}")
    e(f"v_mul_u32_u24 v67, {ROWB}, v{C_}")
    e(f"v_add_u32 v66, v66, v67")
    e(f"v_lshl_add_u32 v{vAV}, v{A}, 3, v66")
    e(f"v_mul_u32_u24 v66, 3200, v{A}")
    e(f"v_lshrrev_b32 v67, 1, v{A}")
    e(f"v_lshl_add_u32 v66, v67, 6, v66")
    e(f"v_mul_u32_u24 v67, {PADROW}, v{B_}")
    e(f"v_add3_u32 v66, v66, v67, s{sRW}")
    e(f"v_add_u32 v66, {EB}, v66")
    e(f"v_and_b32 v67, 1, v{A}")
    e(f"v_xor_b32 v67, v67, v{C_}")
    e(f"v_lshl_add_u32 v{vAO}, v67, 3, v66")
    e(f"v_and_b32 v67, 1, v{C_}")
    e(f"v_lshl_add_u32 v66, v67, 2, v66")
    e(f"v_lshrrev_b32 v67, 1, v{C_}")
    e(f"v_mul_u32_u24 v67, {4 * PADROW}, v67")
    e(f"v_add_u32 v{vAL}, v66, v67")
    for i in range(4):
        e(f"v_mov_b32 v{ONES + i}, 0x3f803f80")
    if sparse_rs():
        e(f"v_bfe_i32 v66, v{L}, 1, 1")
        e(f"v_bfe_i32 v67, v{L}, 5, 1")
        e(f"v_xor_b32 v66, v66, v67")
        for i in range(4):
            e(f"v_bfi_b32 v{ONES + i}, v66, 0, v{ONES + i}")
        e(f"v_bfe_i32 v66, v{L}, 0, 1")
        e(f"v_and_b32 v66, 0xaaaaaaaa, v66")
        e(f"v_or_b32 v{vIDX}, 0x44444444, v66")
    for i in range(16):
        lo, hi = mask_words(i)
        e(f"s_mov_b32 s{sMask0 + 2 * i}, {hex(lo)}")
        e(f"s_mov_b32 s{sMask0 + 2 * i + 1}, {hex(hi)}")
    e(f"s_mov_b32 s{sHiHalf}, 0")
    e(f"s_mov_b32 s{sHiHalf + 1}, -1")
    e(f"s_mov_b32 s{sOddRow}, 0xffff0000")
    e(f"s_mov_b32 s{sOddRow + 1}, 0xffff0000")
    e(f"s_mov_b32 s{sEvId}, 0")
    e(f"s_mov_b32 s{sThr}, 0x40004000")
    e(f"s_mov_b32 s{sCScale}, {hex(CSCALE)}")
    e(f"s_mov_b32 s{sCScale + 1}, {hex(CSCALE)}")
    e(f"s_mov_b32 s{sCMaskHi}, 0xffff0000")
    e("s_waitcnt lgkmcnt(0)")
    emit_gate(e, 63, 62, 48, None, sCOmg)
    for j in range(12):
        i, a = divmod(j, 3)
        if j == 0:
            sstamp(e, cfg, 3)
        e(f"s_waitcnt vmcnt({11 - j})")
        if j in (0, 4, 8, 11):
            sstamp(e, cfg, {0: 4, 4: 5, 8: 6, 11: 7}[j])
        for x in scale_ins(range(4 * j, 4 * j + 4), 48):
            e(x)
        e(f"ds_write_b128 v65, {vr(4 * j, 4)} offset:{i * KRG + a * 128}")
    q_frag_reads(e, e)
    e("s_waitcnt lgkmcnt(0)")
    sstamp(e, cfg, 8)
    stamp(e, cfg, sStamp, 9)
    e("s_barrier")
    sstamp(e, cfg, 9)
    if cfg.dst:
        e("s_waitcnt lgkmcnt(0)")
    stamp(e, cfg, sStamp, 1)
    if cfg.probe:
        e("s_memrealtime s[14:15]")
        e("s_memtime s[20:21]")
        e("s_waitcnt lgkmcnt(0)")
    e("L_first1:")
    emit_first(e, cfg, 1)

    if cfg.dual is not None:
        e(".p2align 6")
        for par in (0, 1):
            e(f"L_step{par}b:")
            emit_step(e, par, ver="b", SEQ=shifted_seq(cfg.dualk))
        e("s_branch L_ev0")
    e(".p2align 6")
    e("L_step0:")
    emit_step(e, 0)
    e("L_step1:")
    emit_step(e, 1)

    extra_ = set()
    for mpar in (0, 1):
        e(f"L_ev{mpar}:")
        if mpar == 1:
            e(f"s_cmp_eq_u32 s{sEvId}, 0")
            e("s_cbranch_scc0 L_end")
        emit_step(e, mpar, mask=True)
        par = 1 - mpar
        stamp(e, cfg, sStamp, 2)
        writes = emit_last(e, cfg, par, False)
        e("s_setprio 0")
        work = [f"v_add_u32 v{vT1}, {4 * VSLOT}, v{vAV}", f"v_subrev_u32 v{vT2}, {VSLOT}, v{vAV}", V_MIN()]
        if par == 0:
            work.append(K_SWAP())
        CH, CL, M = F0, F0 + 2, F0 + 4
        work += [f"v_mbcnt_lo_u32_b32 v{M + 1}, -1, 0",
                 f"v_mbcnt_hi_u32_b32 v{M + 1}, -1, v{M + 1}",
                 f"v_and_b32 v{M}, 1, v{M + 1}",
                 f"v_lshlrev_b32 v{M}, 4, v{M}",
                 f"v_bfe_i32 v{M + 1}, v{M + 1}, 1, 1",
                 f"s_mov_b32 s60, {hex(C_HI)}",
                 f"s_mov_b32 s61, {hex(C_LO)}",
                 f"v_lshlrev_b32 v{CH + 1}, v{M}, s60",
                 f"v_lshlrev_b32 v{CL + 1}, v{M}, s61",
                 f"v_bfi_b32 v{CH}, v{M + 1}, 0, v{CH + 1}",
                 f"v_bfi_b32 v{CL}, v{M + 1}, 0, v{CL + 1}",
                 f"v_and_b32 v{CH + 1}, v{M + 1}, v{CH + 1}",
                 f"v_and_b32 v{CL + 1}, v{M + 1}, v{CL + 1}"]
        work += [f"s_add_u32 s60, s{sN}, s{sW}", f"s_sub_u32 s{sEv}, 63, s60", f"s_mov_b32 s{sEvId}, 2"]
        D = lambda k: F0 + 8 + 4 * (k % 6)
        for k in range(24 + 4):
            if k < 24:
                work.append(f"v_mfma_f32_4x4x4_16b_bf16 {vr(D(k), 4)}, {vr(CH, 2)}, {vr(Q0 + 2 * k, 2)}, 0")
            if k >= 4:
                work.append(f"v_cvt_pk_bf16_f32 v{Q0 + 2 * (k - 4)}, v{D(k - 4)}, v{D(k - 4) + 1}")
            elif k > 0:
                work.append("s_nop 0")
            if 1 <= k < 25:
                work.append(f"v_mfma_f32_4x4x4_16b_bf16 {vr(D(k - 1), 4)}, {vr(CL, 2)}, {vr(Q0 + 2 * (k - 1), 2)}, {vr(D(k - 1), 4)}")
            if k >= 4:
                work.append(f"v_cvt_pk_bf16_f32 v{Q0 + 2 * (k - 4) + 1}, v{D(k - 4) + 2}, v{D(k - 4) + 3}")
        n1, w1, n2 = cfg.swplan
        for x in work[:n1]:
            if "v_mfma" in x and "q" not in extra_:
                e("s_waitcnt lgkmcnt(0)")
                extra_.add("q")
            e(x)
        e("s_waitcnt lgkmcnt(0)")
        extra_.discard("q")
        for x in writes[:w1]:
            e(x)
        stamp(e, cfg, sStamp, 3)
        bar_sw(e, cfg, 1)
        for x in work[n1:n2]:
            e(x)
        for x in writes[w1:]:
            e(x)
        e("s_waitcnt lgkmcnt(0)")
        stamp(e, cfg, sStamp, 4)
        bar_sw(e, cfg, 2)
        for x in work[n2:]:
            e(x)
        set_prio(e, cfg)
        if par == 0:
            e("s_branch L_first1")
        else:
            emit_first(e, cfg, 0)

    e("L_end:")
    stamp(e, cfg, sStamp, 5)
    if cfg.probe:
        e("s_memrealtime s[16:17]")
        e("s_memtime s[22:23]")
        e("s_waitcnt lgkmcnt(0)")
    if cfg.dend:
        e("s_memtime s[12:13]")
        e("s_waitcnt lgkmcnt(0)")
    emit_last(e, cfg, 1, True)
    e("s_waitcnt lgkmcnt(0)")
    if cfg.dend:
        e("s_memtime s[16:17]")
    e("s_barrier")
    if cfg.dend:
        e("s_waitcnt lgkmcnt(0)")
        emit_dump(e, 12, 3)
    stamp(e, cfg, sStamp, 6)
    if cfg.probe:
        e("s_load_dwordx2 s[4:5], s[0:1], 72")
        e("s_mov_b32 s6, 0x100000")
        e("s_mov_b32 s7, 0x20000")
        e("s_sub_u32 s22, s22, s20")
        e("s_lshl_b32 s60, s2, 5")
        e("v_mov_b32 v0, s12\nv_mov_b32 v1, s14\nv_mov_b32 v2, s16\nv_mov_b32 v3, s22\nv_mov_b32 v4, 0")
        e("s_waitcnt lgkmcnt(0)")
        e("buffer_store_dwordx3 v[0:2], v4, s[4:7], s60 offen" if cfg.pseg else "buffer_store_dwordx4 v[0:3], v4, s[4:7], s60 offen")
    if cfg.probe == 1:
        e("s_getreg_b32 s61, hwreg(HW_REG_XCC_ID)")
        e("s_getreg_b32 s62, hwreg(HW_REG_HW_ID)")
        e("s_lshl_b32 s60, s2, 3")
        e("s_add_u32 s60, s60, 0x10000")
        e("v_mov_b32 v6, s61\nv_mov_b32 v7, s62")
        e("buffer_store_dwordx2 v[6:7], v4, s[4:7], s60 offen")
    if cfg.dsw or cfg.dst:
        emit_dump(e, sStamp, 11)
    elif cfg.debug:
        e(f"s_memrealtime s[{sStamp + 16}:{sStamp + 17}]")
        e("s_waitcnt lgkmcnt(0)")
        emit_dump(e, sStamp, 10)
    e("s_endpgm")

    for n, par in enumerate(STUBS):
        e(f"L_stub{n}:")
        e(f"s_call_b64 s[{sFbLink}:{sFbLink + 1}], L_fb{par}")
        e(f"s_branch L_chkret{n}")
    for par in (0, 1):
        Sc, Sn, Pc = SB[par], SB[1 - par], PB[par]
        d0, d1, t0, t1 = E0, E0 + 1, E0 + 2, E0 + 3
        e(f"L_fb{par}:")
        row_max(e, Sc, d0, d1)
        for d in (d0, d1):
            e(f"v_add_f32 v{d}, {hex(f2u(BIAS))}, v{d}")
        for d in (d0, d1):
            e(f"v_max_f32 v{d}, 0, v{d}")
        e(f"v_exp_f32 v{t0}, -v{d0}")
        e(f"v_exp_f32 v{t1}, -v{d1}")
        e("s_nop 0")
        for r in list(range(O0, O0 + 96)) + ([] if sparse_rs() else list(range(LS, LS + 8))):
            e(f"v_mul_f32 v{r}, v{r}, v{t1 if (r >> 2) & 1 else t0}")
        for r in range(4 if sparse_rs() else 0):
            e(f"v_mul_f32 v{LS + r}, v{LS + r}, v{t1 if r >= 2 else t0}")
        for r in list(range(Sc, Sc + 16)) + list(range(Sn, Sn + 16)) + list(range(NM, NM + 8)):
            e(f"v_sub_f32 v{r}, v{r}, v{d1 if (r >> 2) & 1 else d0}")
        for k in range(8):
            e(f"v_exp_f32 v{t0}, v{Sc + 2 * k}")
            e(f"v_exp_f32 v{t1}, v{Sc + 2 * k + 1}")
            e("s_nop 0")
            e(f"v_cvt_pk_bf16_f32 v{preg(Pc, k)}, v{t0}, v{t1}")
        e(f"s_setpc_b64 s[{sFbLink}:{sFbLink + 1}]")


def emit_dump(e, base, n):
    e("s_load_dwordx2 s[4:5], s[0:1], 72")
    e("s_mov_b32 s6, 0x100000")
    e("s_mov_b32 s7, 0x20000")
    e(f"s_lshl_b32 s60, s2, 3")
    e(f"s_add_u32 s60, s60, s{sW}")
    e(f"s_lshl_b32 s60, s60, 7")
    e("v_mov_b32 v1, s60")
    e("s_waitcnt lgkmcnt(0)")
    for i in range(n):
        e(f"v_mov_b32 v2, s{base + 2 * i}")
        e(f"buffer_store_dword v2, v1, s[4:7], 0 offen offset:{4 * i}")
        e("s_waitcnt vmcnt(0)")


hM1, hG, hRw, hLc, hI0, hI1, hPf, hLa = 0, 1, 2, 3, 4, 5, 6, 7
hT = 8
hPfD = 16
hCo0 = 18
hCB = 20
hIDX = 32
hC = 40
hX = 48
hLin, hM0 = 56, 57
hCv = 58
hL = 62
hRG = 64
hCo = [hCo0, hL]
M4 = "v_mfma_f32_4x4x4_16b_bf16"
hTLr = hI1


def slot_reg(R, sl, k):
    return R + 8 * (k >> 2) + 4 * sl + (k & 3)


def region(n):
    return hRG + 24 * n


def cost(x):
    if isinstance(x, tuple):
        return 150 if x[0] == "site" else 0
    if "v_mfma" in x:
        return 60
    op = x.split()[0]
    if op.startswith("v_fmac") or op.startswith("v_mad") or op.startswith("v_fma") or op.startswith("v_lshl_"):
        return 16
    if op in ("v_exp_f32", "v_rcp_f32"):
        return 18
    if op.startswith("v_"):
        return 10
    if op.startswith("ds_"):
        return 20
    return 5


class Helper:
    def __init__(self, e, cfg):
        self.e = e
        self.cfg = cfg
        self.vm = []
        self.nsite = 0
        self.steady = False
        self.nearly, self.ool = 0, []

    def vmem(self, ins, tag, weight=1):
        w = self.cfg.win
        if w and self.steady and len(self.vm) >= w:
            self.e(f"s_waitcnt vmcnt({w - 1})")
            self.vm = self.vm[-(w - 1):]
        self.e(ins)
        self.vm.append((tag, weight))
        assert len(self.vm) <= 56, len(self.vm)

    def wait(self, tag):
        idx = [i for i, t in enumerate(self.vm) if t[0] == tag]
        if not idx:
            return
        last = idx[-1]
        n = sum(w for _, w in self.vm[last + 1:])
        self.e(f"s_waitcnt vmcnt({n})")
        self.vm = self.vm[last + 1:]

    def early_point(self):
        tlate, first, stride = self.cfg.elastic
        ls = self.cur_ls
        self.kitem += 1
        k = self.kitem - 1
        if k < first or (k - first) % stride or any(it[2] == ("dma", ls - 3) for it in self.rest):
            return
        idx = [i for i, t in enumerate(self.vm) if t[0] == ("dma", ls - 3)]
        self.nearly += 1
        n = self.nearly
        self.e(f"s_memtime s[{sNow}:{sNow + 1}]")
        self.e("s_waitcnt lgkmcnt(0)")
        self.e(f"s_sub_u32 s{sNow}, s{sNow}, s{sBar}")
        self.e(f"s_cmp_ge_u32 s{sNow}, s{sEl}")
        self.e(f"s_cbranch_scc1 L_early{n}")
        self.e(f"L_eback{n}:")
        wait = [f"s_waitcnt vmcnt({len(self.vm) - 1 - idx[-1]})"] if idx else []
        self.ool += [f"L_early{n}:"] + wait + ["s_barrier", f"s_memtime s[{sBar}:{sBar + 1}]",
                                               f"s_mov_b32 s{sEl}, -1", f"s_branch L_eback{n}"]
        self.used_early = True

    def put(self, item, weight=1):
        pre, ins, tag, suf = item
        if ins is None:
            return
        if self.cfg.elastic and self.steady:
            self.early_point()
            self.rest = self.rest[1:]
        for x in pre:
            self.e(x)
        if isinstance(ins, list):
            for y in ins:
                self.vmem(y, tag, 0)
        else:
            self.vmem(ins, tag, weight)
        for x in suf:
            self.e(x)

    def dma3(self, srd, so, m0src, pre, tag, fl):
        items = []
        for j in range(3):
            p = []
            if j == 0:
                p = [m0src] + (pre if pre else ["s_nop 0"])
            items.append((p, f"buffer_load_dwordx4 v{hLin}, s[{srd}:{srd + 3}], s{so} offen offset:{j * 1024} {fl} lds", tag, []))
        return items

    def group(self, g):
        pos = g + 5
        pre = [f"s_mov_b32 s{sVoff}, s{sKoff}", f"s_add_u32 s{sKoff}, s{sKoff}, s{sDir}"]
        if self.cfg.rot and 0 < pos < 32 and pos % 4 == 0:
            pre += [f"s_cmp_ge_u32 s{sKoff}, {32 * BLKB}", f"s_cselect_b32 s{sKoff}, s{sHoff}, s{sKoff}"]
        if self.cfg.rot and pos == 32:
            pre += [f"s_add_u32 s{sKoff}, s{sHoff}, {32 * BLKB}"]
        if pos >= 36 and pos % 4 == 0:
            pre += [f"s_cmp_eq_u32 s{sN}, {pos - 4}",
                    f"s_cselect_b32 s{sKoff}, s{sA0}, s{sKoff}",
                    f"s_cselect_b32 s{sDir}, {hex((-BLKB) & 0xffffffff)}, s{sDir}"]
        tag = ("dma", g)
        mk = f"s_add_u32 m0, s{sHl}, {KB + ((pos + 3) % 4) * KBLK}"
        mv = f"s_add_u32 m0, s{sHl}, {((pos - 1) % NVSLOT) * VSLOT}"
        if pos == 0:
            return self.dma3(SRD_K, sKoff, mk, None, tag, self.cfg.nt_kv)
        if pos == 68:
            return self.dma3(SRD_V, sKoff, mv, None, tag, self.cfg.nt_kv)
        return (self.dma3(SRD_K, sKoff, mk, pre, tag, self.cfg.nt_kv)
                + self.dma3(SRD_V, sVoff, mv, None, tag, self.cfg.nt_kv))

    def pf_item(self):
        self.npf = getattr(self, "npf", 0) + 1
        fl = self.cfg.nt_pf if 4 * (self.npf - 1) >= self.cfg.nt_pf_from else ""
        if self.cfg.pfx2:
            ins = f"buffer_load_dwordx2 {vr(hPfD, 2)}, v{hPf}, s[{SRD_PF}:{SRD_PF + 3}], 0 offen offset:60 {fl}"
        else:
            ins = f"buffer_load_dword v{hPfD}, v{hPf}, s[{SRD_PF}:{SRD_PF + 3}], 0 offen {fl}"
        if self.cfg.pf2 is not None and fl:
            ins = [ins, ins.replace(fl, self.cfg.pf2)]
        k = self.npf
        if self.cfg.rot and k < 8:
            return ([], ins, ("pf",), [f"s_cmp_eq_u32 s{sRot}, {8 - k}",
                                       f"s_mov_b32 s{sT1}, {4 * BLKB}",
                                       f"s_cselect_b32 s{sT1}, {hex((-28 * BLKB) & 0xffffffff)}, s{sT1}",
                                       f"v_add_u32 v{hPf}, s{sT1}, v{hPf}"])
        if self.cfg.rot and k == 8:
            return ([], ins, ("pf",), [f"s_add_u32 s{sT1}, s{sRot}, 7", f"s_and_b32 s{sT1}, s{sT1}, 7",
                                       f"s_sub_u32 s{sT1}, 8, s{sT1}", f"s_mul_i32 s{sT1}, s{sT1}, {4 * BLKB}",
                                       f"v_add_u32 v{hPf}, s{sT1}, v{hPf}"])
        return ([], ins, ("pf",), [f"v_add_u32 v{hPf}, {4 * BLKB}, v{hPf}"])

    def q_items(self, i):
        fl = self.cfg.nt_q if self.cfg.nt_qa is None else self.cfg.nt_qa
        if self.cfg.qcont:
            return self.dma3(SRD_Q, sT2, f"s_add_u32 m0, s{sHl}, {RB + i * RBLK}",
                             [f"s_sub_u32 s{sT2}, s{sA0}, {i * BLKB}"], ("qa", i), fl)
        return self.dma3(SRD_Q, sT2, f"s_add_u32 m0, s{sQl}, {i * KRG}",
                         [f"s_add_u32 s{sT2}, s{sRowA}, {i * 3072}"], ("qa", i), fl)

    def q_reads(self, tile, i, q):
        return ([("wait", ("qa", i))] if tile else []) + [
            f"ds_read_b128 {vr(q + 4 * a, 4)}, v{hRw} offset:{ROFF + i * KRG + a * 128}" for a in range(3)]

    def job_items(self, job):
        kind, tile, i = job
        srd = SRD_MK if kind == "s" else SRD_MV
        tag = ("job", job)
        items = []
        p = hIDX + 4 * tile + i
        R = region(4 * tile + i)
        for sl in range(2):
            for a in range(3):
                pre = []
                if a == 0:
                    pre = [f"v_and_b32 v{hI0}, 0xffff, v{p}" if sl == 0 else f"v_lshrrev_b32 v{hI0}, 16, v{p}",
                           f"v_mad_u32_u24 v{hI0}, v{hI0}, s{s384}, v{hLc}"]
                items.append((pre, f"buffer_load_dwordx4 {vr(R + 8 * a + 4 * sl, 4)}, v{hI0}, s[{srd}:{srd + 3}], 0 offen "
                              f"offset:{a * 128} {self.cfg.nt_g}", tag, []))
        return items

    def job_ops(self, job, qbuf=None):
        kind, tile, i = job
        R = region(4 * tile + i)
        cp = hC + 4 * tile + i
        o = [("wait", ("job", job))]
        dp = " row_mask:0xf bank_mask:0xf"
        pr = self.cfg.m4prio
        if kind == "s":
            q = hCB if qbuf is None else qbuf
            if qbuf is None:
                o = self.q_reads(tile, i, q) + o
            D = [[hT, hT + 4], [hX, hX + 4]]
            o.append("s_waitcnt lgkmcnt(0)")
            b = [f"s_setprio {pr}"]
            for n in range(6):
                for sl in range(2):
                    d = D[sl][n & 1]
                    if n == 5:
                        pass
                    c = "0" if n < 2 else vr(d, 4)
                    b.append(f"{M4} {vr(d, 4)}, {vr(q + 2 * n, 2)}, {vr(slot_reg(R, sl, 2 * n), 2)}, {c}")
            b.append("s_setprio 0")
            o.append("\n".join(b))
            s0, s1, m = R, R + 1, R + 2
            o.append("s_nop 1")
            for par in range(2):
                for u in range(4):
                    for sl, s_ in ((0, s0), (1, s1)):
                        if par == 0 and u == 0:
                            o.append(f"v_mov_b32_dpp v{s_}, v{D[sl][0]} quad_perm:[0,0,0,0]{dp}")
                        else:
                            o.append(f"v_add_f32_dpp v{s_}, v{D[sl][par] + u}, v{s_} quad_perm:[{u},{u},{u},{u}]{dp}")
            o.append("|")
            o.append(f"v_add_f32_dpp v{s0}, v{s0}, v{s0} row_half_mirror{dp}")
            o.append(f"v_add_f32_dpp v{s1}, v{s1}, v{s1} row_half_mirror{dp}")
            o += [f"v_max_f32 v{m}, v{s0}, v{s1}",
                  f"v_sub_f32 v{s0}, v{s0}, v{m}",
                  f"v_sub_f32 v{s1}, v{s1}, v{m}"]
            if tile == 1:
                o += [f"v_mul_f32 v{s0}, s{sScale}, v{s0}", f"v_mul_f32 v{s1}, s{sScale}, v{s1}"]
            o += [f"v_exp_f32 v{s0}, v{s0}",
                  f"v_exp_f32 v{s1}, v{s1}",
                  "s_nop 0",
                  f"v_add_f32 v{m}, v{s0}, v{s1}",
                  f"v_rcp_f32 v{m}, v{m}",
                  "s_nop 0",
                  f"v_mul_f32 v{m}, s{sG}, v{m}",
                  f"v_mul_f32 v{s0}, v{s0}, v{m}",
                  f"v_mul_f32 v{s1}, v{s1}, v{m}",
                  f"v_cvt_pk_bf16_f32 v{cp}, v{s0}, v{s1}"]
            if self.cfg.ab_coarse:
                o.append(f"v_and_b32 v{cp}, {hex(self.cfg.ab_coarse)}, v{cp}")
        else:
            o = [f"v_perm_b32 v{hCv + 1}, v{cp}, v{cp}, s{sSelLo}",
                 f"v_perm_b32 v{hCv + 3}, v{cp}, v{cp}, s{sSelHi}",
                 f"v_and_b32 v{hCv}, v{hM0}, v{hCv + 1}",
                 f"v_and_b32 v{hCv + 1}, v{hM1}, v{hCv + 1}",
                 f"v_and_b32 v{hCv + 2}, v{hM0}, v{hCv + 3}",
                 f"v_and_b32 v{hCv + 3}, v{hM1}, v{hCv + 3}"] + o
            T = [hT, hT + 4, hX, hX + 4]
            A = lambda k: f"{M4} {vr(T[k % 4], 4)}, {vr(hCv, 2)}, {vr(R + 8 * (k >> 1) + 2 * (k & 1), 2)}, 0"
            B = lambda k: (f"{M4} {vr(R + 4 * k, 4)}, {vr(hCv + 2, 2)}, {vr(R + 8 * (k >> 1) + 4 + 2 * (k & 1), 2)}, "
                           f"{vr(T[k % 4], 4)}")
            o.append("\n".join(["s_nop 0", f"s_setprio {pr}", A(0), A(1), A(2), A(3), B(0), B(1), A(4), A(5),
                                 B(2), B(3), B(4), B(5), "s_setprio 0"]))
        return o

    def run_op(self, x):
        if self.cfg.ab_noburst and isinstance(x, str) and "v_mfma" in x:
            return
        if isinstance(x, tuple):
            if x[0] == "wait":
                self.wait(x[1])
            else:
                self.combine_site(x[1])
        else:
            self.e(x)

    def interleave(self, items, ops, start=0.0):
        tot = sum(cost(x) for x in ops)
        n = len(items)
        pos = [tot * (start + (1 - start) * k / max(n, 1)) for k in range(n)]
        if self.cfg.vfirst:
            pos = [0.0] * n
        acc, k = 0.0, 0
        for x in ops:
            while k < n and acc >= pos[k] - 1e-9:
                self.put(items[k])
                k += 1
            self.run_op(x)
            acc += cost(x)
        while k < n:
            self.put(items[k])
            k += 1

    def coef_ins(self, lp, co):
        return [f"v_and_b32 v{co[0]}, v{hM0}, v{lp}",
                f"v_and_b32 v{co[0] + 1}, v{hM1}, v{lp}",
                f"v_and_b32 v{co[1]}, v{hM0}, v{lp + 1}",
                f"v_and_b32 v{co[1] + 1}, v{hM1}, v{lp + 1}"][:4 if self.cfg.flo else 2]

    def comb_mfma1(self, tile, i, k, ob, co, u):
        R = region(4 * tile + i)
        return (f"v_mfma_f32_4x4x4_16b_bf16 {vr(R + 4 * k, 4)}, {vr(co[u], 2)}, {vr(ob + 2 * (k ^ (i & 1)), 2)}, "
                f"{vr(R + 4 * k, 4)}")

    def comb_mfma(self, tile, i, ob, co):
        return [self.comb_mfma1(tile, i, k, ob, co, u) for u in range(2 if self.cfg.flo else 1) for k in range(6)]

    def comb_out(self, tile, i, cols=(0, 1, 2)):
        R = region(4 * tile + i)
        so = ([sRowB, sRowA][tile]) if i < 2 else ([sRowB2, sRowA2][tile])
        o = []
        for a in cols:
            P = R + 8 * a
            for k in range(4):
                o.append(f"v_cvt_pk_bf16_f32 v{P + k}, v{P + 2 * k}, v{P + 2 * k + 1}")
            o.append(f"buffer_store_dwordx4 {vr(P, 4)}, v{hG}, s[{SRD_OUT}:{SRD_OUT + 3}], s{so} offen "
                     f"offset:{(i & 1) * 3072 + a * 128} "
                     f"{self.cfg.nt_outB if tile == 0 and self.cfg.nt_outB is not None else self.cfg.nt_out}")
        return o

    def combine_state(self, st):
        e = self.e
        e(f"s_mov_b32 s{sDone}, {st + 1}")
        if st % 2 == 1:
            e("s_waitcnt lgkmcnt(0)")
            for x in self.coef_ins(hL, hCo):
                e(x)
            e("s_nop 0")
            e("s_setprio 3")
            for x in self.comb_mfma(0, st // 2, hCB, hCo):
                e(x)
            e("s_setprio 0")
        nx = (st + 1) // 2
        if (st == 0 or st % 2 == 1) and nx < 4:
            for a in range(3):
                e(f"ds_read_b128 {vr(hCB + 4 * a, 4)}, v{hRw} offset:{ROFF + orow(nx) + a * 128}")
            e(f"ds_read_b64 {vr(hL, 2)}, v{hLa} offset:{ROFF + orow(nx) + 384}")
        if st > 0 and st % 2 == 0:
            for x in self.comb_out(0, st // 2 - 1):
                e(x)

    def combine_site(self, lstep):
        e = self.e
        self.nsite += 1
        label = f"L_cs{self.nsite}"
        if lstep is not None:
            e(f"s_cmp_gt_u32 s{sC0}, {lstep}")
            e(f"s_cbranch_scc1 {label}")
        e(f"s_call_b64 s[{sLink}:{sLink + 1}], L_combB")
        e(f"{label}:")

    def barrier(self):
        self.e("s_waitcnt lgkmcnt(0)")
        self.e("s_barrier")

    def prologue(self):
        e, cfg = self.e, self.cfg
        e("L_helper:")
        stamp(e, cfg, sHStamp, 0)
        if cfg.pre or cfg.k0late:
            e("s_setprio 3")
        e(f"s_sub_u32 s{sH}, s{sW}, 4")
        L, A, B_, C_ = 8, 9, 10, 11
        e(f"v_and_b32 v{L}, 63, v0")
        e(f"v_lshlrev_b32 v{hLin}, 4, v{L}")
        e(f"s_mul_i32 s60, s{sHead}, {HEADB}")
        e(f"s_mul_i32 s{sHoff}, s{sH}, 3072")
        e(f"s_mul_i32 s{sHl}, s{sH}, {KRG}")
        e(f"s_mov_b32 s{sKoff}, s{sHoff}")
        if cfg.rot:
            e(f"s_lshr_b32 s{sRot}, s{sHead}, 3")
            e(f"s_mul_i32 s{sRot}, s{sRot}, {cfg.rot}")
            e(f"s_add_u32 s{sRot}, s{sRot}, s{sHead}")
            e(f"s_and_b32 s{sRot}, s{sRot}, 7")
            e(f"s_mul_i32 s{sT1}, s{sRot}, {4 * BLKB}")
            e(f"s_add_u32 s{sKoff}, s{sKoff}, s{sT1}")
        e(f"s_mov_b32 s{sDir}, {BLKB}")
        for srd in (SRD_K, SRD_V, SRD_PF):
            e(f"s_mov_b32 s{srd + 2}, {HEADB}")
            e(f"s_mov_b32 s{srd + 3}, 0x20000")
        e("s_waitcnt lgkmcnt(0)")
        for n, srd in ((1, SRD_K), (2, SRD_V)):
            e(f"s_add_u32 s{srd}, s{36 + 2 * n}, s60")
            e(f"s_addc_u32 s{srd + 1}, s{37 + 2 * n}, 0")
        if cfg.qfirst != 1 and not cfg.k0late:
            for it in self.group(-5):
                self.put(it)
        for k in range(cfg.pre):
            e(f"s_setprio {cfg.preprio[k]}")
            for it in self.group(-4 + k):
                self.put(it)
        if cfg.pre:
            e("s_setprio 0")
        e(f"s_and_b32 s{sT2}, s{sP}, 3")
        e(f"s_lshl2_add_u32 s{sT2}, s{sH}, s{sT2}")
        e(f"s_mul_i32 s{sT2}, s{sT2}, 3072")
        if cfg.rot:
            e(f"s_add_u32 s{sT2}, s{sT2}, s{sT1}")
        e(f"v_lshlrev_b32 v{hPf}, {7 if cfg.pfx2 else 6}, v{L}")
        e(f"v_add_u32 v{hPf}, s{sT2}, v{hPf}")
        e(f"v_cmp_lt_u32 vcc, {23 if cfg.pfx2 else 47}, v{L}")
        e(f"v_mov_b32 v{C_}, 0x40000000")
        e(f"s_cmp_lt_u32 s{sP}, 4")
        e(f"s_cselect_b32 s{SRD_PF}, s{SRD_K}, s{SRD_V}")
        e(f"s_cselect_b32 s{SRD_PF + 1}, s{SRD_K + 1}, s{SRD_V + 1}")
        e(f"v_cndmask_b32 v{hPf}, v{hPf}, v{C_}, vcc")
        if cfg.pfskip:
            e(self.pf_item()[3][0])
        else:
            self.put(self.pf_item())
        if "D" in cfg.order.replace("+", " ").split():
            assert not cfg.rewarm and not cfg.tl
            e(f"v_add_u32 v{hI1}, {24 * BLKB}, v{hPf}")
        if cfg.k0late:
            e("s_setprio 0")
        e("s_branch L_helper2")

    def schedule(self, jobs, voff):
        e, cfg = self.e, self.cfg
        NI = 67
        order = cfg.order.split() if jobs else []
        cl = [c + voff for c in cfg.cl]
        assert len(cl) >= len(order)
        miss = {c: [] for c in cl}
        work = [[] for _ in range(NI)]
        vjobs, issue, done, first_issue = [], {}, {}, {}
        for c, toks in zip(cl, order):
            for tok in toks.split("+"):
                if tok == "T":
                    miss[c].append("T")
                    continue
                if tok == "X":
                    miss[c].append("X")
                    continue
                if tok == "D":
                    miss[c].append(([], f"buffer_load_dwordx2 {vr(hPfD, 2)}, v{hI1}, s[{SRD_PF}:{SRD_PF + 3}], 0 offen offset:60",
                                    ("pf",), [f"v_subrev_u32 v{hI1}, {4 * BLKB}, v{hI1}"]))
                    continue
                half = None
                if tok[-1] in "ab" and len(tok) == 4:
                    half, tok = "ab".index(tok[-1]), tok[:3]
                    job = ("s" if tok[0] == "S" else "v", "BA".index(tok[1]), int(tok[2]))
                    miss[c] += self.job_items(job)[3 * half:3 * half + 3]
                    first_issue.setdefault(tok, c)
                    if half == 1:
                        issue[tok] = c
                        if job[0] == "v":
                            vjobs.append((tok, job, c + cfg.lat))
                    continue
                first_issue.setdefault(tok, c)
                issue[tok] = c
                if tok[0] == "Q":
                    miss[c] += self.q_items(2 * int(tok[1])) + self.q_items(2 * int(tok[1]) + 1)
                    issue[f"q{2 * int(tok[1])}"] = issue[f"q{2 * int(tok[1]) + 1}"] = c
                    continue
                if tok[0] == "q":
                    miss[c] += self.q_items(int(tok[1]))
                    continue
                job = ("s" if tok[0] == "S" else "v", "BA".index(tok[1]), int(tok[2]))
                miss[c] += self.job_items(job)
                if job[0] == "v":
                    vjobs.append((tok, job, c + cfg.lat))
        for tok, c in list(issue.items()):
            if tok[0] == "S":
                tile, i = "BA".index(tok[1]), int(tok[2])
                t = c + cfg.lat
                if tile == 1 and t > 30:
                    work[30] += self.q_reads(1, i, region(i))
                    ops = self.job_ops(("s", 1, i), region(i))
                    assert first_issue[f"MB{i}"] > t + cfg.sdur
                else:
                    ops = self.job_ops(("s", tile, i))
                if tile == 1 and cfg.qcont:
                    qs = [issue[f"q{x}"] for x in range(4)]
                    assert max(qs) + 4 <= min(t, 30) and min(qs) > max(issue[f"SB{x}"] for x in range(4)) + cfg.lat
                if tile == 1:
                    assert issue[f"q{i}"] + 2 <= min(t, 30) and issue[f"q{i}"] > issue[f"SB{i}"] + cfg.lat
                h = ops.index("|")
                work[t] += ops[:h]
                work[t + 1] = ops[h + 1:] + work[t + 1]
                done[tok] = t + 1
        if cfg.idxlate:
            work[cl[0] - 1] += [("wait", ("idx",))] + [
                f"v_lshl_or_b32 v{hIDX + n}, v{region(7) + 2 * n + 1}, 16, v{region(7) + 2 * n}" for n in range(8)]
        work[32] = [f"v_sub_u32 v{hLa}, v{hG}, v{hLc}",
                    f"v_mul_u32_u24 v{hLa}, 25, v{hLa}",
                    f"s_mov_b32 s{sT0}, 0xaaab",
                    f"v_lshrrev_b32 v{hLa}, 3, v{hLa}",
                    f"v_mul_u32_u24 v{hLa}, s{sT0}, v{hLa}",
                    f"s_sub_u32 s{sT0}, s{sQl}, {ROFF}",
                    f"v_lshrrev_b32 v{hLa}, 17, v{hLa}",
                    f"v_add_u32 v{hLa}, s{sT0}, v{hLa}",
                    f"v_add_u32 v{hRw}, v{hLa}, v{hLc}"] + work[32]
        win = {}
        for k, (tok, job, t) in enumerate(vjobs):
            assert done["S" + tok[1:]] < first_issue[tok]
            nx = vjobs[k + 1][2] if k + 1 < len(vjobs) else NI
            win[tok] = (t, min(t + cfg.vdur, nx, NI))
            done[tok] = win[tok][1] - 1
        lastv = max([w[1] for w in win.values()] + [0])
        sites, ns = {}, 0
        for ls in range(35, NI):
            if not jobs:
                break
            allowed = 1 + 2 * sum(1 for u in range(4) if all(done[f"MB{x}"] < ls for x in range(u + 1)))
            want = cfg.lastsites if ls >= 64 else cfg.tailsites if ls >= lastv else (1 if (ls - voff) % cfg.sitemod[0] in cfg.sitemod[1:] else 0)
            for y in range(want):
                if ns < allowed or allowed == 9:
                    sites[ls] = sites.get(ls, 0) + 1
                    ns += 1
        for tok, job, t in vjobs:
            work[t] += self.job_ops(job)
        nxt_asc = 4 * (cfg.pf0 + len(cfg.pfat))
        explicit = "T" in cfg.order.replace("+", " ").split()
        for k, c in enumerate(cl):
            if explicit:
                for n, it in enumerate(miss[c]):
                    if it == "X":
                        work[c] = self.pf_item()[3] + work[c]
                        miss[c][n] = ([], None, ("pf",), [])
                        nxt_asc += 4
                    if it == "T":
                        if cfg.verbose:
                            print("touch", nxt_asc, "at", c, "first needed", nxt_asc - 4)
                        miss[c][n] = self.pf_item()
                        nxt_asc += 4
                continue
            horizon = (cl[k + 1] if k + 1 < len(cl) else NI) + 4
            while cfg.pf and nxt_asc < 64 and nxt_asc < horizon + cfg.pd:
                miss[c].append(self.pf_item())
                nxt_asc += 4
        if cfg.rewarm:
            assert not cfg.tl
            for c in (cl[1::cfg.rewarm] if isinstance(cfg.rewarm, int) else [x + voff for x in cfg.rewarm]):
                miss[c].append(([], f"global_load_dword v{hPfD}, v{hI1}, s[{sCode}:{sCode + 1}]", ("pf",), []))
        cls = sorted(c for c in cl if miss[c])
        queue = self.group(-2) if cfg.late2 and cfg.pre < 3 else []
        self.steady = True
        for ls in range(NI):
            e.c(f"---- interval {ls}")
            if ls - 1 <= 63 and not (cfg.ab_nodma and ls > 4):
                queue += self.group(ls - 1)
            if ls in cls:
                n = cfg.apre
                m = n + cfg.apost
                vm, queue = queue[:n] + miss[ls] + queue[n:m], queue[m:]
            else:
                prev = max([c for c in cls if c < ls] + [-2])
                nx = min([c for c in cls if c > ls] + [max(prev + 4, ls + 1)])
                future = sum(len(self.group(g - 1)) for g in range(ls + 1, nx) if g - 1 <= 63)
                n = min(len(queue), -(-(len(queue) + future) // (nx - ls)))
                if cfg.bmax and (ls - 1) in cls and nx - ls > 1:
                    n = min(n, cfg.bmax)
                vm, queue = queue[:n], queue[n:]
                if cfg.pf and ls in cfg.pfat:
                    vm = vm + [self.pf_item()]
            c = list(work[ls])
            for y in range(sites.get(ls, 0)):
                c.insert(len(c) // 2, ("site", ls))
            self.cur_ls, self.kitem, self.rest, self.used_early = ls, 0, list(vm), False
            self.interleave(vm, c, cfg.bstart if (ls - 1) in cls else 0.0)
            assert not any(it[2] == ("dma", ls - 3) for it in queue)
            if self.used_early:
                e(f"s_cmp_eq_u32 s{sEl}, -1")
                e(f"s_mov_b32 s{sEl}, {cfg.elastic[0]}")
                e(f"s_cbranch_scc1 L_skip{voff}_{ls}".replace("-", "m"))
            self.wait(("dma", ls - 3))
            if cfg.tl and ls < 63:
                e("s_memtime s[84:85]")
            self.barrier()
            if cfg.elastic:
                e(f"s_memtime s[{sBar}:{sBar + 1}]")
            if self.used_early:
                e(f"L_skip{voff}_{ls}:".replace("-", "m"))
            if cfg.pseg and ls in cfg.pseg:
                e(f"s_memtime s[{82 + 2 * cfg.pseg.index(ls)}:{83 + 2 * cfg.pseg.index(ls)}]")
            if cfg.tl and ls < 63:
                e("s_memtime s[80:81]")
                e("s_waitcnt lgkmcnt(0)")
                e("s_sub_u32 s84, s84, s82")
                e("s_sub_u32 s85, s80, s82")
                e("s_mov_b32 s82, s80")
                e("s_pack_ll_b32_b16 s84, s85, s84")
                e(f"v_writelane_b32 v{hTLr}, s84, {ls + 1}")
        assert not queue

    def program(self):
        e, cfg = self.e, self.cfg
        L, A, B_, C_ = 8, 9, 10, 11
        e("L_helper2:")
        if cfg.rewarm:
            e(f"s_getpc_b64 s[{sCode}:{sCode + 1}]")
            e("L_pc2:")
            e(f"s_sub_u32 s{sCode}, s{sCode}, L_pc2-L_ev0")
            e(f"s_subb_u32 s{sCode + 1}, s{sCode + 1}, 0")
            e(f"s_lshr_b32 s{sT2}, s2, 3")
            e(f"s_lshl2_add_u32 s{sT2}, s{sT2}, s{sH}")
            e(f"s_lshl_b32 s{sT2}, s{sT2}, 8")
            e(f"v_and_b32 v{hI1}, 3, v{L}")
            e(f"v_lshl_add_u32 v{hI1}, v{hI1}, 6, s{sT2}")
            e(f"v_min_u32 v{hI1}, L_code_end-L_ev0-4, v{hI1}")
        for n, srd in ((0, SRD_Q), (3, SRD_MK), (4, SRD_MV), (7, SRD_OUT)):
            e(f"s_add_u32 s{srd}, s{36 + 2 * n}, s60")
            e(f"s_addc_u32 s{srd + 1}, s{37 + 2 * n}, 0")
            e(f"s_mov_b32 s{srd + 2}, {HEADB}")
            e(f"s_mov_b32 s{srd + 3}, 0x20000")
        e(f"s_lshl_b32 s61, s{sHead}, 14")
        e(f"s_add_u32 s{SRD_IDX}, s46, s61")
        e(f"s_addc_u32 s{SRD_IDX + 1}, s47, 0")
        e(f"s_mov_b32 s{SRD_IDX + 2}, 16384")
        e(f"s_mov_b32 s{SRD_IDX + 3}, 0x20000")
        e(f"s_lshr_b32 s{sT0}, s{sHead}, 1")
        e(f"s_lshl_b32 s{sT0}, s{sT0}, 2")
        e(f"s_load_dword s{sT3}, s[48:49], s{sT0}")
        e(f"v_lshrrev_b32 v{A}, 3, v{L}")
        e(f"v_and_b32 v{hLc}, 7, v{L}")
        e(f"v_lshlrev_b32 v{hLc}, 4, v{hLc}")
        e(f"v_mul_u32_u24 v{hG}, {ROWB}, v{A}")
        e(f"v_add_u32 v{hG}, v{hG}, v{hLc}")
        e(f"s_add_u32 s{sT1}, s{sN}, s{sH}")
        e(f"s_mul_i32 s{sRowB}, s{sT1}, {BLKB}")
        e(f"s_sub_u32 s{sT2}, 63, s{sT1}")
        e(f"s_mul_i32 s{sRowA}, s{sT2}, {BLKB}")
        e(f"s_add_u32 s{sRowB2}, s{sRowB}, {16 * ROWB}")
        e(f"s_add_u32 s{sRowA2}, s{sRowA}, {16 * ROWB}")
        e(f"s_lshl_b32 s60, s{sT1}, 8")
        e(f"s_lshl_b32 s61, s{sT2}, 8")
        e(f"s_add_u32 s{sC0}, s{sT1}, 3")
        e(f"s_sub_u32 s{sA0}, 63, s{sN}")
        e(f"s_mul_i32 s{sA0}, s{sA0}, {BLKB}")
        e(f"s_add_u32 s{sA0}, s{sA0}, s{sHoff}")
        e(f"v_lshlrev_b32 v{B_}, 3, v{A}")
        def idx_loads():
            for tile in range(2):
                for i in range(4):
                    r = region(7) + 8 * tile + 2 * i
                    self.vmem(f"buffer_load_dwordx2 {vr(r, 2)}, v{B_}, s[{SRD_IDX}:{SRD_IDX + 3}], s{60 + tile} offen offset:{64 * i}",
                              ("idx",))
        if not cfg.idxlate:
            idx_loads()
        e(f"s_mul_i32 s{sQl}, s{sH}, {RBLK}")
        e(f"s_add_u32 s{sT2}, s{sQl}, {EB}")
        e(f"s_add_u32 s{sQl}, s{sQl}, {RB}")
        e(f"v_add_u32 v{hRw}, s{sT2}, v{hG}")
        e(f"s_mov_b32 s{sScale}, {hex(CSCALE)}")
        e(f"s_mov_b32 s{sMaskHi}, 0xffff0000")
        e(f"s_mov_b32 s{s384}, {ROWB}")
        if cfg.elastic:
            e(f"s_mov_b32 s{sEl}, {cfg.elastic[0]}")
        e(f"s_mov_b32 s{sSelLo}, 0x01000100")
        e(f"s_mov_b32 s{sSelHi}, 0x03020302")
        e(f"s_mov_b32 s{sDone}, 0")
        e("s_waitcnt lgkmcnt(0)")
        emit_gate(e, sT3, sT1, 14, sG, None)
        if cfg.tlbw:
            e(f"s_cmp_eq_u32 s{sH}, 0")
            e(f"s_cselect_b64 s[{sTl}:{sTl + 1}], s[{SRD_MK}:{SRD_MK + 1}], s[{SRD_MV}:{SRD_MV + 1}]")
            e(f"s_cmp_eq_u32 s{sH}, 2")
            e(f"s_cselect_b64 s[{sTl}:{sTl + 1}], s[{SRD_OUT}:{SRD_OUT + 1}], s[{sTl}:{sTl + 1}]")
            e(f"s_cmp_eq_u32 s{sH}, 3")
            e(f"s_cselect_b64 s[{sTl}:{sTl + 1}], s[{SRD_Q}:{SRD_Q + 1}], s[{sTl}:{sTl + 1}]")
            e(f"s_mov_b32 s{sTl + 2}, {HEADB}")
            e(f"s_mov_b32 s{sTl + 3}, 0x20000")
            e(f"v_mul_u32_u24 v{C_}, {cfg.tlbs}, v{L}")
            self.vmem(f"buffer_load_dword v{hPfD}, v{C_}, s[{sTl}:{sTl + 3}], 0 offen nt", ("pf",))
        if cfg.qfirst:
            e("s_barrier")
        if cfg.qfirst == 1 or cfg.k0late:
            for it in self.group(-5):
                self.put(it)
        if cfg.pre < 1:
            for it in self.group(-4):
                self.put(it)
        if cfg.pfearly:
            self.put(self.pf_item())
        if cfg.early3 and cfg.pre < 2:
            for it in self.group(-3):
                self.put(it)
        self.wait(("dma", -5))
        jobs = ([("s", 0, i) for i in range(4)] + [("s", 1, i) for i in range(4)]
                + [("v", 0, i) for i in range(4)] + [("v", 1, i) for i in range(4)])
        if cfg.ab_nojobs:
            jobs = []
        stamp(e, cfg, sHStamp, 1)
        e("s_barrier")
        if cfg.tl or (cfg.pseg and cfg.pseg[0] == -2):
            e("s_memtime s[82:83]")
        if not cfg.early3 and cfg.pre < 2:
            for it in self.group(-3):
                self.put(it)
        if not cfg.late2 and cfg.pre < 3:
            for it in self.group(-2):
                self.put(it)
        for x in range(cfg.pf0 - 1 - cfg.pfearly if cfg.pf else 0):
            self.put(self.pf_item())
        if cfg.idxlate:
            idx_loads()
        self.wait(("dma", -4))
        if not cfg.idxlate:
            self.wait(("idx",))
        for n in range(0 if cfg.idxlate else 8):
            e(f"v_lshl_or_b32 v{hIDX + n}, v{region(7) + 2 * n + 1}, 16, v{region(7) + 2 * n}")
            if cfg.ab_idx:
                e(f"v_and_b32 v{hIDX + n}, {hex(cfg.ab_idx * 0x10001)}, v{hIDX + n}")
        if cfg.tl:
            e("s_memtime s[84:85]")
        e("s_barrier")
        if cfg.elastic:
            e(f"s_memtime s[{sBar}:{sBar + 1}]")
        if cfg.tl:
            e("s_memtime s[80:81]")
            e("s_waitcnt lgkmcnt(0)")
            e("s_sub_u32 s84, s84, s82")
            e("s_sub_u32 s85, s80, s82")
            e("s_mov_b32 s82, s80")
            e("s_pack_ll_b32_b16 s84, s85, s84")
            e(f"v_writelane_b32 v{hTLr}, s84, 0")

        for x in [f"v_and_b32 v{hM1}, 16, v{hLc}",
                  f"s_mov_b32 s{sT0}, 0xffff",
                  f"v_lshlrev_b32 v{hM1}, v{hM1}, s{sT0}",
                  f"v_bfe_i32 v{hT}, v{hLc}, 5, 1",
                  f"v_bfi_b32 v{hM0}, v{hT}, 0, v{hM1}",
                  f"v_and_b32 v{hM1}, v{hT}, v{hM1}"]:
            e(x)
        vm0, npf0 = list(self.vm), self.npf
        nv = len(cfg.voffs)
        if nv > 1:
            e(f"s_lshr_b32 s{sT0}, s{sHead}, 3")
            e(f"s_and_b32 s{sT0}, s{sT0}, {nv - 1}")
            for v in range(1, nv):
                e(f"s_cmp_eq_u32 s{sT0}, {v}")
                e(f"s_cbranch_scc1 L_var{v}")
        for v, voff in enumerate(cfg.voffs):
            e(f"L_var{v}:")
            self.vm, self.npf = list(vm0), npf0
            self.schedule(jobs, voff)
            if v + 1 < nv:
                e("s_branch L_tail_done")
        e("L_tail_done:")
        obs = [hT, hT + 4, hIDX, hIDX + 4]
        cos = [[hC + 8 + 2 * i, hC + 2 * i] for i in range(4)]
        if cfg.dend:
            e("s_memtime s[64:65]" if False else "s_memtime s[80:81]")
        for y in range(cfg.presites):
            self.combine_site(67)
        e(f"s_setprio {cfg.endprio}")
        self.barrier()
        if cfg.dend:
            e("s_memtime s[82:83]")
            e("s_waitcnt lgkmcnt(0)")
        for i in range(4):
            e(f"ds_read_b64 {vr(hC + 2 * i, 2)}, v{hLa} offset:{orow(i) + 384}")
        for i in range(4):
            e(f"ds_read_b128 {vr(obs[i], 4)}, v{hRw} offset:{orow(i)}")
        e("s_waitcnt lgkmcnt(4)")
        for i in range(4):
            for x in self.coef_ins(hC + 2 * i, cos[i]):
                e(x)

        def acc_cols(a, bufs, left):
            for u in range(2 if cfg.flo else 1):
                for i in range(4):
                    if u == 0:
                        e(f"s_waitcnt lgkmcnt({3 - i + left})")
                    for k in (2 * a, 2 * a + 1):
                        e(self.comb_mfma1(1, i, k, bufs[i] - 4 * a, cos[i], u))

        def out_cols(a):
            for i in range(4):
                for x in self.comb_out(1, i, (a,)):
                    e(x)
        acc_cols(0, obs, 0)
        if cfg.dend:
            e("s_memtime s[84:85]")
        for a in (1, 2):
            if a == 1 or len(cfg.endpub) == 2:
                e("s_barrier")
            if cfg.dend:
                e(f"s_memtime s[{84 + 2 * a}:{85 + 2 * a}]")
                e("s_waitcnt lgkmcnt(0)")
            for i in range(4):
                e(f"ds_read_b128 {vr(obs[i], 4)}, v{hRw} offset:{orow(i) + 128 * a}")
            out_cols(a - 1)
            acc_cols(a, obs, 0)
        out_cols(2)
        e("L_rest:")
        e(f"s_cmp_ge_u32 s{sDone}, 9")
        e("s_cbranch_scc1 L_fin")
        self.combine_site(None)
        e("s_branch L_rest")
        e("L_fin:")
        if cfg.dend:
            e("s_memtime s[90:91]")
            e("s_waitcnt vmcnt(0)")
            e("s_memtime s[92:93]")
            e("s_waitcnt lgkmcnt(0)")
            emit_dump(e, 80, 7)
        if cfg.probe:
            e("s_load_dwordx2 s[4:5], s[0:1], 72")
            e("s_mov_b32 s6, 0x100000")
            e("s_mov_b32 s7, 0x20000")
            e("s_lshl_b32 s60, s2, 3")
            e(f"s_add_u32 s60, s60, s{sW}")
            e("s_lshl_b32 s60, s60, 2")
            e("s_waitcnt vmcnt(0)")
            e("s_memrealtime s[80:81]")
            e("s_waitcnt lgkmcnt(0)")
            e("v_mov_b32 v0, s80\nv_mov_b32 v4, 0")
            e("buffer_store_dword v0, v4, s[4:7], s60 offen")
            if cfg.pseg:
                e("s_sub_u32 s84, s84, s82")
                e("s_lshl_b32 s60, s2, 5")
                e("v_mov_b32 v1, s84")
                e("buffer_store_dword v1, v4, s[4:7], s60 offen offset:12")
        if cfg.debug:
            e("s_waitcnt vmcnt(0)")
            stamp(e, cfg, sHStamp, 2)
            emit_dump(e, sHStamp, 3)
        if cfg.tl:
            e("s_load_dwordx2 s[4:5], s[0:1], 72")
            e("s_mov_b32 s6, 0x100000")
            e("s_mov_b32 s7, 0x20000")
            e(f"s_lshl_b32 s60, s2, 2")
            e(f"s_add_u32 s60, s60, s{sH}")
            e(f"s_lshl_b32 s60, s60, 9")
            e(f"s_add_u32 s60, s60, 0x80000")
            e("v_mbcnt_lo_u32_b32 v1, -1, 0")
            e("v_mbcnt_hi_u32_b32 v1, -1, v1")
            e("v_lshlrev_b32 v1, 2, v1")
            e("s_waitcnt lgkmcnt(0)")
            e(f"buffer_store_dword v{hTLr}, v1, s[4:7], s60 offen")
        e("s_endpgm")

        for x in self.ool:
            e(x)
        e("L_combB:")

        def tree(lo, hi):
            if hi - lo == 1:
                self.combine_state(lo)
                if lo == 8:
                    e(f"s_mov_b32 s{sC0}, 1000")
                e(f"s_setpc_b64 s[{sLink}:{sLink + 1}]")
                return
            mid = (lo + hi) // 2
            e(f"s_cmp_lt_u32 s{sDone}, {mid}")
            e(f"s_cbranch_scc0 L_cb_{mid}_{hi}")
            tree(lo, mid)
            e(f"L_cb_{mid}_{hi}:")
            tree(mid, hi)
        tree(0, 9)


HEADER = open("cdna_kernels/" + NAME + ".s.ref").read().split("; Override launch")[0]


def generate(cfg):
    ABL[0] = cfg.ab
    e = Emit()
    e.L.append(HEADER.rstrip("\n"))
    if cfg.probe and cfg.probe != 1:
        e.L.append(f"; @launch kernel={NAME}_kernel grid=(256,1,1) block=(512,1,1) lds={LDS_TOTAL}")
        e.L.append(f"; @launch kernel=probe_kernel grid=(1,1,1) block=(64,1,1) lds=0")
    else:
        e.L.append(f"; @launch grid=(256,1,1) block=(512,1,1) lds={LDS_TOTAL}")
    e('.amdgcn_target "amdgcn-amd-amdhsa--gfx950"')
    e(".text")
    e(f".globl {NAME}_kernel")
    e(".p2align 8")
    e(f".type {NAME}_kernel,@function")
    e(f"{NAME}_kernel:")
    e("s_cmp_ge_u32 s2, 256")
    e("s_cbranch_scc1 L_exit")
    e("s_load_dwordx16 s[36:51], s[0:1], 0")
    if cfg.warm_code:
        e("s_getpc_b64 s[62:63]")
        e("L_pc:")
        e("s_lshr_b32 s60, s2, 3")
        big = len(cfg.voffs) > 1 or cfg.dual is not None
        e(f"s_lshl_b32 s60, s60, {11 if big else 10}")
        e(f"v_lshrrev_b32 v2, {4 if big else 5}, v0")
        e("v_lshl_add_u32 v2, v2, 6, s60")
        e(f"v_min_u32 v2, L_code_end-L_pc-4, v2")
        e(f"global_load_dword v{WARMD}, v2, s[62:63]")
    e("v_lshrrev_b32 v1, 6, v0")
    e(f"s_lshr_b32 s{sHead}, s2, 3" if cfg.hostile else f"s_and_b32 s{sHead}, s2, 31")
    e(f"v_readfirstlane_b32 s{sW}, v1")
    e(f"s_and_b32 s{sP}, s2, 7" if cfg.hostile else f"s_lshr_b32 s{sP}, s2, 5")
    e(f"s_lshl_b32 s{sN}, s{sP}, 2")
    e(f"s_sub_u32 s{sN}, 60, s{sN}")
    e(f"s_cmp_lt_u32 s{sW}, 4")
    h = Helper(e, cfg)
    if cfg.cfirst:
        e("s_cbranch_scc0 L_helper")
        emit_compute(e, cfg, h.prologue)
    else:
        e("s_cbranch_scc1 L_compute")
        h.prologue()
        emit_compute(e, cfg)
    h.program()
    e("L_exit:")
    e("s_endpgm")
    e("L_code_end:")
    if cfg.probe and cfg.probe != 1:
        kind, K = cfg.probe
        e(".globl probe_kernel\n.p2align 8\n.type probe_kernel,@function\nprobe_kernel:")
        e("s_cmp_ge_u32 s2, 1\ns_cbranch_scc1 P_exit")
        e("s_load_dwordx2 s[4:5], s[0:1], 72\ns_load_dwordx2 s[8:9], s[0:1], 64\ns_mov_b32 s6, 0x100000\ns_mov_b32 s7, 0x20000")
        e("s_mov_b32 s10, 256\ns_mov_b32 s11, 0x20000")
        e("v_lshlrev_b32 v1, 7, v0\ns_waitcnt lgkmcnt(0)")
        for j in range(4):
            e(f"buffer_load_dwordx4 v[{8 * j + 8}:{8 * j + 11}], v1, s[4:7], 0 offen offset:{32 * j}")
            e(f"buffer_load_dwordx4 v[{8 * j + 12}:{8 * j + 15}], v1, s[4:7], 0 offen offset:{32 * j + 16}")
        e("s_waitcnt vmcnt(0)\nv_readfirstlane_b32 s20, v8\ns_sub_u32 s20, s20, 0x10000")
        e("v_mov_b32 v2, -1\nv_mov_b32 v3, 0\nv_mov_b32 v4, 0\nv_mov_b32 v5, 0\nv_mov_b32 v6, 0\nv_mov_b32 v7, 0\nv_mov_b32 v41, 0")
        for j in range(4):
            b = 8 * j + 8
            for r in (0, 1, 2, 4, 5, 6, 7):
                e(f"v_subrev_u32 v{b + r}, s20, v{b + r}")
            e(f"v_max3_u32 v{b + 4}, v{b + 4}, v{b + 5}, v{b + 6}\nv_max_u32 v{b + 4}, v{b + 4}, v{b + 7}")
            e(f"v_min_u32 v2, v2, v{b}\nv_max_u32 v3, v3, v{b + 4}\nv_max_u32 v41, v41, v{b}")
            e(f"v_sub_u32 v40, v{b + 1}, v{b}\nv_add_u32 v4, v4, v40")
            e(f"v_sub_u32 v40, v{b + 2}, v{b + 1}\nv_add_u32 v5, v5, v40")
            e(f"v_add_u32 v6, v6, v{b + 3}")
            e(f"v_sub_u32 v40, v{b + 4}, v{b + 2}\nv_add_u32 v7, v7, v40")
        e("s_mov_b32 s22, -1\ns_mov_b32 s23, 0\ns_mov_b32 s24, 0\ns_mov_b32 s25, 0\ns_mov_b32 s26, 0\ns_mov_b32 s27, 0\ns_mov_b32 s28, 0\ns_mov_b32 s21, 0")
        e("P_red:")
        for r, op in ((2, "s_min_u32"), (3, "s_max_u32"), (4, "s_add_u32"), (5, "s_add_u32"), (6, "s_add_u32"), (7, "s_add_u32")):
            e(f"v_readlane_b32 s30, v{r}, s21\ns_nop 3\n{op} s{20 + r}, s{20 + r}, s30")
        e("v_readlane_b32 s30, v41, s21\ns_nop 3\ns_max_u32 s28, s28, s30")
        e("s_add_u32 s21, s21, 1\ns_cmp_lt_u32 s21, 64\ns_cbranch_scc1 P_red")
        e("s_sub_u32 s23, s23, s22\ns_sub_u32 s28, s28, s22\ns_lshl_b32 s23, s23, 8\ns_lshl_b32 s28, s28, 8\ns_lshr_b32 s26, s26, 4")
        for k in range(6):
            e(f"v_mov_b32 v2, s{23 + k}\nv_mov_b32 v3, 0\nbuffer_store_dword v2, v3, s[8:11], 0 offen offset:{4 * k}\ns_waitcnt vmcnt(0)")
        e(f"s_mul_i32 s31, s{23 + kind}, {K}\ns_lshr_b32 s31, s31, 8\ns_min_u32 s31, s31, 100000")
        e("s_memrealtime s[32:33]\ns_waitcnt lgkmcnt(0)")
        e("P_spin:\ns_memrealtime s[34:35]\ns_waitcnt lgkmcnt(0)\ns_sub_u32 s36, s34, s32\ns_cmp_lt_u32 s36, s31\ns_cbranch_scc1 P_spin")
        e("P_exit:\ns_endpgm")
    e.L.append(f""".section .rodata,"a"
.p2align 6
.amdhsa_kernel {NAME}_kernel
  .amdhsa_next_free_vgpr 256
  .amdhsa_next_free_sgpr 102
  .amdhsa_accum_offset 256
  .amdhsa_group_segment_fixed_size 0
  .amdhsa_kernarg_size 80
  .amdhsa_user_sgpr_count 2
  .amdhsa_user_sgpr_kernarg_segment_ptr 1
  .amdhsa_system_sgpr_workgroup_id_x 1
.end_amdhsa_kernel""")
    if cfg.probe and cfg.probe != 1:
        e.L.append(""".p2align 6
.amdhsa_kernel probe_kernel
  .amdhsa_next_free_vgpr 64
  .amdhsa_next_free_sgpr 64
  .amdhsa_accum_offset 64
  .amdhsa_group_segment_fixed_size 0
  .amdhsa_kernarg_size 80
  .amdhsa_user_sgpr_count 2
  .amdhsa_user_sgpr_kernarg_segment_ptr 1
  .amdhsa_system_sgpr_workgroup_id_x 1
.end_amdhsa_kernel""")
    return e.text()


if __name__ == "__main__":
    cfg = Cfg()
    out = "cdna_kernels/" + NAME + ".s"
    for a in sys.argv[1:]:
        if a.startswith("-o"):
            out = a[2:]
        else:
            k, v = a.split("=", 1)
            assert hasattr(cfg, k), k
            setattr(cfg, k, eval(v))
    open(out, "w").write(generate(cfg))
    import subprocess
    r = subprocess.run(["clang", "-x", "assembler", "-target", "amdgcn-amd-amdhsa", "-mcpu=gfx950",
                        "-c", out, "-o", "chk.o"], capture_output=True, text=True)
    if r.returncode:
        print("ASSEMBLY FAILED", out, r.stderr[:1500])
        import os
        os.remove(out)
        sys.exit(1)
```

```python
import sys, struct, math

NAME = "standalone__memory_aug_memorizing_tr__prompt"
ROWB = 384
BLKB = 32 * ROWB
HEADB = 2048 * ROWB
KRG = 3104
KBLK = 4 * KRG
VSLOT, NVSLOT = KBLK, 5
KB = NVSLOT * VSLOT
KSLOT = 2 * KBLK
RBLK = 12864
LDS_TOTAL = 163840
RB = LDS_TOTAL - 4 * RBLK
EB = RB - 4 * RBLK
ROFF = RB - EB
PADROW = 400
BIAS = 16.0
assert KB + 4 * KBLK <= RB and EB >= 4 * VSLOT


def orow(i):
    return i * 3200 + 64 * (i >> 1)


def f2u(x):
    return struct.unpack("<I", struct.pack("<f", x))[0]


CSCALE = f2u(192 ** -0.5 * math.log2(math.e))
LOG2E = f2u(math.log2(math.e))
NINF = 0xFF800000


class Cfg:
    debug = False
    tl = False
    warm_code = True
    nt_kv = ""
    nt_q = "nt"
    nt_g = ""
    nt_out = "sc0 sc1 nt"
    nt_pf = ""
    nt_pf_from = 0
    nt_qa = None
    qcont = False
    pf2 = None
    pf = True
    pd = 1
    mfma_v = True
    mfma_s = True
    group = True
    bstart = 0.25
    lastbar = 7
    lastroom = 2
    endroom = 3
    wfirst = True
    endpub = (4, 8)
    endprio = 3
    win = 0
    pfx2 = True
    presites = 3
    tlbw = False
    tlbs = 65536
    m4prio = 3
    sdur = 2
    firstbar = 2
    sitemod = (2, 0)
    vfirst = False
    tailsites = 2
    lastsites = 3
    cl = [2, 4, 6, 8, 10, 12, 16, 20, 24, 26, 28, 30, 32, 34, 36, 38, 40, 42, 44, 46, 48, 50, 53, 56, 59]
    order = ("SB0 T+SB1a SB1b+SB2a T+SB2b SB3 T+q0 T+q1 T+q2 T+q3 SA0 T+SA1a SA2 T+SA1b SA3 T+MB0a MB0b+MB1a "
             "T+MB1b MB2 T+MB3a T+MB3b MA0 T+MA1a T+MA1b MA2 MA3")
    lat = 3
    vdur = 1
    late2 = True
    early3 = False
    pfat = ()
    pf0 = 2
    pdesc = 0
    sitew = 0.45
    sburst = 6
    swplan = (19, 16, 999)
    swstep = 3
    swbar = (240, 9999)
    wsite = (0.14, 0.36, 0.14, 0.36)
    ab_nojobs = False
    ab_nodma = False
    ab_idx = 0
    ab_coarse = 0
    ab_noburst = False
    ab = ""
    seq = 1
    stag = ()
    qfirst = 0
    dend = False
    dst = False
    cfirst = True
    wprio = None
    nt_outB = None
    rewarm = 0
    feww = False
    qrr = True
    pre = 0
    preprio = (2, 1, 0)
    pfskip = False
    pfearly = 0
    k0late = False
    idxlate = True
    pseg = None
    bmax = 0
    apost = 0
    apre = 0
    verbose = False
    voffs = (0,)
    dual = 1
    dualk = 1
    flo = False
    elastic = None
    rot = 0
    hostile = False
    probe = None
    dsw = False


class Emit:
    def __init__(self):
        self.L = []

    def __call__(self, s):
        for x in s.split("\n"):
            x = x.strip()
            if x:
                self.L.append(x if x.endswith(":") or x.startswith(".") else "  " + x)

    def c(self, s):
        self.L.append("  ; " + s)

    def text(self):
        return "\n".join(self.L) + "\n"


def vr(a, n):
    return f"v[{a}:{a + n - 1}]"


sW, sHead, sP, sN = 3, 52, 53, 54
SRD_Q, SRD_K, SRD_V, SRD_MK, SRD_MV, SRD_IDX, SRD_OUT = 8, 12, 16, 20, 24, 28, 32
sEv, sEvId, sThr = 55, 56, 57
sFbLink = 58
sMask0 = 64
sStamp = 12
sCScale = 96
sCMaskHi = 98
sRW = 99
sCOmg = 100
sHiHalf, sOddRow = 4, 6
sH, sG, sOMG, sC0, sDone = 55, 56, 57, 58, 59
sLink = 60
sT0, sT1, sT2, sT3 = 62, 63, 64, 65
sKoff, sVoff = 66, 67
sRowB, sRowA = 68, 69
sKl, sVl = 70, 71
sSw, sDir = 72, 73
sScale = 74
sMaskHi = 75
sRowB2, sRowA2 = 76, 77
s384 = 78
sX = 79
SRD_PF = 4
sHStamp = 80
sKlT, sVlT = 86, 90
sA0, sQl = 95, 96
sTl = 88
sSelLo, sSelHi = 92, 93
sEl = 94
sRot = 79
sNow, sBar = 86, 70
sCode = 98
sHl, sHoff = 100, 101

O0, Q0 = 0, 96
SB = [144, 160]
PB = [176, 184]
NM = 192
LS = 200
F0 = 208
ONES = 240
E0, NE = 244, 4
vAK, vAK2, vAV, vOR, vT1, vT2, vAL, vAO = 248, 249, 250, 251, 252, 253, 254, 255
MF16 = "v_mfma_f32_16x16x32_bf16"


def frag(f):
    return F0 + 4 * (f % 8)


def kread(f, par):
    kt, ks = divmod(f, 6)
    return [f"ds_read_b128 {vr(frag(f), 4)}, v{vAK} offset:{par * KBLK + kt * 4 * ROWB + ks * 64}"]


def vread_at(dt, r):
    return [f"ds_read_b64_tr_b16 {vr(r + 2 * t, 2)}, v{vAV} offset:{32 * dt + t * 4 * ROWB}" for t in range(2)]


def mfma_qk(f, q, par, c0=None):
    kt, ks = divmod(f, 6)
    d = SB[1 - par] + 8 * kt + 4 * q
    c = vr(d, 4) if ks else (c0 if c0 is not None else vr(NM + 4 * q, 4))
    return f"{MF16} {vr(d, 4)}, {vr(frag(f), 4)}, {vr(Q0 + 24 * q + 4 * ks, 4)}, {c}"


def mfma_pv(dt, q, r, par):
    o = O0 + 8 * dt + 4 * q
    return f"{MF16} {vr(o, 4)}, {vr(r, 4)}, {vr(PB[par] + 4 * q, 4)}, {vr(o, 4)}"


vIDX = LS + 4


def sparse_rs():
    return sum(1 for m, _ in SEQ if m[0] == "rs") == 1


def mfma_rs(q, par):
    if sparse_rs():
        return f"v_smfmac_f32_16x16x64_bf16 {vr(LS, 4)}, {vr(ONES, 4)}, {vr(PB[par], 8)}, v{vIDX}"
    return f"{MF16} {vr(LS + 4 * q, 4)}, {vr(ONES, 4)}, {vr(PB[par] + 4 * q, 4)}, {vr(LS + 4 * q, 4)}"


def E(i):
    if SEQ is SEQ13:
        return [E0, E0 + 1, E0 + 2, E0 + 3, LS + 5, LS + 6][i % 6]
    return E0 + i % NE


def preg(P_, k):
    kt, q, j = k >> 2, (k >> 1) & 1, k & 1
    return P_ + 4 * q + 2 * kt + j


SEQ = [
    ((0, 0), ["R7"]), ((0, 1), ["R8", "c4"]),
    ((1, 0), ["e11"]), ((1, 1), ["R9", "W"]),
    ((2, 0), ["e12"]), ((2, 1), ["R10", "c5"]),
    ((3, 0), ["e13"]), ((3, 1), ["R11", "o1"]),
    ((4, 0), ["c6", "W"]), ((4, 1), ["R12"]),
    ((5, 0), ["e14"]), ((5, 1), ["R13"]),
    ((6, 0), ["e15"]), ((6, 1), ["R14"]),
    ((7, 0), ["o2", "W"]), ((7, 1), ["R15"]),
    ((8, 0), ["c7", "t1"]), ((8, 1), ["R16"]),
    ((9, 0), ["o3", "t2"]), ((9, 1), ["R17"]),
    ((10, 0), ["cmp", "W"]), ((10, 1), ["R18"]),
    ((11, 0), ["chk", "swapK"]), ((11, 1), ["R19"]),
    ((12, 0), ["e0n"]), ((12, 1), ["R20"]),
    (("rs", 0), ["e1n"]),
    ((13, 0), ["c0n", "W"]), ((13, 1), ["R21"]),
    (("rs", 1), ["e2n"]),
    ((14, 0), ["e3n"]), ((14, 1), ["R22"]),
    ((15, 0), ["e4n"]), ((15, 1), ["R23"]),
    ((16, 0), ["bar", "c1n"]), ((16, 1), ["R24", "W"]),
    ((17, 0), ["e5n"]), ((17, 1), ["R25", "vmin"]),
    ((18, 0), ["e6n"]), ((18, 1), ["R26", "c2n"]),
    ((19, 0), ["e7n"]), ((19, 1), ["R27", "W"]),
    ((20, 0), ["e8n"]), ((20, 1), ["R28", "c3n"]),
    ((21, 0), ["e9n"]), ((21, 1), ["R29", "o0n"]),
    ((22, 0), ["ssub"]), ((22, 1), ["R30", "W"]),
    ((23, 0), ["e10n"]), ((23, 1), ["evt"]),
]
SEQ3 = [
    ((0, 0), ["R7", "c4"]), ((1, 0), ["e11"]), ((2, 0), ["e12"]),
    ((0, 1), ["R8", "c5"]), ((1, 1), ["R9", "o1"]), ((2, 1), ["R10", "W"]),
    ((3, 0), ["e13"]), ((4, 0), ["e14"]), ((5, 0), ["e15"]),
    ((3, 1), ["R11", "c6"]), ((4, 1), ["R12"]), ((5, 1), ["R13a", "W"]),
    ((6, 0), ["R13b", "c7"]), ((7, 0), ["o2", "t1"]), ((8, 0), ["o3", "t2"]),
    ((6, 1), ["R14"]), ((7, 1), ["R15"]), ((8, 1), ["R16a", "W"]),
    ((9, 0), ["R16b", "cmp"]), ((10, 0), ["swapK"]), ((11, 0), ["chk", "W"]),
    ((9, 1), ["R17"]), ((10, 1), ["R18"]), ((11, 1), ["R19"]),
    ((12, 0), ["e0n"]), ((12, 1), ["R20"]),
    (("rs", 0), ["e1n"]),
    ((13, 0), ["c0n", "W"]), ((13, 1), ["R21"]),
    (("rs", 1), ["e2n"]),
    ((14, 0), ["e3n"]), ((14, 1), ["R22"]),
    ((15, 0), ["e4n"]), ((15, 1), ["R23"]),
    ((16, 0), ["bar", "c1n"]), ((16, 1), ["R24", "W"]),
    ((17, 0), ["e5n"]), ((17, 1), ["R25", "vmin"]),
    ((18, 0), ["e6n"]), ((18, 1), ["R26", "c2n"]),
    ((19, 0), ["e7n"]), ((19, 1), ["R27", "W"]),
    ((20, 0), ["e8n"]), ((20, 1), ["R28", "c3n"]),
    ((21, 0), ["e9n"]), ((21, 1), ["R29", "o0n"]),
    ((22, 0), ["ssub"]), ((22, 1), ["R30", "W"]),
    ((23, 0), ["e10n"]), ((23, 1), ["evt"]),
]
SEQ4 = [
    ((0, 0), ["e10"]), ((0, 1), ["R8", "c4"]),
    ((1, 0), ["e11"]), ((1, 1), ["R9", "W"]),
    ((2, 0), ["e12"]), ((2, 1), ["R10", "c5"]),
    ((3, 0), ["e13"]), ((3, 1), ["R11", "W"]),
    ((4, 0), ["e14"]), ((4, 1), ["R12"]),
    ((5, 0), ["e15"]), ((5, 1), ["R13a", "W"]),
    ((6, 0), ["R13b", "c6"]), ((6, 1), ["R14a", "c7"]),
    ((7, 0), ["R14b", "o0"]), ((7, 1), ["R15a", "o1"]),
    ((8, 0), ["R15b", "o2"]), ((8, 1), ["R16a", "W"]),
    ((9, 0), ["R16b", "o3"]), ((9, 1), ["R17a", "cmp"]),
    ((10, 0), ["R17b", "t1"]), ((10, 1), ["R18a", "swapK"]),
    ((11, 0), ["R18b", "chk"]), ((11, 1), ["R19a", "W"]),
    ((12, 0), ["R19b", "t2"]), ((12, 1), ["R20a", "ssub"]),
    (("rs", 0), ["e0n"]),
    ((13, 0), ["R20b"]), ((13, 1), ["R21a", "W"]),
    (("rs", 1), ["e1n"]),
    ((14, 0), ["R21b", "c0n"]), ((14, 1), ["R22"]),
    ((15, 0), ["e2n"]), ((15, 1), ["R23a"]),
    ((16, 0), ["R23b", "bar"]), ((16, 1), ["R24", "W"]),
    ((17, 0), ["e3n"]), ((17, 1), ["R25", "c1n"]),
    ((18, 0), ["e4n"]), ((18, 1), ["R26", "vmin"]),
    ((19, 0), ["e5n"]), ((19, 1), ["R27", "W"]),
    ((20, 0), ["e6n"]), ((20, 1), ["R28", "c2n"]),
    ((21, 0), ["e7n"]), ((21, 1), ["R29", "c3n"]),
    ((22, 0), ["e8n"]), ((22, 1), ["R30", "W"]),
    ((23, 0), ["e9n"]), ((23, 1), ["R31", "evt"]),
]
PVPART = [
    ((12, 0), ["R19b", "t2"]), ((12, 1), ["W", "R20a"]),
    (("rs", 0), ["e0n"]),
    ((13, 0), ["R20b"]), ((13, 1), ["R21a"]),
    (("rs", 1), ["W", "e1n"]),
    ((14, 0), ["R21b", "c0n"]), ((14, 1), ["W", "R22"]),
    ((15, 0), ["e2n"]), ((15, 1), ["W", "R23"]),
    ((16, 0), ["bar", "e3n"]), ((16, 1), ["W", "R24", "vmin"]),
    ((17, 0), ["e4n"]), ((17, 1), ["W", "R25", "c1n"]),
    ((18, 0), ["e5n"]), ((18, 1), ["W", "R26"]),
    ((19, 0), ["e6n"]), ((19, 1), ["W", "R27", "c2n"]),
    ((20, 0), ["e7n"]), ((20, 1), ["W", "R28", "o0n"]),
    ((21, 0), ["e8n"]), ((21, 1), ["W", "R29", "c3n"]),
    ((22, 0), ["ssub", "e9n"]), ((22, 1), ["W", "R30"]),
    ((23, 0), ["W", "e10n"]), ((23, 1), ["evt"]),
]
SEQ5 = [
    ((0, 0), ["R7", "c4"]), ((0, 1), ["W", "R8", "o1"]),
    ((1, 0), ["e11"]), ((1, 1), ["W", "R9"]),
    ((2, 0), ["e12"]), ((2, 1), ["W", "R10", "c5"]),
    ((3, 0), ["e13"]), ((3, 1), ["W", "R11"]),
    ((4, 0), ["e14"]), ((4, 1), ["W", "R12"]),
    ((5, 0), ["e15"]), ((5, 1), ["W", "R13a", "c6"]),
    ((6, 0), ["R13b", "c7"]), ((6, 1), ["W", "R14a", "o2"]),
    ((7, 0), ["R14b"]), ((7, 1), ["W", "R15a", "o3"]),
    ((8, 0), ["R15b"]), ((8, 1), ["W", "R16a", "cmp"]),
    ((9, 0), ["R16b", "swapK"]), ((9, 1), ["W", "R17a"]),
    ((10, 0), ["R17b", "t1"]), ((10, 1), ["W", "R18"]),
    ((11, 0), ["chk"]), ((11, 1), ["W", "R19a"]),
] + PVPART
SEQ6 = [
    ((0, 0), ["W", "R7", "c4"]), ((1, 0), ["W", "e11"]), ((2, 0), ["e12"]),
    ((0, 1), ["R8", "o1"]), ((1, 1), ["R9", "c5"]), ((2, 1), ["W", "R10"]),
    ((3, 0), ["W", "e13"]), ((4, 0), ["W", "e14"]), ((5, 0), ["e15"]),
    ((3, 1), ["R11", "c6"]), ((4, 1), ["R12a", "c7"]), ((5, 1), ["W", "R12b", "o2"]),
    ((6, 0), ["W", "R13a", "o3"]), ((7, 0), ["W", "R13b", "cmp"]), ((8, 0), ["swapK", "t1"]),
    ((6, 1), ["R14"]), ((7, 1), ["R15a"]), ((8, 1), ["W", "R15b"]),
    ((9, 0), ["W", "R16a"]), ((10, 0), ["W", "R16b"]), ((11, 0), ["chk"]),
    ((9, 1), ["R17"]), ((10, 1), ["R18"]), ((11, 1), ["W", "R19a"]),
] + PVPART
SEQ7 = [
    ((0, 0), ["W", "R7", "c4"]), ((1, 0), ["W", "e10"]), ((2, 0), ["e11"]),
    ((0, 1), ["R8", "o1"]), ((1, 1), ["R9", "c5"]), ((2, 1), ["W", "R10"]),
    ((3, 0), ["W", "e12"]), ((4, 0), ["W", "e13"]), ((5, 0), ["e14"]),
    ((3, 1), ["R11", "c6"]), ((4, 1), ["R12a", "o2"]), ((5, 1), ["W", "R12b"]),
    ((6, 0), ["W", "e15"]), ((7, 0), ["W", "R13a", "c7"]), ((8, 0), ["R13b", "o3"]),
    ((6, 1), ["R14"]), ((7, 1), ["R15a", "cmp"]), ((8, 1), ["W", "R15b", "t1"]),
    ((9, 0), ["W", "R16a", "swapK"]), ((10, 0), ["W", "R16b"]), ((11, 0), ["chk"]),
    ((9, 1), ["R17"]), ((10, 1), ["R18"]), ((11, 1), ["W", "R19a"]),
    ((12, 0), ["R19b", "t2"]), ((12, 1), ["W", "R20a"]),
    (("rs", 0), ["e0n"]),
    ((13, 0), ["R20b"]), ((13, 1), ["R21a"]),
    (("rs", 1), ["W", "e1n"]),
    ((14, 0), ["R21b", "c0n"]), ((14, 1), ["W", "R22"]),
    ((15, 0), ["e2n"]), ((15, 1), ["W", "R23"]),
    ((16, 0), ["bar"]), ((16, 1), ["W", "R24", "vmin"]),
    ((17, 0), ["e3n"]), ((17, 1), ["W", "R25"]),
    ((18, 0), ["e4n"]), ((18, 1), ["W", "R26", "c1n"]),
    ((19, 0), ["e5n"]), ((19, 1), ["W", "R27"]),
    ((20, 0), ["e6n"]), ((20, 1), ["W", "R28", "c2n"]),
    ((21, 0), ["e7n"]), ((21, 1), ["W", "R29", "o0n"]),
    ((22, 0), ["ssub", "e8n"]), ((22, 1), ["W", "R30", "c3n"]),
    ((23, 0), ["W", "e9n"]), ((23, 1), ["evt"]),
]
SEQ8 = [
    ((0, 0), ["W", "R7", "c3"]), ((1, 0), ["W", "e8"]), ((2, 0), ["e9"]),
    ((0, 1), ["R8", "o0"]), ((1, 1), ["R9", "c4"]), ((2, 1), ["W", "R10", "o1"]),
    ((3, 0), ["W", "e10"]), ((4, 0), ["W", "e11"]), ((5, 0), ["e12"]),
    ((3, 1), ["R11", "c5"]), ((4, 1), ["R12"]), ((5, 1), ["W", "R13"]),
    ((6, 0), ["W", "e13"]), ((7, 0), ["W", "e14"]), ((8, 0), ["e15"]),
    ((6, 1), ["R14a", "c6"]), ((7, 1), ["R14b", "c7"]), ((8, 1), ["W", "R15a", "o2"]),
    ((9, 0), ["W", "R15b", "o3"]), ((10, 0), ["W", "R16a", "cmp"]), ((11, 0), ["R16b", "swapK"]),
    ((9, 1), ["R17a", "t1"]), ((10, 1), ["chk"]), ((11, 1), ["W", "R17b", "t2"]),
    ((12, 0), ["e0n"]), ((12, 1), ["W", "R18"]),
    ((13, 0), ["e1n"]), ((13, 1), ["W", "R19"]),
    ((14, 0), ["R20a", "c0n"]), ((14, 1), ["W", "R20b"]),
    (("rs", 0), ["e2n"]),
    ((15, 0), ["R21a"]), ((15, 1), ["W", "R21b"]),
    ((16, 0), ["R22a"]), ((16, 1), ["W", "R22b"]),
    ((17, 0), ["e3n"]), ((17, 1), ["W", "R23"]),
    (("rs", 1), ["bar"]),
    ((18, 0), ["R24", "c1n"]), ((18, 1), ["W", "R25", "vmin"]),
    ((19, 0), ["R26"]), ((19, 1), ["W", "R27"]),
    ((20, 0), ["e4n"]), ((20, 1), ["W", "R28"]),
    ((21, 0), ["e5n"]), ((21, 1), ["W", "R29"]),
    ((22, 0), ["ssub", "e6n"]), ((22, 1), ["W", "R30", "c2n"]),
    ((23, 0), ["W", "e7n"]), ((23, 1), ["evt"]),
]
SEQ9 = [x for x in SEQ8 if x[0] != ("rs", 0)]
SEQ9 = [(m, {(15, 0): ["e2n"], (15, 1): ["W", "R21"]}.get(m, g)) for m, g in SEQ9]
SEQ10 = [x for x in SEQ8 if x[0] != ("rs", 1)]
SEQ10 = [(m, {(18, 0): ["bar", "R24"], (19, 0): ["R26", "c1n"]}.get(m, g)) for m, g in SEQ10]
SEQ11 = [x for x in SEQ8 if x[0] != ("rs", 1)]
SEQ11 = [(m, {(18, 0): ["bar"], (18, 1): ["W", "R24", "R25"], (19, 0): ["R26", "c1n"], (19, 1): ["W", "R27", "vmin"]}.get(m, g)) for m, g in SEQ11]
SEQ12 = [
    ((0, 0), ["W", "R7", "c3"]), ((1, 0), ["W", "e9"]), ((2, 0), ["e10"]),
    ((0, 1), ["R8", "c4"]), ((1, 1), ["R9", "o0"]), ((2, 1), ["W", "R10", "o1"]),
    ((3, 0), ["W", "e11"]), ((4, 0), ["W", "e12"]), ((5, 0), ["e13"]),
    ((3, 1), ["R11", "c5"]), ((4, 1), ["R12a", "c6"]), ((5, 1), ["W", "R12b", "o2"]),
    ((6, 0), ["W", "e14"]), ((7, 0), ["W", "R13"]), ((8, 0), ["e15"]),
    ((6, 1), ["R14a", "t1"]), ((7, 1), ["R14b", "c7"]), ((8, 1), ["W", "R15a", "o3"]),
    ((9, 0), ["W", "R15b", "cmp"]), ((10, 0), ["W", "R16a", "swapK"]), ((11, 0), ["R16b", "t2"]),
    ((9, 1), ["R17a"]), ((10, 1), ["chk"]), ((11, 1), ["W", "R17b", "R18a"]),
    ((12, 0), ["e0n"]), ((12, 1), ["W", "R18b", "R19a"]),
    ((13, 0), ["e1n"]), ((13, 1), ["W", "R19b", "R20a"]),
    ((14, 0), ["e2n"]), ((14, 1), ["W", "R20b", "R21a"]),
    ((15, 0), ["e3n"]), ((15, 1), ["W", "R21b", "c0n"]),
    ((16, 0), ["R22a", "c1n"]), ((16, 1), ["W", "R22b"]),
    ((17, 0), ["e4n"]), ((17, 1), ["W", "R23"]),
    (("rs", 1), ["bar"]),
    ((18, 0), ["R24"]), ((18, 1), ["W", "R25", "vmin"]),
    ((19, 0), ["R26"]), ((19, 1), ["W", "R27"]),
    ((20, 0), ["e5n"]), ((20, 1), ["W", "R28"]),
    ((21, 0), ["e6n"]), ((21, 1), ["W", "R29", "c2n"]),
    ((22, 0), ["ssub", "e7n"]), ((22, 1), ["W", "R30"]),
    ((23, 0), ["W", "e8n"]), ((23, 1), ["evt"]),
]
SEQ13 = [
    ((0, 0), ["W", "R7"]), ((1, 0), ["W", "e7"]), ((2, 0), ["W", "e8"]),
    ((3, 0), ["W", "e9"]), ((4, 0), ["W", "e10"]), ((5, 0), ["e11"]),
    ((0, 1), ["R8", "c3"]), ((1, 1), ["R9", "c4"]), ((2, 1), ["R10", "c5"]),
    ((3, 1), ["R11", "o1"]), ((4, 1), ["R12a"]), ((5, 1), ["W", "R12b", "swapK"]),
    ((6, 0), ["W", "e12"]), ((7, 0), ["W", "e13"]), ((8, 0), ["W", "e14"]),
    ((9, 0), ["W", "e15"]), ((10, 0), ["W", "R13a", "c6"]), ((11, 0), ["R13b", "c7"]),
    ((6, 1), ["R14a", "o2"]), ((7, 1), ["R14b", "o3"]), ((8, 1), ["R15a", "cmp"]),
    ((9, 1), ["R15b"]), ((10, 1), ["chk"]), ((11, 1), ["W", "R16"]),
    ((12, 0), ["e0n"]), ((12, 1), ["W", "R17"]),
    ((13, 0), ["e1n"]), ((13, 1), ["W", "R18"]),
    ((14, 0), ["e2n"]), ((14, 1), ["W", "R19"]),
    ((15, 0), ["e3n"]), ((15, 1), ["W", "R20"]),
    ((16, 0), ["e4n"]), ((16, 1), ["W", "R21a", "c0n"]),
    ((17, 0), ["R21b", "c1n"]), ((17, 1), ["W", "R22a", "t1"]),
    ((18, 0), ["R22b", "t2"]), ((18, 1), ["W", "e5n"]),
    ((19, 0), ["R23"]),
    (("rs", 1), ["bar"]),
    ((19, 1), ["W", "R24", "vmin"]),
    ((20, 0), ["R25", "c2n"]), ((20, 1), ["W", "R26"]),
    ((21, 0), ["R27", "o0n"]), ((21, 1), ["W", "R28"]),
    ((22, 0), ["ssub", "R29"]), ((22, 1), ["W", "R30"]),
    ((23, 0), ["W", "e6n"]), ((23, 1), ["evt"]),
]
SEQ1 = SEQ
SEQ = SEQ13
for a_ in sys.argv:
    if a_.startswith("seq="):
        SEQ = {"13": SEQ13, "12": SEQ12, "9": SEQ9, "10": SEQ10, "11": SEQ11, "7": SEQ7, "8": SEQ8, "1": SEQ1, "3": SEQ3, "4": SEQ4, "5": SEQ5, "6": SEQ6}[a_[4:]]
if "feww=True" in sys.argv:
    DROP = {(0, 0), (1, 0), (3, 0), (4, 0), (6, 0), (7, 0), (9, 0), (10, 0),
            (12, 1), (14, 1), (16, 1), (18, 1), (20, 1), (22, 1)}
    SEQ = [(m, [t for t in g if not (t == "W" and m in DROP)]) for m, g in SEQ]
NFIRSTW = 1 if SEQ is SEQ13 or SEQ is SEQ12 else 3
NPRIME = 8 if SEQ is SEQ4 else 7


def is_sm(tok):
    return tok[0] in "eco" and tok[1].isdigit()


ALLTOK = [t for _, g in SEQ for t in g]
SM_FIRST = [t[:-1] for t in ALLTOK if is_sm(t) and t.endswith("n")]
SM_SECOND = [t for t in ALLTOK if is_sm(t) and not t.endswith("n")]


def sm_ins(t, S_, P_):
    i = int(t[1:])
    if t[0] == "e":
        return f"v_exp_f32 v{E(i)}, v{S_ + i}"
    if t[0] == "c":
        return f"v_cvt_pk_bf16_f32 v{preg(P_, i)}, v{E(2 * i)}, v{E(2 * i + 1)}"
    if i == 0:
        return f"v_or3_b32 v{vOR}, v{preg(P_, 0)}, v{preg(P_, 1)}, v{preg(P_, 2)}"
    if i < 3:
        return f"v_or3_b32 v{vOR}, v{vOR}, v{preg(P_, 2 * i + 1)}, v{preg(P_, 2 * i + 2)}"
    return f"v_bitop3_b32 v{vOR}, v{vOR}, v{preg(P_, 7)}, s{sThr} bitop3:0xa8"


def sm_seq(toks, S_, P_):
    out, last_exp = [], None
    for t in toks:
        i = int(t[1:])
        if t[0] == "c" and last_exp in (2 * i, 2 * i + 1):
            out.append("s_nop 0")
        out.append(sm_ins(t, S_, P_))
        last_exp = i if t[0] == "e" else None
    return out


def rtok(t):
    if t[-1] in "ab":
        return int(t[1:-1]), ["ab".index(t[-1])]
    n = int(t[1:])
    return n, ([0] if n % 24 < 12 else [0, 1])


def wait_counts():
    ev = []
    for rep in range(3):
        for m, g in SEQ:
            if m[0] != "rs":
                ev.append(("m", 24 * rep + m[0]))
            for t in g:
                if t[0] == "R":
                    n, hs = rtok(t)
                    ev += [("r", 24 * rep + n)] * len(hs)
                elif t == "W":
                    ev.append(("w", rep))
    res = []
    for k, x in enumerate(ev):
        if x == ("w", 1):
            need = -1
            for y in ev[k + 1:]:
                if y[0] == "w":
                    break
                if y[0] == "m":
                    need = max(need, y[1])
            issued = [y[1] for y in ev[:k] if y[0] == "r"]
            assert issued == sorted(issued)
            assert issued.count(need) == (1 if need % 24 < 12 else 2)
            res.append(sum(1 for n in issued if n > need))
    return res


STUBS = []


def chk_site(e, par):
    n = len(STUBS)
    STUBS.append(par)
    e(f"s_cbranch_vccnz L_stub{n}")
    e(f"L_chkret{n}:")


def V_T1():
    return f"v_add_u32 v{vT1}, {VSLOT}, v{vAV}"


def V_T2():
    return f"v_add_u32 v{vT2}, {hex((VSLOT - VSLOT * NVSLOT) & 0xffffffff)}, v{vAV}"


def V_MIN():
    return f"v_min_u32 v{vAV}, v{vT1}, v{vT2}"


def K_SWAP():
    return f"v_swap_b32 v{vAK}, v{vAK2}"


def mask_ins(S_, i):
    return f"v_cndmask_b32 v{S_ + i}, v{S_ + i}, v{vOR}, s[{sMask0 + 2 * i}:{sMask0 + 2 * i + 1}]"


ABL = [""]


def shifted_seq(k):
    q = list(SEQ)
    i = [n for n, (m, g) in enumerate(q) if "bar" in g][0]
    x = q.pop(i)
    q.insert(i - k, x)
    return q


def emit_step(e0, par, mask=False, ver="", SEQ=None):
    SEQ = SEQ or globals()["SEQ"]

    def e(x):
        ab = ABL[0]
        if "rs" in ab and f"{vr(ONES, 4)}" in x:
            return
        if "exp" in ab and (x.startswith("v_exp") or x.startswith("v_cvt_pk") or x.startswith("v_or3") or x.startswith("v_bitop")):
            return
        if "kr" in ab and x.startswith("ds_read_b128"):
            return
        if "vr" in ab and x.startswith("ds_read_b64_tr"):
            return
        if "nw" in ab and x.startswith("s_waitcnt"):
            return
        if "nswap" in ab and x.startswith("v_swap"):
            return
        if "keep" not in ab and ab and x.startswith("s_cbranch_vccnz"):
            return
        if ("kr" in ab or "vr" in ab) and x.startswith("s_waitcnt"):
            x = "s_waitcnt lgkmcnt(8)"
        e0(x)
    extra = {}
    wc = wait_counts()
    for m, toks in SEQ:
        f, q = m
        e(mfma_rs(q, par) if f == "rs" else (mfma_qk(f, q, par) if f < 12 else mfma_pv(f - 12, q, frag(f), par)))
        for x in extra.pop(m, []):
            e(x)
        for tok in toks:
            if tok[0] == "R":
                n, hs = rtok(tok)
                ins = kread(n, par) if n < 12 else (vread_at(n - 12, frag(n)) if n < 24 else kread(n - 24, 1 - par))
                ins = [ins[h] for h in hs]
            elif tok == "W":
                ins = [f"s_waitcnt lgkmcnt({min(14, wc.pop(0))})"]
            elif tok == "cmp":
                ins = [f"v_cmp_ne_u32 vcc, 0, v{vOR}"]
            elif tok == "chk":
                chk_site(e, par)
                ins = []
            elif tok == "swapK":
                ins = [K_SWAP()] if par == 1 else []
            elif tok == "t1":
                ins = [V_T1()]
            elif tok == "t2":
                ins = [V_T2()]
            elif tok == "vmin":
                ins = [V_MIN()]
            elif tok == "bar":
                ins = ["s_barrier"]
            elif tok == "ssub":
                ins = [] if mask else [f"s_sub_u32 s{sEv}, s{sEv}, 1"]
            elif tok == "evt":
                if mask:
                    ins = []
                else:
                    ins = ["s_cbranch_scc1 L_ev1"] if par == 0 else [f"s_cbranch_scc0 L_step0{ver}"]
            elif is_sm(tok):
                nxt = tok.endswith("n")
                if nxt and mask:
                    continue
                ins = [sm_ins(tok[:-1] if nxt else tok, SB[1 - par] if nxt else SB[par], PB[1 - par] if nxt else PB[par])]
            else:
                raise ValueError(tok)
            for x in ins:
                e(x)
    assert not extra


class LQ:
    def __init__(self, e):
        self.e, self.q = e, []

    def op(self, ins, tag):
        self.e(ins)
        self.q.append(tag)

    def wait(self, tag):
        idx = [i for i, t in enumerate(self.q) if t == tag]
        if idx:
            n = len(self.q) - 1 - idx[-1]
            self.e(f"s_waitcnt lgkmcnt({min(n, 14)})")
            self.q = self.q[idx[-1] + 1:]


def bar_sw(e, cfg, k):
    if cfg.dsw:
        e(f"s_memtime s[{sStamp + 4 + 4 * k}:{sStamp + 5 + 4 * k}]")
    e("s_barrier")
    if cfg.dsw:
        e(f"s_memtime s[{sStamp + 6 + 4 * k}:{sStamp + 7 + 4 * k}]")
        e("s_waitcnt lgkmcnt(0)")


def sstamp(e, cfg, k):
    if cfg.dst:
        e(f"s_memtime s[{sStamp + 2 * k}:{sStamp + 2 * k + 1}]")


def stamp(e, cfg, base, i):
    if cfg.dst:
        return
    if cfg.dsw:
        if base == sStamp and i == 2:
            e(f"s_memtime s[{base + 2}:{base + 3}]")
            e("s_waitcnt lgkmcnt(0)")
        return
    if cfg.debug:
        e(f"s_memtime s[{base + 2 * i}:{base + 2 * i + 1}]")
        e("s_waitcnt lgkmcnt(0)")


def mask_words(r):
    kt, q, i = r >> 3, (r >> 2) & 1, r & 3
    m = 0
    for l in range(64):
        n, g = l & 15, l >> 4
        if 8 * i + g + 4 * kt > 8 * (n & 3) + (n >> 2) + 4 * q:
            m |= 1 << l
    return m & 0xffffffff, m >> 32


def emit_gate(e, sraw, st, v, sg, somg):
    e(f"s_lshl_b32 s{st}, s{sraw}, 16")
    e(f"s_and_b32 s{sraw}, s{sraw}, 0xffff0000")
    e(f"s_bitcmp1_b32 s{sHead}, 0")
    e(f"s_cselect_b32 s{st}, s{sraw}, s{st}")
    e(f"v_mov_b32 v{v}, s{st}")
    e(f"v_mul_f32 v{v}, {hex(LOG2E)}, v{v}")
    e(f"v_exp_f32 v{v}, -v{v}")
    e("s_nop 0")
    e(f"v_add_f32 v{v}, 1.0, v{v}")
    e(f"v_rcp_f32 v{v}, v{v}")
    e("s_nop 0")
    e(f"v_cvt_pk_bf16_f32 v{v}, v{v}, v{v}")
    e(f"v_lshlrev_b32 v{v}, 16, v{v}")
    if somg is not None:
        e(f"v_sub_f32 v{v}, 1.0, v{v}")
        e(f"v_cvt_pk_bf16_f32 v{v}, v{v}, v{v}")
        e(f"v_lshlrev_b32 v{v}, 16, v{v}")
    e("s_nop 0")
    e(f"v_readfirstlane_b32 s{sg if somg is None else somg}, v{v}")


def bf16_round(x):
    u = f2u(x)
    return ((u + 0x7fff + ((u >> 16) & 1)) >> 16) & 0xffff


def bf16_val(h):
    return struct.unpack("<f", struct.pack("<I", h << 16))[0]


C_EXACT = 192 ** -0.5 * math.log2(math.e)
C_HI = bf16_round(C_EXACT)
C_LO = bf16_round(C_EXACT - bf16_val(C_HI))


def q_frag_reads(e, op):
    e(f"v_min_u32 v{vT1}, v{vAK}, v{vAK2}")
    e(f"v_add_u32 v{vT1}, s{sRW}, v{vT1}")
    for q in range(2):
        for ks in range(6):
            op(f"ds_read_b128 {vr(Q0 + 24 * q + 4 * ks, 4)}, v{vT1} offset:{RB - KB + q * 4 * ROWB + ks * 64}")


def row_max(e, S_, a, b):
    for q, r in ((0, a), (1, b)):
        x = [S_ + 4 * q + i for i in range(4)] + [S_ + 8 + 4 * q + i for i in range(4)]
        e(f"v_max3_f32 v{r}, v{x[0]}, v{x[1]}, v{x[2]}")
        e(f"v_max3_f32 v{r}, v{r}, v{x[3]}, v{x[4]}")
        e(f"v_max3_f32 v{r}, v{r}, v{x[5]}, v{x[6]}")
        e(f"v_max_f32 v{r}, v{r}, v{x[7]}")
    e("s_nop 1")
    e(f"v_permlane32_swap_b32 v{a}, v{b}")
    e(f"v_max_f32 v{a}, v{a}, v{b}")
    e(f"v_mov_b32 v{b}, v{a}")
    e("s_nop 1")
    e(f"v_permlane16_swap_b32 v{a}, v{b}")
    e(f"v_max_f32 v{a}, v{a}, v{b}")
    e(f"v_mov_b32 v{b}, v{a}")
    e("s_nop 1")
    e(f"v_permlane32_swap_b32 v{a}, v{b}")


def scale_ins(regs, T):
    o = []
    for k, r in enumerate(regs):
        o.append(f"v_lshlrev_b32 v{T + 2 * k}, 16, v{r}")
        o.append(f"v_and_b32 v{T + 2 * k + 1}, s{sCMaskHi}, v{r}")
    for k, r in enumerate(regs):
        o.append(f"v_pk_mul_f32 {vr(T + 2 * k, 2)}, {vr(T + 2 * k, 2)}, s[{sCScale}:{sCScale + 1}]")
    for k, r in enumerate(regs):
        o.append(f"v_cvt_pk_bf16_f32 v{r}, v{T + 2 * k}, v{T + 2 * k + 1}")
    return o


def emit_last(e, cfg, par, end):
    lq = LQ(e)
    reg = 0 if end else ROFF
    for n in range(8):
        for x in vread_at(n, frag(n)):
            lq.op(x, ("v", n))
    if not end:
        e(f"v_mov_b32 v{vOR}, {hex(NINF)}")
        for i in range(16):
            e(mask_ins(SB[par], i))
    for x in sm_seq(([] if end else SM_FIRST) + SM_SECOND, SB[par], PB[par]):
        e(x)
    e(f"v_cmp_ne_u32 vcc, 0, v{vOR}")
    lq.wait(("v", 0))
    chk_site(e, par)
    t0, t1 = E0, E0 + 1
    pend = [f"v_cndmask_b32 v{t0}, v{LS}, v{LS + 4}, s[{sHiHalf}:{sHiHalf + 1}]"]
    if sparse_rs():
        pend = [f"v_add_f32 v{t0}, v{LS}, v{LS + 1}", f"v_add_f32 v{t1}, v{LS + 2}, v{LS + 3}",
                f"v_cndmask_b32 v{t0}, v{t0}, v{t1}, s[{sHiHalf}:{sHiHalf + 1}]"]
    pend += [
            f"v_rcp_f32 v{t0}, v{t0}",
            None,
            f"v_mul_f32 v{t0}, s{sCOmg}, v{t0}",
            f"v_cvt_pk_bf16_f32 v{vOR}, v{t0}, v{t0}",
            f"v_lshlrev_b32 v{t1}, 16, v{vOR}",
            f"v_sub_f32 v{t0}, v{t0}, v{t1}",
            f"v_cvt_pk_bf16_f32 v{t0}, v{t0}, v{t0}",
            f"v_cndmask_b32 v{vOR}, v{vOR}, v{t0}, s[{sOddRow}:{sOddRow + 1}]"]
    if not cfg.flo:
        pend = pend[:-4]
    writes = [f"ds_write_b32 v{vAL}, v{vOR} offset:{reg + 384}"]
    qrd = []
    if end:
        pend += writes
    else:
        q_frag_reads(qrd.append, qrd.append)
    epi = []
    for dt in range(12):
        for q in range(2):
            r = O0 + 8 * dt + 4 * q
            epi.append((dt, f"v_cvt_pk_bf16_f32 v{r}, v{r}, v{r + 1}"))
            epi.append((dt, f"v_cvt_pk_bf16_f32 v{r + 1}, v{r + 2}, v{r + 3}"))
            w = f"ds_write_b64 v{vAO}, {vr(r, 2)} offset:{reg + q * 4 * PADROW + dt * 32}"
            if end:
                epi.append((dt, w))
                if dt in cfg.endpub and q == 0:
                    epi.append((dt, "*"))
            else:
                writes.append(w)
    since = {}

    def tick():
        for b in since:
            since[b] += 1

    def out(x, dt=None):
        if x == "*":
            assert not pend
            lq.wait(("w", dt - 1))
            if cfg.dend and dt == 4:
                e("s_memtime s[14:15]")
            e("s_barrier")
            if cfg.dend and dt == 4:
                e("s_waitcnt lgkmcnt(0)")
        elif x.startswith("ds_"):
            lq.op(x, ("w", dt))
        else:
            e(x)
        tick()

    e(mfma_rs(0, par))
    if not sparse_rs():
        e(mfma_rs(1, par))
    since["rs"] = 0
    room_ = cfg.endroom if end else cfg.lastroom
    for dt in range(12):
        for q in range(2):
            e(mfma_pv(dt, q, frag(dt), par))
            tick()
            room = room_
            if q == 1:
                since[dt] = 0
                if dt + 1 < 12:
                    lq.wait(("v", dt + 1))
                if dt + 8 < 12:
                    for x in vread_at(dt + 8, frag(dt + 8)):
                        lq.op(x, ("v", dt + 8))
                        tick()
                    room -= 2
                if dt == cfg.lastbar and not end:
                    bar_sw(e, cfg, 0)
            while room > 0 and qrd:
                out(qrd.pop(0))
                room -= 1
            while room > 0 and pend and since["rs"] >= 8:
                x = pend.pop(0)
                if x is None:
                    break
                out(x)
                room -= 1
            if pend and pend[0] is None:
                pend.pop(0)
                continue
            nv = room_ - room
            while room > 0 and epi and since.get(epi[0][0], -1) >= 8:
                if cfg.wfirst and epi[0][1].startswith("ds_") and nv > 0:
                    break
                d, x = epi.pop(0)
                out(x, d)
                room -= 1
                nv += 1
    assert not pend and not qrd
    if cfg.wfirst and end:
        rest, epi, cur = epi, [], []
        for it in rest + [(None, "*")]:
            if it[1] == "*":
                epi += [x for x in cur if not x[1].startswith("ds_")] + [x for x in cur if x[1].startswith("ds_")]
                cur = []
                if it[0] is not None:
                    epi.append(it)
            else:
                cur.append(it)
    while epi:
        need = 8 - since[epi[0][0]]
        if need > 0:
            e(f"s_nop {need - 1}")
            for b in since:
                since[b] += need
        d, x = epi.pop(0)
        out(x, d)
    return writes


def emit_first(e, cfg, par):
    lq = LQ(e)
    S_, P_ = SB[1 - par], PB[1 - par]
    for f in range(8):
        lq.op(kread(f, par)[0], f)
    zero = [f"v_mov_b64 {vr(r, 2)}, 0" for r in list(range(O0, O0 + 96, 2)) + list(range(LS, LS + (4 if sparse_rs() else 8), 2))]
    for x in zero[:12]:
        e(x)
    zero = zero[12:]
    for f in range(12):
        if f in (0, 1, 3, 6, 9):
            lq.wait({0: 0, 1: 2, 3: 5, 6: 8, 9: 11}[f])
        for q in range(2):
            e(mfma_qk(f, q, par, "0"))
            room = 2
            if q == 1 and f + 8 < 12:
                lq.op(kread(f + 8, par)[0], f + 8)
                room -= 1
            for k in range(room):
                if zero:
                    e(zero.pop(0))
    assert not zero
    if par == 1:
        e(K_SWAP())
    def barprime():
        bar_sw(e, cfg, 3)
        for f in range(NPRIME):
            e(kread(f, 1 - par)[0])
    if cfg.firstbar == 0:
        barprime()
    else:
        e("s_nop 5")
    e(f"s_cmp_eq_u32 s{sEvId}, 0")
    e(f"s_cbranch_scc1 L_nomask{par}")
    e(f"v_mov_b32 v{vOR}, {hex(NINF)}")
    for i in range(16):
        e(mask_ins(S_, i))
    e(f"L_nomask{par}:")
    vT3, vT4 = E0 + 2, E0 + 3
    row_max(e, S_, vT1, vT3)
    if cfg.firstbar == 1:
        barprime()
    e(f"v_sub_f32 v{vT1}, {hex(f2u(-BIAS))}, v{vT1}")
    e(f"v_sub_f32 v{vT3}, {hex(f2u(-BIAS))}, v{vT3}")
    e(f"v_mov_b32 v{vT2}, v{vT1}")
    e(f"v_mov_b32 v{vT4}, v{vT3}")
    e(f"s_sub_u32 s{sEv}, s{sEv}, 1")
    for i in range(0, 16, 2):
        t = vT3 if (i >> 2) & 1 else vT1
        e(f"v_pk_add_f32 {vr(S_ + i, 2)}, {vr(S_ + i, 2)}, {vr(t, 2)}")
    for i in range(0, 8, 2):
        e(f"v_mov_b64 {vr(NM + i, 2)}, {vr(vT3 if i >= 4 else vT1, 2)}")
    if cfg.firstbar == 2:
        barprime()
    for x in sm_seq(SM_FIRST, S_, P_):
        e(x)
    if cfg.firstbar == 3:
        barprime()
    e(f"s_waitcnt lgkmcnt({NPRIME - NFIRSTW})")
    if cfg.dsw:
        e(f"s_memtime s[{sStamp + 20}:{sStamp + 21}]")
        e("s_waitcnt lgkmcnt(0)")
    e(f"s_cbranch_scc1 L_ev{1 - par}")
    if cfg.dual is not None:
        e(f"s_bitcmp1_b32 s{sW}, {cfg.dual}")
        e(f"s_cbranch_scc1 L_step{1 - par}b")
    e(f"s_branch L_step{1 - par}")


WARMD = 100


NPR = [0]


def set_prio(e, cfg):
    e("s_setprio 2")
    if cfg.wprio is not None:
        NPR[0] += 1
        e(f"s_bitcmp1_b32 s{sW}, {cfg.wprio}")
        e(f"s_cbranch_scc1 L_pr{NPR[0]}")
        e("s_setprio 1")
        e(f"L_pr{NPR[0]}:")


def emit_compute(e, cfg, inject=None):
    e("L_compute:")
    set_prio(e, cfg)
    sstamp(e, cfg, 0)
    if cfg.probe:
        e("s_memrealtime s[12:13]")
    stamp(e, cfg, sStamp, 0)
    if cfg.debug and not cfg.dsw:
        e(f"s_memrealtime s[{sStamp + 14}:{sStamp + 15}]")
    L, A, B_, C_ = 60, 61, 62, 63
    e(f"v_and_b32 v{L}, 63, v0")
    e(f"v_lshrrev_b32 v{A}, 3, v{L}")
    e(f"v_and_b32 v{B_}, 7, v{L}")
    e(f"v_mul_u32_u24 v65, {ROWB}, v{A}")
    e(f"v_lshl_add_u32 v64, v{B_}, 4, v65")
    e(f"s_add_u32 s60, s{sN}, s{sW}")
    e(f"s_sub_u32 s{sEv}, s60, 1")
    e(f"s_mul_i32 s60, s60, {BLKB}")
    e(f"s_add_u32 s61, s60, {16 * ROWB}")
    e(f"s_mul_i32 s62, s{sHead}, {HEADB}")
    e(f"s_mov_b32 s{SRD_Q + 2}, {HEADB}")
    e(f"s_mov_b32 s{SRD_Q + 3}, 0x20000")
    e("s_waitcnt lgkmcnt(0)")
    sstamp(e, cfg, 1)
    e(f"s_add_u32 s{SRD_Q}, s36, s62")
    e(f"s_addc_u32 s{SRD_Q + 1}, s37, 0")
    e(f"s_lshr_b32 s62, s{sHead}, 1")
    e(f"s_lshl_b32 s62, s62, 2")
    e(f"s_load_dword s63, s[48:49], s62")
    e(f"s_lshr_b32 s{sEvId}, s{sHead}, 3")
    for j in range(12):
        i, a = divmod(j, 3)
        if cfg.qrr and j % 3 == 0:
            e(f"s_setprio {3 - j // 3}")
        for (jj, cls, w) in cfg.stag:
            if jj == j:
                e(f"s_cmp_lt_u32 s{sEvId}, {cls}")
                e(f"s_cbranch_scc1 L_stag{jj}_{cls}")
                e(f"s_waitcnt {w}")
                e(f"L_stag{jj}_{cls}:")
        e(f"buffer_load_dwordx4 {vr(4 * j, 4)}, v64, s[{SRD_Q}:{SRD_Q + 3}], s{60 + (i >> 1)} offen "
          f"offset:{(i & 1) * 3072 + a * 128} {cfg.nt_q}")
    if cfg.qrr:
        e("s_setprio 2")
    sstamp(e, cfg, 2)
    if inject:
        e("s_branch L_comp2")
        inject()
        e("L_comp2:")
    if cfg.qfirst:
        e("s_barrier")
    e(f"s_mul_i32 s{sRW}, s{sW}, {RBLK}")
    e(f"v_add_u32 v65, s{sRW}, v64")
    e(f"v_add_u32 v65, {RB}, v65")
    e(f"v_and_b32 v{A}, 3, v{L}")
    e(f"v_bfe_u32 v{B_}, v{L}, 2, 2")
    e(f"v_lshrrev_b32 v{C_}, 4, v{L}")
    e(f"v_mul_u32_u24 v66, {KRG}, v{A}")
    e(f"v_mul_u32_u24 v67, {ROWB}, v{B_}")
    e(f"v_add_u32 v66, v66, v67")
    e(f"v_lshl_add_u32 v66, v{C_}, 4, v66")
    e(f"v_add_u32 v{vAK2}, {KB}, v66")
    e(f"v_add_u32 v{vAK}, {KB + KSLOT}, v66")
    e(f"v_mul_u32_u24 v66, {KRG}, v{B_}")
    e(f"v_mul_u32_u24 v67, {ROWB}, v{C_}")
    e(f"v_add_u32 v66, v66, v67")
    e(f"v_lshl_add_u32 v{vAV}, v{A}, 3, v66")
    e(f"v_mul_u32_u24 v66, 3200, v{A}")
    e(f"v_lshrrev_b32 v67, 1, v{A}")
    e(f"v_lshl_add_u32 v66, v67, 6, v66")
    e(f"v_mul_u32_u24 v67, {PADROW}, v{B_}")
    e(f"v_add3_u32 v66, v66, v67, s{sRW}")
    e(f"v_add_u32 v66, {EB}, v66")
    e(f"v_and_b32 v67, 1, v{A}")
    e(f"v_xor_b32 v67, v67, v{C_}")
    e(f"v_lshl_add_u32 v{vAO}, v67, 3, v66")
    e(f"v_and_b32 v67, 1, v{C_}")
    e(f"v_lshl_add_u32 v66, v67, 2, v66")
    e(f"v_lshrrev_b32 v67, 1, v{C_}")
    e(f"v_mul_u32_u24 v67, {4 * PADROW}, v67")
    e(f"v_add_u32 v{vAL}, v66, v67")
    for i in range(4):
        e(f"v_mov_b32 v{ONES + i}, 0x3f803f80")
    if sparse_rs():
        e(f"v_bfe_i32 v66, v{L}, 1, 1")
        e(f"v_bfe_i32 v67, v{L}, 5, 1")
        e(f"v_xor_b32 v66, v66, v67")
        for i in range(4):
            e(f"v_bfi_b32 v{ONES + i}, v66, 0, v{ONES + i}")
        e(f"v_bfe_i32 v66, v{L}, 0, 1")
        e(f"v_and_b32 v66, 0xaaaaaaaa, v66")
        e(f"v_or_b32 v{vIDX}, 0x44444444, v66")
    for i in range(16):
        lo, hi = mask_words(i)
        e(f"s_mov_b32 s{sMask0 + 2 * i}, {hex(lo)}")
        e(f"s_mov_b32 s{sMask0 + 2 * i + 1}, {hex(hi)}")
    e(f"s_mov_b32 s{sHiHalf}, 0")
    e(f"s_mov_b32 s{sHiHalf + 1}, -1")
    e(f"s_mov_b32 s{sOddRow}, 0xffff0000")
    e(f"s_mov_b32 s{sOddRow + 1}, 0xffff0000")
    e(f"s_mov_b32 s{sEvId}, 0")
    e(f"s_mov_b32 s{sThr}, 0x40004000")
    e(f"s_mov_b32 s{sCScale}, {hex(CSCALE)}")
    e(f"s_mov_b32 s{sCScale + 1}, {hex(CSCALE)}")
    e(f"s_mov_b32 s{sCMaskHi}, 0xffff0000")
    e("s_waitcnt lgkmcnt(0)")
    emit_gate(e, 63, 62, 48, None, sCOmg)
    for j in range(12):
        i, a = divmod(j, 3)
        if j == 0:
            sstamp(e, cfg, 3)
        e(f"s_waitcnt vmcnt({11 - j})")
        if j in (0, 4, 8, 11):
            sstamp(e, cfg, {0: 4, 4: 5, 8: 6, 11: 7}[j])
        for x in scale_ins(range(4 * j, 4 * j + 4), 48):
            e(x)
        e(f"ds_write_b128 v65, {vr(4 * j, 4)} offset:{i * KRG + a * 128}")
    q_frag_reads(e, e)
    e("s_waitcnt lgkmcnt(0)")
    sstamp(e, cfg, 8)
    stamp(e, cfg, sStamp, 9)
    e("s_barrier")
    sstamp(e, cfg, 9)
    if cfg.dst:
        e("s_waitcnt lgkmcnt(0)")
    stamp(e, cfg, sStamp, 1)
    if cfg.probe:
        e("s_memrealtime s[14:15]")
        e("s_memtime s[20:21]")
        e("s_waitcnt lgkmcnt(0)")
    e.c("first block of a tile: QK, causal mask (second tile), true row max, first part of the softmax")
    e("L_first1:")
    emit_first(e, cfg, 1)

    if cfg.dual is not None:
        e(".p2align 6")
        for par in (0, 1):
            e(f"L_step{par}b:")
            emit_step(e, par, ver="b", SEQ=shifted_seq(cfg.dualk))
        e("s_branch L_ev0")
    e.c("steady state: two blocks per trip; QK of block j+1, PV of block j, softmax spread over the gaps")
    e(".p2align 6")
    e("L_step0:")
    emit_step(e, 0)
    e("L_step1:")
    emit_step(e, 1)

    extra_ = set()
    for mpar in (0, 1):
        e.c("diagonal step and last step of the first tile, hand-over of O, Q of the second tile")
        e(f"L_ev{mpar}:")
        if mpar == 1:
            e(f"s_cmp_eq_u32 s{sEvId}, 0")
            e("s_cbranch_scc0 L_end")
        emit_step(e, mpar, mask=True)
        par = 1 - mpar
        stamp(e, cfg, sStamp, 2)
        writes = emit_last(e, cfg, par, False)
        e("s_setprio 0")
        work = [f"v_add_u32 v{vT1}, {4 * VSLOT}, v{vAV}", f"v_subrev_u32 v{vT2}, {VSLOT}, v{vAV}", V_MIN()]
        if par == 0:
            work.append(K_SWAP())
        CH, CL, M = F0, F0 + 2, F0 + 4
        work += [f"v_mbcnt_lo_u32_b32 v{M + 1}, -1, 0",
                 f"v_mbcnt_hi_u32_b32 v{M + 1}, -1, v{M + 1}",
                 f"v_and_b32 v{M}, 1, v{M + 1}",
                 f"v_lshlrev_b32 v{M}, 4, v{M}",
                 f"v_bfe_i32 v{M + 1}, v{M + 1}, 1, 1",
                 f"s_mov_b32 s60, {hex(C_HI)}",
                 f"s_mov_b32 s61, {hex(C_LO)}",
                 f"v_lshlrev_b32 v{CH + 1}, v{M}, s60",
                 f"v_lshlrev_b32 v{CL + 1}, v{M}, s61",
                 f"v_bfi_b32 v{CH}, v{M + 1}, 0, v{CH + 1}",
                 f"v_bfi_b32 v{CL}, v{M + 1}, 0, v{CL + 1}",
                 f"v_and_b32 v{CH + 1}, v{M + 1}, v{CH + 1}",
                 f"v_and_b32 v{CL + 1}, v{M + 1}, v{CL + 1}"]
        work += [f"s_add_u32 s60, s{sN}, s{sW}", f"s_sub_u32 s{sEv}, 63, s60", f"s_mov_b32 s{sEvId}, 2"]
        D = lambda k: F0 + 8 + 4 * (k % 6)
        for k in range(24 + 4):
            if k < 24:
                work.append(f"v_mfma_f32_4x4x4_16b_bf16 {vr(D(k), 4)}, {vr(CH, 2)}, {vr(Q0 + 2 * k, 2)}, 0")
            if k >= 4:
                work.append(f"v_cvt_pk_bf16_f32 v{Q0 + 2 * (k - 4)}, v{D(k - 4)}, v{D(k - 4) + 1}")
            elif k > 0:
                work.append("s_nop 0")
            if 1 <= k < 25:
                work.append(f"v_mfma_f32_4x4x4_16b_bf16 {vr(D(k - 1), 4)}, {vr(CL, 2)}, {vr(Q0 + 2 * (k - 1), 2)}, {vr(D(k - 1), 4)}")
            if k >= 4:
                work.append(f"v_cvt_pk_bf16_f32 v{Q0 + 2 * (k - 4) + 1}, v{D(k - 4) + 2}, v{D(k - 4) + 3}")
        n1, w1, n2 = cfg.swplan
        for x in work[:n1]:
            if "v_mfma" in x and "q" not in extra_:
                e("s_waitcnt lgkmcnt(0)")
                extra_.add("q")
            e(x)
        e("s_waitcnt lgkmcnt(0)")
        extra_.discard("q")
        for x in writes[:w1]:
            e(x)
        stamp(e, cfg, sStamp, 3)
        bar_sw(e, cfg, 1)
        for x in work[n1:n2]:
            e(x)
        for x in writes[w1:]:
            e(x)
        e("s_waitcnt lgkmcnt(0)")
        stamp(e, cfg, sStamp, 4)
        bar_sw(e, cfg, 2)
        for x in work[n2:]:
            e(x)
        set_prio(e, cfg)
        if par == 0:
            e("s_branch L_first1")
        else:
            emit_first(e, cfg, 0)

    e.c("last block of the second tile: finish, write O (bf16) and the row factors to LDS")
    e("L_end:")
    stamp(e, cfg, sStamp, 5)
    if cfg.probe:
        e("s_memrealtime s[16:17]")
        e("s_memtime s[22:23]")
        e("s_waitcnt lgkmcnt(0)")
    if cfg.dend:
        e("s_memtime s[12:13]")
        e("s_waitcnt lgkmcnt(0)")
    emit_last(e, cfg, 1, True)
    e("s_waitcnt lgkmcnt(0)")
    if cfg.dend:
        e("s_memtime s[16:17]")
    e("s_barrier")
    if cfg.dend:
        e("s_waitcnt lgkmcnt(0)")
        emit_dump(e, 12, 3)
    stamp(e, cfg, sStamp, 6)
    if cfg.probe:
        e("s_load_dwordx2 s[4:5], s[0:1], 72")
        e("s_mov_b32 s6, 0x100000")
        e("s_mov_b32 s7, 0x20000")
        e("s_sub_u32 s22, s22, s20")
        e("s_lshl_b32 s60, s2, 5")
        e("v_mov_b32 v0, s12\nv_mov_b32 v1, s14\nv_mov_b32 v2, s16\nv_mov_b32 v3, s22\nv_mov_b32 v4, 0")
        e("s_waitcnt lgkmcnt(0)")
        e("buffer_store_dwordx3 v[0:2], v4, s[4:7], s60 offen" if cfg.pseg else "buffer_store_dwordx4 v[0:3], v4, s[4:7], s60 offen")
    if cfg.probe == 1:
        e("s_getreg_b32 s61, hwreg(HW_REG_XCC_ID)")
        e("s_getreg_b32 s62, hwreg(HW_REG_HW_ID)")
        e("s_lshl_b32 s60, s2, 3")
        e("s_add_u32 s60, s60, 0x10000")
        e("v_mov_b32 v6, s61\nv_mov_b32 v7, s62")
        e("buffer_store_dwordx2 v[6:7], v4, s[4:7], s60 offen")
    if cfg.dsw or cfg.dst:
        emit_dump(e, sStamp, 11)
    elif cfg.debug:
        e(f"s_memrealtime s[{sStamp + 16}:{sStamp + 17}]")
        e("s_waitcnt lgkmcnt(0)")
        emit_dump(e, sStamp, 10)
    e("s_endpgm")

    for n, par in enumerate(STUBS):
        e(f"L_stub{n}:")
        e(f"s_call_b64 s[{sFbLink}:{sFbLink + 1}], L_fb{par}")
        e(f"s_branch L_chkret{n}")
    for par in (0, 1):
        Sc, Sn, Pc = SB[par], SB[1 - par], PB[par]
        d0, d1, t0, t1 = E0, E0 + 1, E0 + 2, E0 + 3
        e.c("rare path: move the reference max to the true max, rescale, redo this block's exponentials")
        e(f"L_fb{par}:")
        row_max(e, Sc, d0, d1)
        for d in (d0, d1):
            e(f"v_add_f32 v{d}, {hex(f2u(BIAS))}, v{d}")
        for d in (d0, d1):
            e(f"v_max_f32 v{d}, 0, v{d}")
        e(f"v_exp_f32 v{t0}, -v{d0}")
        e(f"v_exp_f32 v{t1}, -v{d1}")
        e("s_nop 0")
        for r in list(range(O0, O0 + 96)) + ([] if sparse_rs() else list(range(LS, LS + 8))):
            e(f"v_mul_f32 v{r}, v{r}, v{t1 if (r >> 2) & 1 else t0}")
        for r in range(4 if sparse_rs() else 0):
            e(f"v_mul_f32 v{LS + r}, v{LS + r}, v{t1 if r >= 2 else t0}")
        for r in list(range(Sc, Sc + 16)) + list(range(Sn, Sn + 16)) + list(range(NM, NM + 8)):
            e(f"v_sub_f32 v{r}, v{r}, v{d1 if (r >> 2) & 1 else d0}")
        for k in range(8):
            e(f"v_exp_f32 v{t0}, v{Sc + 2 * k}")
            e(f"v_exp_f32 v{t1}, v{Sc + 2 * k + 1}")
            e("s_nop 0")
            e(f"v_cvt_pk_bf16_f32 v{preg(Pc, k)}, v{t0}, v{t1}")
        e(f"s_setpc_b64 s[{sFbLink}:{sFbLink + 1}]")


def emit_dump(e, base, n):
    e("s_load_dwordx2 s[4:5], s[0:1], 72")
    e("s_mov_b32 s6, 0x100000")
    e("s_mov_b32 s7, 0x20000")
    e(f"s_lshl_b32 s60, s2, 3")
    e(f"s_add_u32 s60, s60, s{sW}")
    e(f"s_lshl_b32 s60, s60, 7")
    e("v_mov_b32 v1, s60")
    e("s_waitcnt lgkmcnt(0)")
    for i in range(n):
        e(f"v_mov_b32 v2, s{base + 2 * i}")
        e(f"buffer_store_dword v2, v1, s[4:7], 0 offen offset:{4 * i}")
        e("s_waitcnt vmcnt(0)")


hM1, hG, hRw, hLc, hI0, hI1, hPf, hLa = 0, 1, 2, 3, 4, 5, 6, 7
hT = 8
hPfD = 16
hCo0 = 18
hCB = 20
hIDX = 32
hC = 40
hX = 48
hLin, hM0 = 56, 57
hCv = 58
hL = 62
hRG = 64
hCo = [hCo0, hL]
M4 = "v_mfma_f32_4x4x4_16b_bf16"
hTLr = hI1


def slot_reg(R, sl, k):
    return R + 8 * (k >> 2) + 4 * sl + (k & 3)


def region(n):
    return hRG + 24 * n


def cost(x):
    if isinstance(x, tuple):
        return 150 if x[0] == "site" else 0
    if "v_mfma" in x:
        return 60
    op = x.split()[0]
    if op.startswith("v_fmac") or op.startswith("v_mad") or op.startswith("v_fma") or op.startswith("v_lshl_"):
        return 16
    if op in ("v_exp_f32", "v_rcp_f32"):
        return 18
    if op.startswith("v_"):
        return 10
    if op.startswith("ds_"):
        return 20
    return 5


class Helper:
    def __init__(self, e, cfg):
        self.e = e
        self.cfg = cfg
        self.vm = []
        self.nsite = 0
        self.steady = False
        self.nearly, self.ool = 0, []

    def vmem(self, ins, tag, weight=1):
        w = self.cfg.win
        if w and self.steady and len(self.vm) >= w:
            self.e(f"s_waitcnt vmcnt({w - 1})")
            self.vm = self.vm[-(w - 1):]
        self.e(ins)
        self.vm.append((tag, weight))
        assert len(self.vm) <= 56, len(self.vm)

    def wait(self, tag):
        idx = [i for i, t in enumerate(self.vm) if t[0] == tag]
        if not idx:
            return
        last = idx[-1]
        n = sum(w for _, w in self.vm[last + 1:])
        self.e(f"s_waitcnt vmcnt({n})")
        self.vm = self.vm[last + 1:]

    def early_point(self):
        tlate, first, stride = self.cfg.elastic
        ls = self.cur_ls
        self.kitem += 1
        k = self.kitem - 1
        if k < first or (k - first) % stride or any(it[2] == ("dma", ls - 3) for it in self.rest):
            return
        idx = [i for i, t in enumerate(self.vm) if t[0] == ("dma", ls - 3)]
        self.nearly += 1
        n = self.nearly
        self.e(f"s_memtime s[{sNow}:{sNow + 1}]")
        self.e("s_waitcnt lgkmcnt(0)")
        self.e(f"s_sub_u32 s{sNow}, s{sNow}, s{sBar}")
        self.e(f"s_cmp_ge_u32 s{sNow}, s{sEl}")
        self.e(f"s_cbranch_scc1 L_early{n}")
        self.e(f"L_eback{n}:")
        wait = [f"s_waitcnt vmcnt({len(self.vm) - 1 - idx[-1]})"] if idx else []
        self.ool += [f"L_early{n}:"] + wait + ["s_barrier", f"s_memtime s[{sBar}:{sBar + 1}]",
                                               f"s_mov_b32 s{sEl}, -1", f"s_branch L_eback{n}"]
        self.used_early = True

    def put(self, item, weight=1):
        pre, ins, tag, suf = item
        if ins is None:
            return
        if self.cfg.elastic and self.steady:
            self.early_point()
            self.rest = self.rest[1:]
        for x in pre:
            self.e(x)
        if isinstance(ins, list):
            for y in ins:
                self.vmem(y, tag, 0)
        else:
            self.vmem(ins, tag, weight)
        for x in suf:
            self.e(x)

    def dma3(self, srd, so, m0src, pre, tag, fl):
        items = []
        for j in range(3):
            p = []
            if j == 0:
                p = [m0src] + (pre if pre else ["s_nop 0"])
            items.append((p, f"buffer_load_dwordx4 v{hLin}, s[{srd}:{srd + 3}], s{so} offen offset:{j * 1024} {fl} lds", tag, []))
        return items

    def group(self, g):
        pos = g + 5
        pre = [f"s_mov_b32 s{sVoff}, s{sKoff}", f"s_add_u32 s{sKoff}, s{sKoff}, s{sDir}"]
        if self.cfg.rot and 0 < pos < 32 and pos % 4 == 0:
            pre += [f"s_cmp_ge_u32 s{sKoff}, {32 * BLKB}", f"s_cselect_b32 s{sKoff}, s{sHoff}, s{sKoff}"]
        if self.cfg.rot and pos == 32:
            pre += [f"s_add_u32 s{sKoff}, s{sHoff}, {32 * BLKB}"]
        if pos >= 36 and pos % 4 == 0:
            pre += [f"s_cmp_eq_u32 s{sN}, {pos - 4}",
                    f"s_cselect_b32 s{sKoff}, s{sA0}, s{sKoff}",
                    f"s_cselect_b32 s{sDir}, {hex((-BLKB) & 0xffffffff)}, s{sDir}"]
        tag = ("dma", g)
        mk = f"s_add_u32 m0, s{sHl}, {KB + ((pos + 3) % 4) * KBLK}"
        mv = f"s_add_u32 m0, s{sHl}, {((pos - 1) % NVSLOT) * VSLOT}"
        if pos == 0:
            return self.dma3(SRD_K, sKoff, mk, None, tag, self.cfg.nt_kv)
        if pos == 68:
            return self.dma3(SRD_V, sKoff, mv, None, tag, self.cfg.nt_kv)
        return (self.dma3(SRD_K, sKoff, mk, pre, tag, self.cfg.nt_kv)
                + self.dma3(SRD_V, sVoff, mv, None, tag, self.cfg.nt_kv))

    def pf_item(self):
        self.npf = getattr(self, "npf", 0) + 1
        fl = self.cfg.nt_pf if 4 * (self.npf - 1) >= self.cfg.nt_pf_from else ""
        if self.cfg.pfx2:
            ins = f"buffer_load_dwordx2 {vr(hPfD, 2)}, v{hPf}, s[{SRD_PF}:{SRD_PF + 3}], 0 offen offset:60 {fl}"
        else:
            ins = f"buffer_load_dword v{hPfD}, v{hPf}, s[{SRD_PF}:{SRD_PF + 3}], 0 offen {fl}"
        if self.cfg.pf2 is not None and fl:
            ins = [ins, ins.replace(fl, self.cfg.pf2)]
        k = self.npf
        if self.cfg.rot and k < 8:
            return ([], ins, ("pf",), [f"s_cmp_eq_u32 s{sRot}, {8 - k}",
                                       f"s_mov_b32 s{sT1}, {4 * BLKB}",
                                       f"s_cselect_b32 s{sT1}, {hex((-28 * BLKB) & 0xffffffff)}, s{sT1}",
                                       f"v_add_u32 v{hPf}, s{sT1}, v{hPf}"])
        if self.cfg.rot and k == 8:
            return ([], ins, ("pf",), [f"s_add_u32 s{sT1}, s{sRot}, 7", f"s_and_b32 s{sT1}, s{sT1}, 7",
                                       f"s_sub_u32 s{sT1}, 8, s{sT1}", f"s_mul_i32 s{sT1}, s{sT1}, {4 * BLKB}",
                                       f"v_add_u32 v{hPf}, s{sT1}, v{hPf}"])
        return ([], ins, ("pf",), [f"v_add_u32 v{hPf}, {4 * BLKB}, v{hPf}"])

    def q_items(self, i):
        fl = self.cfg.nt_q if self.cfg.nt_qa is None else self.cfg.nt_qa
        if self.cfg.qcont:
            return self.dma3(SRD_Q, sT2, f"s_add_u32 m0, s{sHl}, {RB + i * RBLK}",
                             [f"s_sub_u32 s{sT2}, s{sA0}, {i * BLKB}"], ("qa", i), fl)
        return self.dma3(SRD_Q, sT2, f"s_add_u32 m0, s{sQl}, {i * KRG}",
                         [f"s_add_u32 s{sT2}, s{sRowA}, {i * 3072}"], ("qa", i), fl)

    def q_reads(self, tile, i, q):
        return ([("wait", ("qa", i))] if tile else []) + [
            f"ds_read_b128 {vr(q + 4 * a, 4)}, v{hRw} offset:{ROFF + i * KRG + a * 128}" for a in range(3)]

    def job_items(self, job):
        kind, tile, i = job
        srd = SRD_MK if kind == "s" else SRD_MV
        tag = ("job", job)
        items = []
        p = hIDX + 4 * tile + i
        R = region(4 * tile + i)
        for sl in range(2):
            for a in range(3):
                pre = []
                if a == 0:
                    pre = [f"v_and_b32 v{hI0}, 0xffff, v{p}" if sl == 0 else f"v_lshrrev_b32 v{hI0}, 16, v{p}",
                           f"v_mad_u32_u24 v{hI0}, v{hI0}, s{s384}, v{hLc}"]
                items.append((pre, f"buffer_load_dwordx4 {vr(R + 8 * a + 4 * sl, 4)}, v{hI0}, s[{srd}:{srd + 3}], 0 offen "
                              f"offset:{a * 128} {self.cfg.nt_g}", tag, []))
        return items

    def job_ops(self, job, qbuf=None):
        kind, tile, i = job
        R = region(4 * tile + i)
        cp = hC + 4 * tile + i
        o = [("wait", ("job", job))]
        dp = " row_mask:0xf bank_mask:0xf"
        pr = self.cfg.m4prio
        if kind == "s":
            q = hCB if qbuf is None else qbuf
            if qbuf is None:
                o = self.q_reads(tile, i, q) + o
            D = [[hT, hT + 4], [hX, hX + 4]]
            o.append("s_waitcnt lgkmcnt(0)")
            b = [f"s_setprio {pr}"]
            for n in range(6):
                for sl in range(2):
                    d = D[sl][n & 1]
                    if n == 5:
                        pass
                    c = "0" if n < 2 else vr(d, 4)
                    b.append(f"{M4} {vr(d, 4)}, {vr(q + 2 * n, 2)}, {vr(slot_reg(R, sl, 2 * n), 2)}, {c}")
            b.append("s_setprio 0")
            o.append("\n".join(b))
            s0, s1, m = R, R + 1, R + 2
            o.append("s_nop 1")
            for par in range(2):
                for u in range(4):
                    for sl, s_ in ((0, s0), (1, s1)):
                        if par == 0 and u == 0:
                            o.append(f"v_mov_b32_dpp v{s_}, v{D[sl][0]} quad_perm:[0,0,0,0]{dp}")
                        else:
                            o.append(f"v_add_f32_dpp v{s_}, v{D[sl][par] + u}, v{s_} quad_perm:[{u},{u},{u},{u}]{dp}")
            o.append("|")
            o.append(f"v_add_f32_dpp v{s0}, v{s0}, v{s0} row_half_mirror{dp}")
            o.append(f"v_add_f32_dpp v{s1}, v{s1}, v{s1} row_half_mirror{dp}")
            o += [f"v_max_f32 v{m}, v{s0}, v{s1}",
                  f"v_sub_f32 v{s0}, v{s0}, v{m}",
                  f"v_sub_f32 v{s1}, v{s1}, v{m}"]
            if tile == 1:
                o += [f"v_mul_f32 v{s0}, s{sScale}, v{s0}", f"v_mul_f32 v{s1}, s{sScale}, v{s1}"]
            o += [f"v_exp_f32 v{s0}, v{s0}",
                  f"v_exp_f32 v{s1}, v{s1}",
                  "s_nop 0",
                  f"v_add_f32 v{m}, v{s0}, v{s1}",
                  f"v_rcp_f32 v{m}, v{m}",
                  "s_nop 0",
                  f"v_mul_f32 v{m}, s{sG}, v{m}",
                  f"v_mul_f32 v{s0}, v{s0}, v{m}",
                  f"v_mul_f32 v{s1}, v{s1}, v{m}",
                  f"v_cvt_pk_bf16_f32 v{cp}, v{s0}, v{s1}"]
            if self.cfg.ab_coarse:
                o.append(f"v_and_b32 v{cp}, {hex(self.cfg.ab_coarse)}, v{cp}")
        else:
            o = [f"v_perm_b32 v{hCv + 1}, v{cp}, v{cp}, s{sSelLo}",
                 f"v_perm_b32 v{hCv + 3}, v{cp}, v{cp}, s{sSelHi}",
                 f"v_and_b32 v{hCv}, v{hM0}, v{hCv + 1}",
                 f"v_and_b32 v{hCv + 1}, v{hM1}, v{hCv + 1}",
                 f"v_and_b32 v{hCv + 2}, v{hM0}, v{hCv + 3}",
                 f"v_and_b32 v{hCv + 3}, v{hM1}, v{hCv + 3}"] + o
            T = [hT, hT + 4, hX, hX + 4]
            A = lambda k: f"{M4} {vr(T[k % 4], 4)}, {vr(hCv, 2)}, {vr(R + 8 * (k >> 1) + 2 * (k & 1), 2)}, 0"
            B = lambda k: (f"{M4} {vr(R + 4 * k, 4)}, {vr(hCv + 2, 2)}, {vr(R + 8 * (k >> 1) + 4 + 2 * (k & 1), 2)}, "
                           f"{vr(T[k % 4], 4)}")
            o.append("\n".join(["s_nop 0", f"s_setprio {pr}", A(0), A(1), A(2), A(3), B(0), B(1), A(4), A(5),
                                 B(2), B(3), B(4), B(5), "s_setprio 0"]))
        return o

    def run_op(self, x):
        if self.cfg.ab_noburst and isinstance(x, str) and "v_mfma" in x:
            return
        if isinstance(x, tuple):
            if x[0] == "wait":
                self.wait(x[1])
            else:
                self.combine_site(x[1])
        else:
            self.e(x)

    def interleave(self, items, ops, start=0.0):
        tot = sum(cost(x) for x in ops)
        n = len(items)
        pos = [tot * (start + (1 - start) * k / max(n, 1)) for k in range(n)]
        if self.cfg.vfirst:
            pos = [0.0] * n
        acc, k = 0.0, 0
        for x in ops:
            while k < n and acc >= pos[k] - 1e-9:
                self.put(items[k])
                k += 1
            self.run_op(x)
            acc += cost(x)
        while k < n:
            self.put(items[k])
            k += 1

    def coef_ins(self, lp, co):
        return [f"v_and_b32 v{co[0]}, v{hM0}, v{lp}",
                f"v_and_b32 v{co[0] + 1}, v{hM1}, v{lp}",
                f"v_and_b32 v{co[1]}, v{hM0}, v{lp + 1}",
                f"v_and_b32 v{co[1] + 1}, v{hM1}, v{lp + 1}"][:4 if self.cfg.flo else 2]

    def comb_mfma1(self, tile, i, k, ob, co, u):
        R = region(4 * tile + i)
        return (f"v_mfma_f32_4x4x4_16b_bf16 {vr(R + 4 * k, 4)}, {vr(co[u], 2)}, {vr(ob + 2 * (k ^ (i & 1)), 2)}, "
                f"{vr(R + 4 * k, 4)}")

    def comb_mfma(self, tile, i, ob, co):
        return [self.comb_mfma1(tile, i, k, ob, co, u) for u in range(2 if self.cfg.flo else 1) for k in range(6)]

    def comb_out(self, tile, i, cols=(0, 1, 2)):
        R = region(4 * tile + i)
        so = ([sRowB, sRowA][tile]) if i < 2 else ([sRowB2, sRowA2][tile])
        o = []
        for a in cols:
            P = R + 8 * a
            for k in range(4):
                o.append(f"v_cvt_pk_bf16_f32 v{P + k}, v{P + 2 * k}, v{P + 2 * k + 1}")
            o.append(f"buffer_store_dwordx4 {vr(P, 4)}, v{hG}, s[{SRD_OUT}:{SRD_OUT + 3}], s{so} offen "
                     f"offset:{(i & 1) * 3072 + a * 128} "
                     f"{self.cfg.nt_outB if tile == 0 and self.cfg.nt_outB is not None else self.cfg.nt_out}")
        return o

    def combine_state(self, st):
        e = self.e
        e(f"s_mov_b32 s{sDone}, {st + 1}")
        if st % 2 == 1:
            e("s_waitcnt lgkmcnt(0)")
            for x in self.coef_ins(hL, hCo):
                e(x)
            e("s_nop 0")
            e("s_setprio 3")
            for x in self.comb_mfma(0, st // 2, hCB, hCo):
                e(x)
            e("s_setprio 0")
        nx = (st + 1) // 2
        if (st == 0 or st % 2 == 1) and nx < 4:
            for a in range(3):
                e(f"ds_read_b128 {vr(hCB + 4 * a, 4)}, v{hRw} offset:{ROFF + orow(nx) + a * 128}")
            e(f"ds_read_b64 {vr(hL, 2)}, v{hLa} offset:{ROFF + orow(nx) + 384}")
        if st > 0 and st % 2 == 0:
            for x in self.comb_out(0, st // 2 - 1):
                e(x)

    def combine_site(self, lstep):
        e = self.e
        self.nsite += 1
        label = f"L_cs{self.nsite}"
        if lstep is not None:
            e(f"s_cmp_gt_u32 s{sC0}, {lstep}")
            e(f"s_cbranch_scc1 {label}")
        e(f"s_call_b64 s[{sLink}:{sLink + 1}], L_combB")
        e(f"{label}:")

    def barrier(self):
        self.e("s_waitcnt lgkmcnt(0)")
        self.e("s_barrier")

    def prologue(self):
        e, cfg = self.e, self.cfg
        e("L_helper:")
        stamp(e, cfg, sHStamp, 0)
        if cfg.pre or cfg.k0late:
            e("s_setprio 3")
        e(f"s_sub_u32 s{sH}, s{sW}, 4")
        L, A, B_, C_ = 8, 9, 10, 11
        e(f"v_and_b32 v{L}, 63, v0")
        e(f"v_lshlrev_b32 v{hLin}, 4, v{L}")
        e(f"s_mul_i32 s60, s{sHead}, {HEADB}")
        e(f"s_mul_i32 s{sHoff}, s{sH}, 3072")
        e(f"s_mul_i32 s{sHl}, s{sH}, {KRG}")
        e(f"s_mov_b32 s{sKoff}, s{sHoff}")
        if cfg.rot:
            e(f"s_lshr_b32 s{sRot}, s{sHead}, 3")
            e(f"s_mul_i32 s{sRot}, s{sRot}, {cfg.rot}")
            e(f"s_add_u32 s{sRot}, s{sRot}, s{sHead}")
            e(f"s_and_b32 s{sRot}, s{sRot}, 7")
            e(f"s_mul_i32 s{sT1}, s{sRot}, {4 * BLKB}")
            e(f"s_add_u32 s{sKoff}, s{sKoff}, s{sT1}")
        e(f"s_mov_b32 s{sDir}, {BLKB}")
        for srd in (SRD_K, SRD_V, SRD_PF):
            e(f"s_mov_b32 s{srd + 2}, {HEADB}")
            e(f"s_mov_b32 s{srd + 3}, 0x20000")
        e("s_waitcnt lgkmcnt(0)")
        for n, srd in ((1, SRD_K), (2, SRD_V)):
            e(f"s_add_u32 s{srd}, s{36 + 2 * n}, s60")
            e(f"s_addc_u32 s{srd + 1}, s{37 + 2 * n}, 0")
        if cfg.qfirst != 1 and not cfg.k0late:
            for it in self.group(-5):
                self.put(it)
        for k in range(cfg.pre):
            e(f"s_setprio {cfg.preprio[k]}")
            for it in self.group(-4 + k):
                self.put(it)
        if cfg.pre:
            e("s_setprio 0")
        e(f"s_and_b32 s{sT2}, s{sP}, 3")
        e(f"s_lshl2_add_u32 s{sT2}, s{sH}, s{sT2}")
        e(f"s_mul_i32 s{sT2}, s{sT2}, 3072")
        if cfg.rot:
            e(f"s_add_u32 s{sT2}, s{sT2}, s{sT1}")
        e(f"v_lshlrev_b32 v{hPf}, {7 if cfg.pfx2 else 6}, v{L}")
        e(f"v_add_u32 v{hPf}, s{sT2}, v{hPf}")
        e(f"v_cmp_lt_u32 vcc, {23 if cfg.pfx2 else 47}, v{L}")
        e(f"v_mov_b32 v{C_}, 0x40000000")
        e(f"s_cmp_lt_u32 s{sP}, 4")
        e(f"s_cselect_b32 s{SRD_PF}, s{SRD_K}, s{SRD_V}")
        e(f"s_cselect_b32 s{SRD_PF + 1}, s{SRD_K + 1}, s{SRD_V + 1}")
        e(f"v_cndmask_b32 v{hPf}, v{hPf}, v{C_}, vcc")
        if cfg.pfskip:
            e(self.pf_item()[3][0])
        else:
            self.put(self.pf_item())
        if "D" in cfg.order.replace("+", " ").split():
            assert not cfg.rewarm and not cfg.tl
            e(f"v_add_u32 v{hI1}, {24 * BLKB}, v{hPf}")
        if cfg.k0late:
            e("s_setprio 0")
        e("s_branch L_helper2")

    def schedule(self, jobs, voff):
        e, cfg = self.e, self.cfg
        NI = 67
        order = cfg.order.split() if jobs else []
        cl = [c + voff for c in cfg.cl]
        assert len(cl) >= len(order)
        miss = {c: [] for c in cl}
        work = [[] for _ in range(NI)]
        vjobs, issue, done, first_issue = [], {}, {}, {}
        for c, toks in zip(cl, order):
            for tok in toks.split("+"):
                if tok == "T":
                    miss[c].append("T")
                    continue
                if tok == "X":
                    miss[c].append("X")
                    continue
                if tok == "D":
                    miss[c].append(([], f"buffer_load_dwordx2 {vr(hPfD, 2)}, v{hI1}, s[{SRD_PF}:{SRD_PF + 3}], 0 offen offset:60",
                                    ("pf",), [f"v_subrev_u32 v{hI1}, {4 * BLKB}, v{hI1}"]))
                    continue
                half = None
                if tok[-1] in "ab" and len(tok) == 4:
                    half, tok = "ab".index(tok[-1]), tok[:3]
                    job = ("s" if tok[0] == "S" else "v", "BA".index(tok[1]), int(tok[2]))
                    miss[c] += self.job_items(job)[3 * half:3 * half + 3]
                    first_issue.setdefault(tok, c)
                    if half == 1:
                        issue[tok] = c
                        if job[0] == "v":
                            vjobs.append((tok, job, c + cfg.lat))
                    continue
                first_issue.setdefault(tok, c)
                issue[tok] = c
                if tok[0] == "Q":
                    miss[c] += self.q_items(2 * int(tok[1])) + self.q_items(2 * int(tok[1]) + 1)
                    issue[f"q{2 * int(tok[1])}"] = issue[f"q{2 * int(tok[1]) + 1}"] = c
                    continue
                if tok[0] == "q":
                    miss[c] += self.q_items(int(tok[1]))
                    continue
                job = ("s" if tok[0] == "S" else "v", "BA".index(tok[1]), int(tok[2]))
                miss[c] += self.job_items(job)
                if job[0] == "v":
                    vjobs.append((tok, job, c + cfg.lat))
        for tok, c in list(issue.items()):
            if tok[0] == "S":
                tile, i = "BA".index(tok[1]), int(tok[2])
                t = c + cfg.lat
                if tile == 1 and t > 30:
                    work[30] += self.q_reads(1, i, region(i))
                    ops = self.job_ops(("s", 1, i), region(i))
                    assert first_issue[f"MB{i}"] > t + cfg.sdur
                else:
                    ops = self.job_ops(("s", tile, i))
                if tile == 1 and cfg.qcont:
                    qs = [issue[f"q{x}"] for x in range(4)]
                    assert max(qs) + 4 <= min(t, 30) and min(qs) > max(issue[f"SB{x}"] for x in range(4)) + cfg.lat
                if tile == 1:
                    assert issue[f"q{i}"] + 2 <= min(t, 30) and issue[f"q{i}"] > issue[f"SB{i}"] + cfg.lat
                h = ops.index("|")
                work[t] += ops[:h]
                work[t + 1] = ops[h + 1:] + work[t + 1]
                done[tok] = t + 1
        if cfg.idxlate:
            work[cl[0] - 1] += [("wait", ("idx",))] + [
                f"v_lshl_or_b32 v{hIDX + n}, v{region(7) + 2 * n + 1}, 16, v{region(7) + 2 * n}" for n in range(8)]
        work[32] = [f"v_sub_u32 v{hLa}, v{hG}, v{hLc}",
                    f"v_mul_u32_u24 v{hLa}, 25, v{hLa}",
                    f"s_mov_b32 s{sT0}, 0xaaab",
                    f"v_lshrrev_b32 v{hLa}, 3, v{hLa}",
                    f"v_mul_u32_u24 v{hLa}, s{sT0}, v{hLa}",
                    f"s_sub_u32 s{sT0}, s{sQl}, {ROFF}",
                    f"v_lshrrev_b32 v{hLa}, 17, v{hLa}",
                    f"v_add_u32 v{hLa}, s{sT0}, v{hLa}",
                    f"v_add_u32 v{hRw}, v{hLa}, v{hLc}"] + work[32]
        win = {}
        for k, (tok, job, t) in enumerate(vjobs):
            assert done["S" + tok[1:]] < first_issue[tok]
            nx = vjobs[k + 1][2] if k + 1 < len(vjobs) else NI
            win[tok] = (t, min(t + cfg.vdur, nx, NI))
            done[tok] = win[tok][1] - 1
        lastv = max([w[1] for w in win.values()] + [0])
        sites, ns = {}, 0
        for ls in range(35, NI):
            if not jobs:
                break
            allowed = 1 + 2 * sum(1 for u in range(4) if all(done[f"MB{x}"] < ls for x in range(u + 1)))
            want = cfg.lastsites if ls >= 64 else cfg.tailsites if ls >= lastv else (1 if (ls - voff) % cfg.sitemod[0] in cfg.sitemod[1:] else 0)
            for y in range(want):
                if ns < allowed or allowed == 9:
                    sites[ls] = sites.get(ls, 0) + 1
                    ns += 1
        for tok, job, t in vjobs:
            work[t] += self.job_ops(job)
        nxt_asc = 4 * (cfg.pf0 + len(cfg.pfat))
        explicit = "T" in cfg.order.replace("+", " ").split()
        for k, c in enumerate(cl):
            if explicit:
                for n, it in enumerate(miss[c]):
                    if it == "X":
                        work[c] = self.pf_item()[3] + work[c]
                        miss[c][n] = ([], None, ("pf",), [])
                        nxt_asc += 4
                    if it == "T":
                        if cfg.verbose:
                            print("touch", nxt_asc, "at", c, "first needed", nxt_asc - 4)
                        miss[c][n] = self.pf_item()
                        nxt_asc += 4
                continue
            horizon = (cl[k + 1] if k + 1 < len(cl) else NI) + 4
            while cfg.pf and nxt_asc < 64 and nxt_asc < horizon + cfg.pd:
                miss[c].append(self.pf_item())
                nxt_asc += 4
        if cfg.rewarm:
            assert not cfg.tl
            for c in (cl[1::cfg.rewarm] if isinstance(cfg.rewarm, int) else [x + voff for x in cfg.rewarm]):
                miss[c].append(([], f"global_load_dword v{hPfD}, v{hI1}, s[{sCode}:{sCode + 1}]", ("pf",), []))
        cls = sorted(c for c in cl if miss[c])
        queue = self.group(-2) if cfg.late2 and cfg.pre < 3 else []
        self.steady = True
        for ls in range(NI):
            e.c(f"---- interval {ls}")
            if ls - 1 <= 63 and not (cfg.ab_nodma and ls > 4):
                queue += self.group(ls - 1)
            if ls in cls:
                n = cfg.apre
                m = n + cfg.apost
                vm, queue = queue[:n] + miss[ls] + queue[n:m], queue[m:]
            else:
                prev = max([c for c in cls if c < ls] + [-2])
                nx = min([c for c in cls if c > ls] + [max(prev + 4, ls + 1)])
                future = sum(len(self.group(g - 1)) for g in range(ls + 1, nx) if g - 1 <= 63)
                n = min(len(queue), -(-(len(queue) + future) // (nx - ls)))
                if cfg.bmax and (ls - 1) in cls and nx - ls > 1:
                    n = min(n, cfg.bmax)
                vm, queue = queue[:n], queue[n:]
                if cfg.pf and ls in cfg.pfat:
                    vm = vm + [self.pf_item()]
            c = list(work[ls])
            for y in range(sites.get(ls, 0)):
                c.insert(len(c) // 2, ("site", ls))
            self.cur_ls, self.kitem, self.rest, self.used_early = ls, 0, list(vm), False
            self.interleave(vm, c, cfg.bstart if (ls - 1) in cls else 0.0)
            assert not any(it[2] == ("dma", ls - 3) for it in queue)
            if self.used_early:
                e(f"s_cmp_eq_u32 s{sEl}, -1")
                e(f"s_mov_b32 s{sEl}, {cfg.elastic[0]}")
                e(f"s_cbranch_scc1 L_skip{voff}_{ls}".replace("-", "m"))
            self.wait(("dma", ls - 3))
            if cfg.tl and ls < 63:
                e("s_memtime s[84:85]")
            self.barrier()
            if cfg.elastic:
                e(f"s_memtime s[{sBar}:{sBar + 1}]")
            if self.used_early:
                e(f"L_skip{voff}_{ls}:".replace("-", "m"))
            if cfg.pseg and ls in cfg.pseg:
                e(f"s_memtime s[{82 + 2 * cfg.pseg.index(ls)}:{83 + 2 * cfg.pseg.index(ls)}]")
            if cfg.tl and ls < 63:
                e("s_memtime s[80:81]")
                e("s_waitcnt lgkmcnt(0)")
                e("s_sub_u32 s84, s84, s82")
                e("s_sub_u32 s85, s80, s82")
                e("s_mov_b32 s82, s80")
                e("s_pack_ll_b32_b16 s84, s85, s84")
                e(f"v_writelane_b32 v{hTLr}, s84, {ls + 1}")
        assert not queue

    def program(self):
        e, cfg = self.e, self.cfg
        L, A, B_, C_ = 8, 9, 10, 11
        e("L_helper2:")
        if cfg.rewarm:
            e(f"s_getpc_b64 s[{sCode}:{sCode + 1}]")
            e("L_pc2:")
            e(f"s_sub_u32 s{sCode}, s{sCode}, L_pc2-L_ev0")
            e(f"s_subb_u32 s{sCode + 1}, s{sCode + 1}, 0")
            e(f"s_lshr_b32 s{sT2}, s2, 3")
            e(f"s_lshl2_add_u32 s{sT2}, s{sT2}, s{sH}")
            e(f"s_lshl_b32 s{sT2}, s{sT2}, 8")
            e(f"v_and_b32 v{hI1}, 3, v{L}")
            e(f"v_lshl_add_u32 v{hI1}, v{hI1}, 6, s{sT2}")
            e(f"v_min_u32 v{hI1}, L_code_end-L_ev0-4, v{hI1}")
        for n, srd in ((0, SRD_Q), (3, SRD_MK), (4, SRD_MV), (7, SRD_OUT)):
            e(f"s_add_u32 s{srd}, s{36 + 2 * n}, s60")
            e(f"s_addc_u32 s{srd + 1}, s{37 + 2 * n}, 0")
            e(f"s_mov_b32 s{srd + 2}, {HEADB}")
            e(f"s_mov_b32 s{srd + 3}, 0x20000")
        e(f"s_lshl_b32 s61, s{sHead}, 14")
        e(f"s_add_u32 s{SRD_IDX}, s46, s61")
        e(f"s_addc_u32 s{SRD_IDX + 1}, s47, 0")
        e(f"s_mov_b32 s{SRD_IDX + 2}, 16384")
        e(f"s_mov_b32 s{SRD_IDX + 3}, 0x20000")
        e(f"s_lshr_b32 s{sT0}, s{sHead}, 1")
        e(f"s_lshl_b32 s{sT0}, s{sT0}, 2")
        e(f"s_load_dword s{sT3}, s[48:49], s{sT0}")
        e(f"v_lshrrev_b32 v{A}, 3, v{L}")
        e(f"v_and_b32 v{hLc}, 7, v{L}")
        e(f"v_lshlrev_b32 v{hLc}, 4, v{hLc}")
        e(f"v_mul_u32_u24 v{hG}, {ROWB}, v{A}")
        e(f"v_add_u32 v{hG}, v{hG}, v{hLc}")
        e(f"s_add_u32 s{sT1}, s{sN}, s{sH}")
        e(f"s_mul_i32 s{sRowB}, s{sT1}, {BLKB}")
        e(f"s_sub_u32 s{sT2}, 63, s{sT1}")
        e(f"s_mul_i32 s{sRowA}, s{sT2}, {BLKB}")
        e(f"s_add_u32 s{sRowB2}, s{sRowB}, {16 * ROWB}")
        e(f"s_add_u32 s{sRowA2}, s{sRowA}, {16 * ROWB}")
        e(f"s_lshl_b32 s60, s{sT1}, 8")
        e(f"s_lshl_b32 s61, s{sT2}, 8")
        e(f"s_add_u32 s{sC0}, s{sT1}, 3")
        e(f"s_sub_u32 s{sA0}, 63, s{sN}")
        e(f"s_mul_i32 s{sA0}, s{sA0}, {BLKB}")
        e(f"s_add_u32 s{sA0}, s{sA0}, s{sHoff}")
        e(f"v_lshlrev_b32 v{B_}, 3, v{A}")
        def idx_loads():
            for tile in range(2):
                for i in range(4):
                    r = region(7) + 8 * tile + 2 * i
                    self.vmem(f"buffer_load_dwordx2 {vr(r, 2)}, v{B_}, s[{SRD_IDX}:{SRD_IDX + 3}], s{60 + tile} offen offset:{64 * i}",
                              ("idx",))
        if not cfg.idxlate:
            idx_loads()
        e(f"s_mul_i32 s{sQl}, s{sH}, {RBLK}")
        e(f"s_add_u32 s{sT2}, s{sQl}, {EB}")
        e(f"s_add_u32 s{sQl}, s{sQl}, {RB}")
        e(f"v_add_u32 v{hRw}, s{sT2}, v{hG}")
        e(f"s_mov_b32 s{sScale}, {hex(CSCALE)}")
        e(f"s_mov_b32 s{sMaskHi}, 0xffff0000")
        e(f"s_mov_b32 s{s384}, {ROWB}")
        if cfg.elastic:
            e(f"s_mov_b32 s{sEl}, {cfg.elastic[0]}")
        e(f"s_mov_b32 s{sSelLo}, 0x01000100")
        e(f"s_mov_b32 s{sSelHi}, 0x03020302")
        e(f"s_mov_b32 s{sDone}, 0")
        e("s_waitcnt lgkmcnt(0)")
        emit_gate(e, sT3, sT1, 14, sG, None)
        if cfg.tlbw:
            e(f"s_cmp_eq_u32 s{sH}, 0")
            e(f"s_cselect_b64 s[{sTl}:{sTl + 1}], s[{SRD_MK}:{SRD_MK + 1}], s[{SRD_MV}:{SRD_MV + 1}]")
            e(f"s_cmp_eq_u32 s{sH}, 2")
            e(f"s_cselect_b64 s[{sTl}:{sTl + 1}], s[{SRD_OUT}:{SRD_OUT + 1}], s[{sTl}:{sTl + 1}]")
            e(f"s_cmp_eq_u32 s{sH}, 3")
            e(f"s_cselect_b64 s[{sTl}:{sTl + 1}], s[{SRD_Q}:{SRD_Q + 1}], s[{sTl}:{sTl + 1}]")
            e(f"s_mov_b32 s{sTl + 2}, {HEADB}")
            e(f"s_mov_b32 s{sTl + 3}, 0x20000")
            e(f"v_mul_u32_u24 v{C_}, {cfg.tlbs}, v{L}")
            self.vmem(f"buffer_load_dword v{hPfD}, v{C_}, s[{sTl}:{sTl + 3}], 0 offen nt", ("pf",))
        if cfg.qfirst:
            e("s_barrier")
        if cfg.qfirst == 1 or cfg.k0late:
            for it in self.group(-5):
                self.put(it)
        if cfg.pre < 1:
            for it in self.group(-4):
                self.put(it)
        if cfg.pfearly:
            self.put(self.pf_item())
        if cfg.early3 and cfg.pre < 2:
            for it in self.group(-3):
                self.put(it)
        self.wait(("dma", -5))
        jobs = ([("s", 0, i) for i in range(4)] + [("s", 1, i) for i in range(4)]
                + [("v", 0, i) for i in range(4)] + [("v", 1, i) for i in range(4)])
        if cfg.ab_nojobs:
            jobs = []
        stamp(e, cfg, sHStamp, 1)
        e("s_barrier")
        if cfg.tl or (cfg.pseg and cfg.pseg[0] == -2):
            e("s_memtime s[82:83]")
        if not cfg.early3 and cfg.pre < 2:
            for it in self.group(-3):
                self.put(it)
        if not cfg.late2 and cfg.pre < 3:
            for it in self.group(-2):
                self.put(it)
        for x in range(cfg.pf0 - 1 - cfg.pfearly if cfg.pf else 0):
            self.put(self.pf_item())
        if cfg.idxlate:
            idx_loads()
        self.wait(("dma", -4))
        if not cfg.idxlate:
            self.wait(("idx",))
        for n in range(0 if cfg.idxlate else 8):
            e(f"v_lshl_or_b32 v{hIDX + n}, v{region(7) + 2 * n + 1}, 16, v{region(7) + 2 * n}")
            if cfg.ab_idx:
                e(f"v_and_b32 v{hIDX + n}, {hex(cfg.ab_idx * 0x10001)}, v{hIDX + n}")
        if cfg.tl:
            e("s_memtime s[84:85]")
        e("s_barrier")
        if cfg.elastic:
            e(f"s_memtime s[{sBar}:{sBar + 1}]")
        if cfg.tl:
            e("s_memtime s[80:81]")
            e("s_waitcnt lgkmcnt(0)")
            e("s_sub_u32 s84, s84, s82")
            e("s_sub_u32 s85, s80, s82")
            e("s_mov_b32 s82, s80")
            e("s_pack_ll_b32_b16 s84, s85, s84")
            e(f"v_writelane_b32 v{hTLr}, s84, 0")

        for x in [f"v_and_b32 v{hM1}, 16, v{hLc}",
                  f"s_mov_b32 s{sT0}, 0xffff",
                  f"v_lshlrev_b32 v{hM1}, v{hM1}, s{sT0}",
                  f"v_bfe_i32 v{hT}, v{hLc}, 5, 1",
                  f"v_bfi_b32 v{hM0}, v{hT}, 0, v{hM1}",
                  f"v_and_b32 v{hM1}, v{hT}, v{hM1}"]:
            e(x)
        vm0, npf0 = list(self.vm), self.npf
        nv = len(cfg.voffs)
        if nv > 1:
            e(f"s_lshr_b32 s{sT0}, s{sHead}, 3")
            e(f"s_and_b32 s{sT0}, s{sT0}, {nv - 1}")
            for v in range(1, nv):
                e(f"s_cmp_eq_u32 s{sT0}, {v}")
                e(f"s_cbranch_scc1 L_var{v}")
        for v, voff in enumerate(cfg.voffs):
            e(f"L_var{v}:")
            self.vm, self.npf = list(vm0), npf0
            self.schedule(jobs, voff)
            if v + 1 < nv:
                e("s_branch L_tail_done")
        e("L_tail_done:")
        obs = [hT, hT + 4, hIDX, hIDX + 4]
        cos = [[hC + 8 + 2 * i, hC + 2 * i] for i in range(4)]
        if cfg.dend:
            e("s_memtime s[64:65]" if False else "s_memtime s[80:81]")
        for y in range(cfg.presites):
            self.combine_site(67)
        e(f"s_setprio {cfg.endprio}")
        self.barrier()
        if cfg.dend:
            e("s_memtime s[82:83]")
            e("s_waitcnt lgkmcnt(0)")
        for i in range(4):
            e(f"ds_read_b64 {vr(hC + 2 * i, 2)}, v{hLa} offset:{orow(i) + 384}")
        for i in range(4):
            e(f"ds_read_b128 {vr(obs[i], 4)}, v{hRw} offset:{orow(i)}")
        e("s_waitcnt lgkmcnt(4)")
        for i in range(4):
            for x in self.coef_ins(hC + 2 * i, cos[i]):
                e(x)

        def acc_cols(a, bufs, left):
            for u in range(2 if cfg.flo else 1):
                for i in range(4):
                    if u == 0:
                        e(f"s_waitcnt lgkmcnt({3 - i + left})")
                    for k in (2 * a, 2 * a + 1):
                        e(self.comb_mfma1(1, i, k, bufs[i] - 4 * a, cos[i], u))

        def out_cols(a):
            for i in range(4):
                for x in self.comb_out(1, i, (a,)):
                    e(x)
        acc_cols(0, obs, 0)
        if cfg.dend:
            e("s_memtime s[84:85]")
        for a in (1, 2):
            if a == 1 or len(cfg.endpub) == 2:
                e("s_barrier")
            if cfg.dend:
                e(f"s_memtime s[{84 + 2 * a}:{85 + 2 * a}]")
                e("s_waitcnt lgkmcnt(0)")
            for i in range(4):
                e(f"ds_read_b128 {vr(obs[i], 4)}, v{hRw} offset:{orow(i) + 128 * a}")
            out_cols(a - 1)
            acc_cols(a, obs, 0)
        out_cols(2)
        e("L_rest:")
        e(f"s_cmp_ge_u32 s{sDone}, 9")
        e("s_cbranch_scc1 L_fin")
        self.combine_site(None)
        e("s_branch L_rest")
        e("L_fin:")
        if cfg.dend:
            e("s_memtime s[90:91]")
            e("s_waitcnt vmcnt(0)")
            e("s_memtime s[92:93]")
            e("s_waitcnt lgkmcnt(0)")
            emit_dump(e, 80, 7)
        if cfg.probe:
            e("s_load_dwordx2 s[4:5], s[0:1], 72")
            e("s_mov_b32 s6, 0x100000")
            e("s_mov_b32 s7, 0x20000")
            e("s_lshl_b32 s60, s2, 3")
            e(f"s_add_u32 s60, s60, s{sW}")
            e("s_lshl_b32 s60, s60, 2")
            e("s_waitcnt vmcnt(0)")
            e("s_memrealtime s[80:81]")
            e("s_waitcnt lgkmcnt(0)")
            e("v_mov_b32 v0, s80\nv_mov_b32 v4, 0")
            e("buffer_store_dword v0, v4, s[4:7], s60 offen")
            if cfg.pseg:
                e("s_sub_u32 s84, s84, s82")
                e("s_lshl_b32 s60, s2, 5")
                e("v_mov_b32 v1, s84")
                e("buffer_store_dword v1, v4, s[4:7], s60 offen offset:12")
        if cfg.debug:
            e("s_waitcnt vmcnt(0)")
            stamp(e, cfg, sHStamp, 2)
            emit_dump(e, sHStamp, 3)
        if cfg.tl:
            e("s_load_dwordx2 s[4:5], s[0:1], 72")
            e("s_mov_b32 s6, 0x100000")
            e("s_mov_b32 s7, 0x20000")
            e(f"s_lshl_b32 s60, s2, 2")
            e(f"s_add_u32 s60, s60, s{sH}")
            e(f"s_lshl_b32 s60, s60, 9")
            e(f"s_add_u32 s60, s60, 0x80000")
            e("v_mbcnt_lo_u32_b32 v1, -1, 0")
            e("v_mbcnt_hi_u32_b32 v1, -1, v1")
            e("v_lshlrev_b32 v1, 2, v1")
            e("s_waitcnt lgkmcnt(0)")
            e(f"buffer_store_dword v{hTLr}, v1, s[4:7], s60 offen")
        e("s_endpgm")

        for x in self.ool:
            e(x)
        e.c("output of the first tile, one piece per call")
        e("L_combB:")

        def tree(lo, hi):
            if hi - lo == 1:
                self.combine_state(lo)
                if lo == 8:
                    e(f"s_mov_b32 s{sC0}, 1000")
                e(f"s_setpc_b64 s[{sLink}:{sLink + 1}]")
                return
            mid = (lo + hi) // 2
            e(f"s_cmp_lt_u32 s{sDone}, {mid}")
            e(f"s_cbranch_scc0 L_cb_{mid}_{hi}")
            tree(lo, mid)
            e(f"L_cb_{mid}_{hi}:")
            tree(mid, hi)
        tree(0, 9)


HEADER = open("cdna_kernels/" + NAME + ".s.ref").read().split("; Override launch")[0]


DESC = """;
;     Q is pre-scaled by scale*log2(e); the reference max (true max of the tile's first block, +16) enters as the
;     C operand of the first QK MFMA; every block is checked (any p >= 2) and L_fb* moves the reference to the true
;     running max and rescales O / row sums when that happens.  Row sums come from one sparse MFMA per block.
;  waves 4-7 (helpers): LDS-DMA of K/V blocks into rings (one barrier per block), L2 touches shared by the eight
;     workgroups of a head, kNN-memory attention (row gathers, 4x4x4 MFMA dot products / weighted sums, two-way
;"""


def generate(cfg):
    ABL[0] = cfg.ab
    e = Emit()
    e.L.append(HEADER.rstrip("\n"))
    if cfg.probe and cfg.probe != 1:
        e.L.append(f"; @launch kernel={NAME}_kernel grid=(256,1,1) block=(512,1,1) lds={LDS_TOTAL}")
        e.L.append(f"; @launch kernel=probe_kernel grid=(1,1,1) block=(64,1,1) lds=0")
    else:
        e.L.append(f"; @launch grid=(256,1,1) block=(512,1,1) lds={LDS_TOTAL}")
    e.L.append(DESC)
    e('.amdgcn_target "amdgcn-amd-amdhsa--gfx950"')
    e(".text")
    e(f".globl {NAME}_kernel")
    e(".p2align 8")
    e(f".type {NAME}_kernel,@function")
    e(f"{NAME}_kernel:")
    e("s_cmp_ge_u32 s2, 256")
    e("s_cbranch_scc1 L_exit")
    e("s_load_dwordx16 s[36:51], s[0:1], 0")
    if cfg.warm_code:
        e("s_getpc_b64 s[62:63]")
        e("L_pc:")
        e("s_lshr_b32 s60, s2, 3")
        big = len(cfg.voffs) > 1 or cfg.dual is not None
        e(f"s_lshl_b32 s60, s60, {11 if big else 10}")
        e(f"v_lshrrev_b32 v2, {4 if big else 5}, v0")
        e("v_lshl_add_u32 v2, v2, 6, s60")
        e(f"v_min_u32 v2, L_code_end-L_pc-4, v2")
        e(f"global_load_dword v{WARMD}, v2, s[62:63]")
    e("v_lshrrev_b32 v1, 6, v0")
    e(f"s_lshr_b32 s{sHead}, s2, 3" if cfg.hostile else f"s_and_b32 s{sHead}, s2, 31")
    e(f"v_readfirstlane_b32 s{sW}, v1")
    e(f"s_and_b32 s{sP}, s2, 7" if cfg.hostile else f"s_lshr_b32 s{sP}, s2, 5")
    e(f"s_lshl_b32 s{sN}, s{sP}, 2")
    e(f"s_sub_u32 s{sN}, 60, s{sN}")
    e(f"s_cmp_lt_u32 s{sW}, 4")
    h = Helper(e, cfg)
    if cfg.cfirst:
        e("s_cbranch_scc0 L_helper")
        emit_compute(e, cfg, h.prologue)
    else:
        e("s_cbranch_scc1 L_compute")
        h.prologue()
        emit_compute(e, cfg)
    h.program()
    e("L_exit:")
    e("s_endpgm")
    e("L_code_end:")
    if cfg.probe and cfg.probe != 1:
        kind, K = cfg.probe
        e(".globl probe_kernel\n.p2align 8\n.type probe_kernel,@function\nprobe_kernel:")
        e("s_cmp_ge_u32 s2, 1\ns_cbranch_scc1 P_exit")
        e("s_load_dwordx2 s[4:5], s[0:1], 72\ns_load_dwordx2 s[8:9], s[0:1], 64\ns_mov_b32 s6, 0x100000\ns_mov_b32 s7, 0x20000")
        e("s_mov_b32 s10, 256\ns_mov_b32 s11, 0x20000")
        e("v_lshlrev_b32 v1, 7, v0\ns_waitcnt lgkmcnt(0)")
        for j in range(4):
            e(f"buffer_load_dwordx4 v[{8 * j + 8}:{8 * j + 11}], v1, s[4:7], 0 offen offset:{32 * j}")
            e(f"buffer_load_dwordx4 v[{8 * j + 12}:{8 * j + 15}], v1, s[4:7], 0 offen offset:{32 * j + 16}")
        e("s_waitcnt vmcnt(0)\nv_readfirstlane_b32 s20, v8\ns_sub_u32 s20, s20, 0x10000")
        e("v_mov_b32 v2, -1\nv_mov_b32 v3, 0\nv_mov_b32 v4, 0\nv_mov_b32 v5, 0\nv_mov_b32 v6, 0\nv_mov_b32 v7, 0\nv_mov_b32 v41, 0")
        for j in range(4):
            b = 8 * j + 8
            for r in (0, 1, 2, 4, 5, 6, 7):
                e(f"v_subrev_u32 v{b + r}, s20, v{b + r}")
            e(f"v_max3_u32 v{b + 4}, v{b + 4}, v{b + 5}, v{b + 6}\nv_max_u32 v{b + 4}, v{b + 4}, v{b + 7}")
            e(f"v_min_u32 v2, v2, v{b}\nv_max_u32 v3, v3, v{b + 4}\nv_max_u32 v41, v41, v{b}")
            e(f"v_sub_u32 v40, v{b + 1}, v{b}\nv_add_u32 v4, v4, v40")
            e(f"v_sub_u32 v40, v{b + 2}, v{b + 1}\nv_add_u32 v5, v5, v40")
            e(f"v_add_u32 v6, v6, v{b + 3}")
            e(f"v_sub_u32 v40, v{b + 4}, v{b + 2}\nv_add_u32 v7, v7, v40")
        e("s_mov_b32 s22, -1\ns_mov_b32 s23, 0\ns_mov_b32 s24, 0\ns_mov_b32 s25, 0\ns_mov_b32 s26, 0\ns_mov_b32 s27, 0\ns_mov_b32 s28, 0\ns_mov_b32 s21, 0")
        e("P_red:")
        for r, op in ((2, "s_min_u32"), (3, "s_max_u32"), (4, "s_add_u32"), (5, "s_add_u32"), (6, "s_add_u32"), (7, "s_add_u32")):
            e(f"v_readlane_b32 s30, v{r}, s21\ns_nop 3\n{op} s{20 + r}, s{20 + r}, s30")
        e("v_readlane_b32 s30, v41, s21\ns_nop 3\ns_max_u32 s28, s28, s30")
        e("s_add_u32 s21, s21, 1\ns_cmp_lt_u32 s21, 64\ns_cbranch_scc1 P_red")
        e("s_sub_u32 s23, s23, s22\ns_sub_u32 s28, s28, s22\ns_lshl_b32 s23, s23, 8\ns_lshl_b32 s28, s28, 8\ns_lshr_b32 s26, s26, 4")
        for k in range(6):
            e(f"v_mov_b32 v2, s{23 + k}\nv_mov_b32 v3, 0\nbuffer_store_dword v2, v3, s[8:11], 0 offen offset:{4 * k}\ns_waitcnt vmcnt(0)")
        e(f"s_mul_i32 s31, s{23 + kind}, {K}\ns_lshr_b32 s31, s31, 8\ns_min_u32 s31, s31, 100000")
        e("s_memrealtime s[32:33]\ns_waitcnt lgkmcnt(0)")
        e("P_spin:\ns_memrealtime s[34:35]\ns_waitcnt lgkmcnt(0)\ns_sub_u32 s36, s34, s32\ns_cmp_lt_u32 s36, s31\ns_cbranch_scc1 P_spin")
        e("P_exit:\ns_endpgm")
    e.L.append(f""".section .rodata,"a"
.p2align 6
.amdhsa_kernel {NAME}_kernel
  .amdhsa_next_free_vgpr 256
  .amdhsa_next_free_sgpr 102
  .amdhsa_accum_offset 256
  .amdhsa_group_segment_fixed_size 0
  .amdhsa_kernarg_size 80
  .amdhsa_user_sgpr_count 2
  .amdhsa_user_sgpr_kernarg_segment_ptr 1
  .amdhsa_system_sgpr_workgroup_id_x 1
.end_amdhsa_kernel""")
    if cfg.probe and cfg.probe != 1:
        e.L.append(""".p2align 6
.amdhsa_kernel probe_kernel
  .amdhsa_next_free_vgpr 64
  .amdhsa_next_free_sgpr 64
  .amdhsa_accum_offset 64
  .amdhsa_group_segment_fixed_size 0
  .amdhsa_kernarg_size 80
  .amdhsa_user_sgpr_count 2
  .amdhsa_user_sgpr_kernarg_segment_ptr 1
  .amdhsa_system_sgpr_workgroup_id_x 1
.end_amdhsa_kernel""")
    return e.text()


if __name__ == "__main__":
    cfg = Cfg()
    out = "cdna_kernels/" + NAME + ".s"
    for a in sys.argv[1:]:
        if a.startswith("-o"):
            out = a[2:]
        else:
            k, v = a.split("=", 1)
            assert hasattr(cfg, k), k
            setattr(cfg, k, eval(v))
    open(out, "w").write(generate(cfg))
    import subprocess
    r = subprocess.run(["clang", "-x", "assembler", "-target", "amdgcn-amd-amdhsa", "-mcpu=gfx950",
                        "-c", out, "-o", "chk.o"], capture_output=True, text=True)
    if r.returncode:
        print("ASSEMBLY FAILED", out, r.stderr[:1500])
        import os
        os.remove(out)
        sys.exit(1)
```

```python
import sys, struct, math

NAME = "standalone__memory_aug_memorizing_tr__prompt"
ROWB = 384
BLKB = 32 * ROWB
HEADB = 2048 * ROWB
KRG = 3104
KBLK = 4 * KRG
VSLOT, NVSLOT = KBLK, 5
KB = NVSLOT * VSLOT
KSLOT = 2 * KBLK
RBLK = 12864
LDS_TOTAL = 163840
RB = LDS_TOTAL - 4 * RBLK
EB = RB - 4 * RBLK
ROFF = RB - EB
PADROW = 400
BIAS = 16.0
assert KB + 4 * KBLK <= RB and EB >= 4 * VSLOT


def orow(i):
    return i * 3200 + 64 * (i >> 1)


def f2u(x):
    return struct.unpack("<I", struct.pack("<f", x))[0]


CSCALE = f2u(192 ** -0.5 * math.log2(math.e))
LOG2E = f2u(math.log2(math.e))
NINF = 0xFF800000


class Cfg:
    debug = False
    tl = False
    warm_code = True
    nt_kv = ""
    nt_q = "nt"
    nt_g = ""
    nt_out = "sc0 sc1 nt"
    nt_pf = ""
    nt_pf_from = 0
    nt_qa = None
    qcont = False
    pf2 = None
    pf = True
    pd = 1
    mfma_v = True
    mfma_s = True
    group = True
    bstart = 0.25
    lastbar = 7
    lastroom = 2
    endroom = 3
    wfirst = True
    endpub = (4, 8)
    endprio = 3
    win = 0
    pfx2 = True
    presites = 3
    tlbw = False
    tlbs = 65536
    m4prio = 3
    sdur = 2
    firstbar = 2
    sitemod = (2, 0)
    vfirst = False
    tailsites = 2
    lastsites = 3
    cl = [2, 4, 6, 8, 10, 12, 16, 20, 24, 26, 28, 30, 32, 34, 36, 38, 40, 42, 44, 46, 48, 50, 53, 56, 59]
    order = ("SB0 T+SB1a SB1b+SB2a T+SB2b SB3 T+q0 T+q1 T+q2 T+q3 SA0 T+SA1a SA2 T+SA1b SA3 T+MB0a MB0b+MB1a "
             "T+MB1b MB2 T+MB3a T+MB3b MA0 T+MA1a T+MA1b MA2 MA3")
    lat = 3
    vdur = 1
    late2 = True
    early3 = False
    pfat = ()
    pf0 = 2
    pdesc = 0
    sitew = 0.45
    sburst = 6
    swplan = (19, 16, 999)
    swstep = 3
    swbar = (240, 9999)
    wsite = (0.14, 0.36, 0.14, 0.36)
    ab_nojobs = False
    ab_nodma = False
    ab_idx = 0
    ab_coarse = 0
    ab_noburst = False
    ab = ""
    seq = 1
    stag = ()
    qfirst = 0
    dend = False
    dst = False
    cfirst = True
    wprio = None
    nt_outB = None
    rewarm = 0
    feww = False
    qrr = True
    pre = 0
    preprio = (2, 1, 0)
    pfskip = False
    pfearly = 0
    k0late = False
    idxlate = True
    pseg = None
    bmax = 0
    apost = 0
    apre = 0
    verbose = False
    voffs = (0,)
    dual = 1
    dualk = 1
    flo = False
    elastic = None
    rot = 0
    outearly = (1, 2)
    publag = 1
    hostile = False
    probe = None
    dsw = False


class Emit:
    def __init__(self):
        self.L = []

    def __call__(self, s):
        for x in s.split("\n"):
            x = x.strip()
            if x:
                self.L.append(x if x.endswith(":") or x.startswith(".") else "  " + x)

    def c(self, s):
        self.L.append("  ; " + s)

    def text(self):
        return "\n".join(self.L) + "\n"


def vr(a, n):
    return f"v[{a}:{a + n - 1}]"


sW, sHead, sP, sN = 3, 52, 53, 54
SRD_Q, SRD_K, SRD_V, SRD_MK, SRD_MV, SRD_IDX, SRD_OUT = 8, 12, 16, 20, 24, 28, 32
sEv, sEvId, sThr = 55, 56, 57
sFbLink = 58
sMask0 = 64
sStamp = 12
sCScale = 96
sCMaskHi = 98
sRW = 99
sCOmg = 100
sHiHalf, sOddRow = 4, 6
sH, sG, sOMG, sC0, sDone = 55, 56, 57, 58, 59
sLink = 60
sT0, sT1, sT2, sT3 = 62, 63, 64, 65
sKoff, sVoff = 66, 67
sRowB, sRowA = 68, 69
sKl, sVl = 70, 71
sSw, sDir = 72, 73
sScale = 74
sMaskHi = 75
sRowB2, sRowA2 = 76, 77
s384 = 78
sX = 79
SRD_PF = 4
sHStamp = 80
sKlT, sVlT = 86, 90
sA0, sQl = 95, 96
sTl = 88
sSelLo, sSelHi = 92, 93
sEl = 94
sRot = 79
sNow, sBar = 86, 70
sCode = 98
sHl, sHoff = 100, 101

O0, Q0 = 0, 96
SB = [144, 160]
PB = [176, 184]
NM = 192
LS = 200
F0 = 208
ONES = 240
E0, NE = 244, 4
vAK, vAK2, vAV, vOR, vT1, vT2, vAL, vAO = 248, 249, 250, 251, 252, 253, 254, 255
MF16 = "v_mfma_f32_16x16x32_bf16"


def frag(f):
    return F0 + 4 * (f % 8)


def kread(f, par):
    kt, ks = divmod(f, 6)
    return [f"ds_read_b128 {vr(frag(f), 4)}, v{vAK} offset:{par * KBLK + kt * 4 * ROWB + ks * 64}"]


def vread_at(dt, r):
    return [f"ds_read_b64_tr_b16 {vr(r + 2 * t, 2)}, v{vAV} offset:{32 * dt + t * 4 * ROWB}" for t in range(2)]


def mfma_qk(f, q, par, c0=None):
    kt, ks = divmod(f, 6)
    d = SB[1 - par] + 8 * kt + 4 * q
    c = vr(d, 4) if ks else (c0 if c0 is not None else vr(NM + 4 * q, 4))
    return f"{MF16} {vr(d, 4)}, {vr(frag(f), 4)}, {vr(Q0 + 24 * q + 4 * ks, 4)}, {c}"


def mfma_pv(dt, q, r, par):
    o = O0 + 8 * dt + 4 * q
    return f"{MF16} {vr(o, 4)}, {vr(r, 4)}, {vr(PB[par] + 4 * q, 4)}, {vr(o, 4)}"


vIDX = LS + 4


def sparse_rs():
    return sum(1 for m, _ in SEQ if m[0] == "rs") == 1


def mfma_rs(q, par):
    if sparse_rs():
        return f"v_smfmac_f32_16x16x64_bf16 {vr(LS, 4)}, {vr(ONES, 4)}, {vr(PB[par], 8)}, v{vIDX}"
    return f"{MF16} {vr(LS + 4 * q, 4)}, {vr(ONES, 4)}, {vr(PB[par] + 4 * q, 4)}, {vr(LS + 4 * q, 4)}"


def E(i):
    if SEQ is SEQ13:
        return [E0, E0 + 1, E0 + 2, E0 + 3, LS + 5, LS + 6][i % 6]
    return E0 + i % NE


def preg(P_, k):
    kt, q, j = k >> 2, (k >> 1) & 1, k & 1
    return P_ + 4 * q + 2 * kt + j


SEQ = [
    ((0, 0), ["R7"]), ((0, 1), ["R8", "c4"]),
    ((1, 0), ["e11"]), ((1, 1), ["R9", "W"]),
    ((2, 0), ["e12"]), ((2, 1), ["R10", "c5"]),
    ((3, 0), ["e13"]), ((3, 1), ["R11", "o1"]),
    ((4, 0), ["c6", "W"]), ((4, 1), ["R12"]),
    ((5, 0), ["e14"]), ((5, 1), ["R13"]),
    ((6, 0), ["e15"]), ((6, 1), ["R14"]),
    ((7, 0), ["o2", "W"]), ((7, 1), ["R15"]),
    ((8, 0), ["c7", "t1"]), ((8, 1), ["R16"]),
    ((9, 0), ["o3", "t2"]), ((9, 1), ["R17"]),
    ((10, 0), ["cmp", "W"]), ((10, 1), ["R18"]),
    ((11, 0), ["chk", "swapK"]), ((11, 1), ["R19"]),
    ((12, 0), ["e0n"]), ((12, 1), ["R20"]),
    (("rs", 0), ["e1n"]),
    ((13, 0), ["c0n", "W"]), ((13, 1), ["R21"]),
    (("rs", 1), ["e2n"]),
    ((14, 0), ["e3n"]), ((14, 1), ["R22"]),
    ((15, 0), ["e4n"]), ((15, 1), ["R23"]),
    ((16, 0), ["bar", "c1n"]), ((16, 1), ["R24", "W"]),
    ((17, 0), ["e5n"]), ((17, 1), ["R25", "vmin"]),
    ((18, 0), ["e6n"]), ((18, 1), ["R26", "c2n"]),
    ((19, 0), ["e7n"]), ((19, 1), ["R27", "W"]),
    ((20, 0), ["e8n"]), ((20, 1), ["R28", "c3n"]),
    ((21, 0), ["e9n"]), ((21, 1), ["R29", "o0n"]),
    ((22, 0), ["ssub"]), ((22, 1), ["R30", "W"]),
    ((23, 0), ["e10n"]), ((23, 1), ["evt"]),
]
SEQ3 = [
    ((0, 0), ["R7", "c4"]), ((1, 0), ["e11"]), ((2, 0), ["e12"]),
    ((0, 1), ["R8", "c5"]), ((1, 1), ["R9", "o1"]), ((2, 1), ["R10", "W"]),
    ((3, 0), ["e13"]), ((4, 0), ["e14"]), ((5, 0), ["e15"]),
    ((3, 1), ["R11", "c6"]), ((4, 1), ["R12"]), ((5, 1), ["R13a", "W"]),
    ((6, 0), ["R13b", "c7"]), ((7, 0), ["o2", "t1"]), ((8, 0), ["o3", "t2"]),
    ((6, 1), ["R14"]), ((7, 1), ["R15"]), ((8, 1), ["R16a", "W"]),
    ((9, 0), ["R16b", "cmp"]), ((10, 0), ["swapK"]), ((11, 0), ["chk", "W"]),
    ((9, 1), ["R17"]), ((10, 1), ["R18"]), ((11, 1), ["R19"]),
    ((12, 0), ["e0n"]), ((12, 1), ["R20"]),
    (("rs", 0), ["e1n"]),
    ((13, 0), ["c0n", "W"]), ((13, 1), ["R21"]),
    (("rs", 1), ["e2n"]),
    ((14, 0), ["e3n"]), ((14, 1), ["R22"]),
    ((15, 0), ["e4n"]), ((15, 1), ["R23"]),
    ((16, 0), ["bar", "c1n"]), ((16, 1), ["R24", "W"]),
    ((17, 0), ["e5n"]), ((17, 1), ["R25", "vmin"]),
    ((18, 0), ["e6n"]), ((18, 1), ["R26", "c2n"]),
    ((19, 0), ["e7n"]), ((19, 1), ["R27", "W"]),
    ((20, 0), ["e8n"]), ((20, 1), ["R28", "c3n"]),
    ((21, 0), ["e9n"]), ((21, 1), ["R29", "o0n"]),
    ((22, 0), ["ssub"]), ((22, 1), ["R30", "W"]),
    ((23, 0), ["e10n"]), ((23, 1), ["evt"]),
]
SEQ4 = [
    ((0, 0), ["e10"]), ((0, 1), ["R8", "c4"]),
    ((1, 0), ["e11"]), ((1, 1), ["R9", "W"]),
    ((2, 0), ["e12"]), ((2, 1), ["R10", "c5"]),
    ((3, 0), ["e13"]), ((3, 1), ["R11", "W"]),
    ((4, 0), ["e14"]), ((4, 1), ["R12"]),
    ((5, 0), ["e15"]), ((5, 1), ["R13a", "W"]),
    ((6, 0), ["R13b", "c6"]), ((6, 1), ["R14a", "c7"]),
    ((7, 0), ["R14b", "o0"]), ((7, 1), ["R15a", "o1"]),
    ((8, 0), ["R15b", "o2"]), ((8, 1), ["R16a", "W"]),
    ((9, 0), ["R16b", "o3"]), ((9, 1), ["R17a", "cmp"]),
    ((10, 0), ["R17b", "t1"]), ((10, 1), ["R18a", "swapK"]),
    ((11, 0), ["R18b", "chk"]), ((11, 1), ["R19a", "W"]),
    ((12, 0), ["R19b", "t2"]), ((12, 1), ["R20a", "ssub"]),
    (("rs", 0), ["e0n"]),
    ((13, 0), ["R20b"]), ((13, 1), ["R21a", "W"]),
    (("rs", 1), ["e1n"]),
    ((14, 0), ["R21b", "c0n"]), ((14, 1), ["R22"]),
    ((15, 0), ["e2n"]), ((15, 1), ["R23a"]),
    ((16, 0), ["R23b", "bar"]), ((16, 1), ["R24", "W"]),
    ((17, 0), ["e3n"]), ((17, 1), ["R25", "c1n"]),
    ((18, 0), ["e4n"]), ((18, 1), ["R26", "vmin"]),
    ((19, 0), ["e5n"]), ((19, 1), ["R27", "W"]),
    ((20, 0), ["e6n"]), ((20, 1), ["R28", "c2n"]),
    ((21, 0), ["e7n"]), ((21, 1), ["R29", "c3n"]),
    ((22, 0), ["e8n"]), ((22, 1), ["R30", "W"]),
    ((23, 0), ["e9n"]), ((23, 1), ["R31", "evt"]),
]
PVPART = [
    ((12, 0), ["R19b", "t2"]), ((12, 1), ["W", "R20a"]),
    (("rs", 0), ["e0n"]),
    ((13, 0), ["R20b"]), ((13, 1), ["R21a"]),
    (("rs", 1), ["W", "e1n"]),
    ((14, 0), ["R21b", "c0n"]), ((14, 1), ["W", "R22"]),
    ((15, 0), ["e2n"]), ((15, 1), ["W", "R23"]),
    ((16, 0), ["bar", "e3n"]), ((16, 1), ["W", "R24", "vmin"]),
    ((17, 0), ["e4n"]), ((17, 1), ["W", "R25", "c1n"]),
    ((18, 0), ["e5n"]), ((18, 1), ["W", "R26"]),
    ((19, 0), ["e6n"]), ((19, 1), ["W", "R27", "c2n"]),
    ((20, 0), ["e7n"]), ((20, 1), ["W", "R28", "o0n"]),
    ((21, 0), ["e8n"]), ((21, 1), ["W", "R29", "c3n"]),
    ((22, 0), ["ssub", "e9n"]), ((22, 1), ["W", "R30"]),
    ((23, 0), ["W", "e10n"]), ((23, 1), ["evt"]),
]
SEQ5 = [
    ((0, 0), ["R7", "c4"]), ((0, 1), ["W", "R8", "o1"]),
    ((1, 0), ["e11"]), ((1, 1), ["W", "R9"]),
    ((2, 0), ["e12"]), ((2, 1), ["W", "R10", "c5"]),
    ((3, 0), ["e13"]), ((3, 1), ["W", "R11"]),
    ((4, 0), ["e14"]), ((4, 1), ["W", "R12"]),
    ((5, 0), ["e15"]), ((5, 1), ["W", "R13a", "c6"]),
    ((6, 0), ["R13b", "c7"]), ((6, 1), ["W", "R14a", "o2"]),
    ((7, 0), ["R14b"]), ((7, 1), ["W", "R15a", "o3"]),
    ((8, 0), ["R15b"]), ((8, 1), ["W", "R16a", "cmp"]),
    ((9, 0), ["R16b", "swapK"]), ((9, 1), ["W", "R17a"]),
    ((10, 0), ["R17b", "t1"]), ((10, 1), ["W", "R18"]),
    ((11, 0), ["chk"]), ((11, 1), ["W", "R19a"]),
] + PVPART
SEQ6 = [
    ((0, 0), ["W", "R7", "c4"]), ((1, 0), ["W", "e11"]), ((2, 0), ["e12"]),
    ((0, 1), ["R8", "o1"]), ((1, 1), ["R9", "c5"]), ((2, 1), ["W", "R10"]),
    ((3, 0), ["W", "e13"]), ((4, 0), ["W", "e14"]), ((5, 0), ["e15"]),
    ((3, 1), ["R11", "c6"]), ((4, 1), ["R12a", "c7"]), ((5, 1), ["W", "R12b", "o2"]),
    ((6, 0), ["W", "R13a", "o3"]), ((7, 0), ["W", "R13b", "cmp"]), ((8, 0), ["swapK", "t1"]),
    ((6, 1), ["R14"]), ((7, 1), ["R15a"]), ((8, 1), ["W", "R15b"]),
    ((9, 0), ["W", "R16a"]), ((10, 0), ["W", "R16b"]), ((11, 0), ["chk"]),
    ((9, 1), ["R17"]), ((10, 1), ["R18"]), ((11, 1), ["W", "R19a"]),
] + PVPART
SEQ7 = [
    ((0, 0), ["W", "R7", "c4"]), ((1, 0), ["W", "e10"]), ((2, 0), ["e11"]),
    ((0, 1), ["R8", "o1"]), ((1, 1), ["R9", "c5"]), ((2, 1), ["W", "R10"]),
    ((3, 0), ["W", "e12"]), ((4, 0), ["W", "e13"]), ((5, 0), ["e14"]),
    ((3, 1), ["R11", "c6"]), ((4, 1), ["R12a", "o2"]), ((5, 1), ["W", "R12b"]),
    ((6, 0), ["W", "e15"]), ((7, 0), ["W", "R13a", "c7"]), ((8, 0), ["R13b", "o3"]),
    ((6, 1), ["R14"]), ((7, 1), ["R15a", "cmp"]), ((8, 1), ["W", "R15b", "t1"]),
    ((9, 0), ["W", "R16a", "swapK"]), ((10, 0), ["W", "R16b"]), ((11, 0), ["chk"]),
    ((9, 1), ["R17"]), ((10, 1), ["R18"]), ((11, 1), ["W", "R19a"]),
    ((12, 0), ["R19b", "t2"]), ((12, 1), ["W", "R20a"]),
    (("rs", 0), ["e0n"]),
    ((13, 0), ["R20b"]), ((13, 1), ["R21a"]),
    (("rs", 1), ["W", "e1n"]),
    ((14, 0), ["R21b", "c0n"]), ((14, 1), ["W", "R22"]),
    ((15, 0), ["e2n"]), ((15, 1), ["W", "R23"]),
    ((16, 0), ["bar"]), ((16, 1), ["W", "R24", "vmin"]),
    ((17, 0), ["e3n"]), ((17, 1), ["W", "R25"]),
    ((18, 0), ["e4n"]), ((18, 1), ["W", "R26", "c1n"]),
    ((19, 0), ["e5n"]), ((19, 1), ["W", "R27"]),
    ((20, 0), ["e6n"]), ((20, 1), ["W", "R28", "c2n"]),
    ((21, 0), ["e7n"]), ((21, 1), ["W", "R29", "o0n"]),
    ((22, 0), ["ssub", "e8n"]), ((22, 1), ["W", "R30", "c3n"]),
    ((23, 0), ["W", "e9n"]), ((23, 1), ["evt"]),
]
SEQ8 = [
    ((0, 0), ["W", "R7", "c3"]), ((1, 0), ["W", "e8"]), ((2, 0), ["e9"]),
    ((0, 1), ["R8", "o0"]), ((1, 1), ["R9", "c4"]), ((2, 1), ["W", "R10", "o1"]),
    ((3, 0), ["W", "e10"]), ((4, 0), ["W", "e11"]), ((5, 0), ["e12"]),
    ((3, 1), ["R11", "c5"]), ((4, 1), ["R12"]), ((5, 1), ["W", "R13"]),
    ((6, 0), ["W", "e13"]), ((7, 0), ["W", "e14"]), ((8, 0), ["e15"]),
    ((6, 1), ["R14a", "c6"]), ((7, 1), ["R14b", "c7"]), ((8, 1), ["W", "R15a", "o2"]),
    ((9, 0), ["W", "R15b", "o3"]), ((10, 0), ["W", "R16a", "cmp"]), ((11, 0), ["R16b", "swapK"]),
    ((9, 1), ["R17a", "t1"]), ((10, 1), ["chk"]), ((11, 1), ["W", "R17b", "t2"]),
    ((12, 0), ["e0n"]), ((12, 1), ["W", "R18"]),
    ((13, 0), ["e1n"]), ((13, 1), ["W", "R19"]),
    ((14, 0), ["R20a", "c0n"]), ((14, 1), ["W", "R20b"]),
    (("rs", 0), ["e2n"]),
    ((15, 0), ["R21a"]), ((15, 1), ["W", "R21b"]),
    ((16, 0), ["R22a"]), ((16, 1), ["W", "R22b"]),
    ((17, 0), ["e3n"]), ((17, 1), ["W", "R23"]),
    (("rs", 1), ["bar"]),
    ((18, 0), ["R24", "c1n"]), ((18, 1), ["W", "R25", "vmin"]),
    ((19, 0), ["R26"]), ((19, 1), ["W", "R27"]),
    ((20, 0), ["e4n"]), ((20, 1), ["W", "R28"]),
    ((21, 0), ["e5n"]), ((21, 1), ["W", "R29"]),
    ((22, 0), ["ssub", "e6n"]), ((22, 1), ["W", "R30", "c2n"]),
    ((23, 0), ["W", "e7n"]), ((23, 1), ["evt"]),
]
SEQ9 = [x for x in SEQ8 if x[0] != ("rs", 0)]
SEQ9 = [(m, {(15, 0): ["e2n"], (15, 1): ["W", "R21"]}.get(m, g)) for m, g in SEQ9]
SEQ10 = [x for x in SEQ8 if x[0] != ("rs", 1)]
SEQ10 = [(m, {(18, 0): ["bar", "R24"], (19, 0): ["R26", "c1n"]}.get(m, g)) for m, g in SEQ10]
SEQ11 = [x for x in SEQ8 if x[0] != ("rs", 1)]
SEQ11 = [(m, {(18, 0): ["bar"], (18, 1): ["W", "R24", "R25"], (19, 0): ["R26", "c1n"], (19, 1): ["W", "R27", "vmin"]}.get(m, g)) for m, g in SEQ11]
SEQ12 = [
    ((0, 0), ["W", "R7", "c3"]), ((1, 0), ["W", "e9"]), ((2, 0), ["e10"]),
    ((0, 1), ["R8", "c4"]), ((1, 1), ["R9", "o0"]), ((2, 1), ["W", "R10", "o1"]),
    ((3, 0), ["W", "e11"]), ((4, 0), ["W", "e12"]), ((5, 0), ["e13"]),
    ((3, 1), ["R11", "c5"]), ((4, 1), ["R12a", "c6"]), ((5, 1), ["W", "R12b", "o2"]),
    ((6, 0), ["W", "e14"]), ((7, 0), ["W", "R13"]), ((8, 0), ["e15"]),
    ((6, 1), ["R14a", "t1"]), ((7, 1), ["R14b", "c7"]), ((8, 1), ["W", "R15a", "o3"]),
    ((9, 0), ["W", "R15b", "cmp"]), ((10, 0), ["W", "R16a", "swapK"]), ((11, 0), ["R16b", "t2"]),
    ((9, 1), ["R17a"]), ((10, 1), ["chk"]), ((11, 1), ["W", "R17b", "R18a"]),
    ((12, 0), ["e0n"]), ((12, 1), ["W", "R18b", "R19a"]),
    ((13, 0), ["e1n"]), ((13, 1), ["W", "R19b", "R20a"]),
    ((14, 0), ["e2n"]), ((14, 1), ["W", "R20b", "R21a"]),
    ((15, 0), ["e3n"]), ((15, 1), ["W", "R21b", "c0n"]),
    ((16, 0), ["R22a", "c1n"]), ((16, 1), ["W", "R22b"]),
    ((17, 0), ["e4n"]), ((17, 1), ["W", "R23"]),
    (("rs", 1), ["bar"]),
    ((18, 0), ["R24"]), ((18, 1), ["W", "R25", "vmin"]),
    ((19, 0), ["R26"]), ((19, 1), ["W", "R27"]),
    ((20, 0), ["e5n"]), ((20, 1), ["W", "R28"]),
    ((21, 0), ["e6n"]), ((21, 1), ["W", "R29", "c2n"]),
    ((22, 0), ["ssub", "e7n"]), ((22, 1), ["W", "R30"]),
    ((23, 0), ["W", "e8n"]), ((23, 1), ["evt"]),
]
SEQ13 = [
    ((0, 0), ["W", "R7"]), ((1, 0), ["W", "e7"]), ((2, 0), ["W", "e8"]),
    ((3, 0), ["W", "e9"]), ((4, 0), ["W", "e10"]), ((5, 0), ["e11"]),
    ((0, 1), ["R8", "c3"]), ((1, 1), ["R9", "c4"]), ((2, 1), ["R10", "c5"]),
    ((3, 1), ["R11", "o1"]), ((4, 1), ["R12a"]), ((5, 1), ["W", "R12b", "swapK"]),
    ((6, 0), ["W", "e12"]), ((7, 0), ["W", "e13"]), ((8, 0), ["W", "e14"]),
    ((9, 0), ["W", "e15"]), ((10, 0), ["W", "R13a", "c6"]), ((11, 0), ["R13b", "c7"]),
    ((6, 1), ["R14a", "o2"]), ((7, 1), ["R14b", "o3"]), ((8, 1), ["R15a", "cmp"]),
    ((9, 1), ["R15b"]), ((10, 1), ["chk"]), ((11, 1), ["W", "R16"]),
    ((12, 0), ["e0n"]), ((12, 1), ["W", "R17"]),
    ((13, 0), ["e1n"]), ((13, 1), ["W", "R18"]),
    ((14, 0), ["e2n"]), ((14, 1), ["W", "R19"]),
    ((15, 0), ["e3n"]), ((15, 1), ["W", "R20"]),
    ((16, 0), ["e4n"]), ((16, 1), ["W", "R21a", "c0n"]),
    ((17, 0), ["R21b", "c1n"]), ((17, 1), ["W", "R22a", "t1"]),
    ((18, 0), ["R22b", "t2"]), ((18, 1), ["W", "e5n"]),
    ((19, 0), ["R23"]),
    (("rs", 1), ["bar"]),
    ((19, 1), ["W", "R24", "vmin"]),
    ((20, 0), ["R25", "c2n"]), ((20, 1), ["W", "R26"]),
    ((21, 0), ["R27", "o0n"]), ((21, 1), ["W", "R28"]),
    ((22, 0), ["ssub", "R29"]), ((22, 1), ["W", "R30"]),
    ((23, 0), ["W", "e6n"]), ((23, 1), ["evt"]),
]
SEQ1 = SEQ
SEQ = SEQ13
for a_ in sys.argv:
    if a_.startswith("seq="):
        SEQ = {"13": SEQ13, "12": SEQ12, "9": SEQ9, "10": SEQ10, "11": SEQ11, "7": SEQ7, "8": SEQ8, "1": SEQ1, "3": SEQ3, "4": SEQ4, "5": SEQ5, "6": SEQ6}[a_[4:]]
if "feww=True" in sys.argv:
    DROP = {(0, 0), (1, 0), (3, 0), (4, 0), (6, 0), (7, 0), (9, 0), (10, 0),
            (12, 1), (14, 1), (16, 1), (18, 1), (20, 1), (22, 1)}
    SEQ = [(m, [t for t in g if not (t == "W" and m in DROP)]) for m, g in SEQ]
NFIRSTW = 1 if SEQ is SEQ13 or SEQ is SEQ12 else 3
NPRIME = 8 if SEQ is SEQ4 else 7


def is_sm(tok):
    return tok[0] in "eco" and tok[1].isdigit()


ALLTOK = [t for _, g in SEQ for t in g]
SM_FIRST = [t[:-1] for t in ALLTOK if is_sm(t) and t.endswith("n")]
SM_SECOND = [t for t in ALLTOK if is_sm(t) and not t.endswith("n")]


def sm_ins(t, S_, P_):
    i = int(t[1:])
    if t[0] == "e":
        return f"v_exp_f32 v{E(i)}, v{S_ + i}"
    if t[0] == "c":
        return f"v_cvt_pk_bf16_f32 v{preg(P_, i)}, v{E(2 * i)}, v{E(2 * i + 1)}"
    if i == 0:
        return f"v_or3_b32 v{vOR}, v{preg(P_, 0)}, v{preg(P_, 1)}, v{preg(P_, 2)}"
    if i < 3:
        return f"v_or3_b32 v{vOR}, v{vOR}, v{preg(P_, 2 * i + 1)}, v{preg(P_, 2 * i + 2)}"
    return f"v_bitop3_b32 v{vOR}, v{vOR}, v{preg(P_, 7)}, s{sThr} bitop3:0xa8"


def sm_seq(toks, S_, P_):
    out, last_exp = [], None
    for t in toks:
        i = int(t[1:])
        if t[0] == "c" and last_exp in (2 * i, 2 * i + 1):
            out.append("s_nop 0")
        out.append(sm_ins(t, S_, P_))
        last_exp = i if t[0] == "e" else None
    return out


def rtok(t):
    if t[-1] in "ab":
        return int(t[1:-1]), ["ab".index(t[-1])]
    n = int(t[1:])
    return n, ([0] if n % 24 < 12 else [0, 1])


def wait_counts():
    ev = []
    for rep in range(3):
        for m, g in SEQ:
            if m[0] != "rs":
                ev.append(("m", 24 * rep + m[0]))
            for t in g:
                if t[0] == "R":
                    n, hs = rtok(t)
                    ev += [("r", 24 * rep + n)] * len(hs)
                elif t == "W":
                    ev.append(("w", rep))
    res = []
    for k, x in enumerate(ev):
        if x == ("w", 1):
            need = -1
            for y in ev[k + 1:]:
                if y[0] == "w":
                    break
                if y[0] == "m":
                    need = max(need, y[1])
            issued = [y[1] for y in ev[:k] if y[0] == "r"]
            assert issued == sorted(issued)
            assert issued.count(need) == (1 if need % 24 < 12 else 2)
            res.append(sum(1 for n in issued if n > need))
    return res


STUBS = []


def chk_site(e, par):
    n = len(STUBS)
    STUBS.append(par)
    e(f"s_cbranch_vccnz L_stub{n}")
    e(f"L_chkret{n}:")


def V_T1():
    return f"v_add_u32 v{vT1}, {VSLOT}, v{vAV}"


def V_T2():
    return f"v_add_u32 v{vT2}, {hex((VSLOT - VSLOT * NVSLOT) & 0xffffffff)}, v{vAV}"


def V_MIN():
    return f"v_min_u32 v{vAV}, v{vT1}, v{vT2}"


def K_SWAP():
    return f"v_swap_b32 v{vAK}, v{vAK2}"


def mask_ins(S_, i):
    return f"v_cndmask_b32 v{S_ + i}, v{S_ + i}, v{vOR}, s[{sMask0 + 2 * i}:{sMask0 + 2 * i + 1}]"


ABL = [""]


def shifted_seq(k):
    q = list(SEQ)
    i = [n for n, (m, g) in enumerate(q) if "bar" in g][0]
    x = q.pop(i)
    q.insert(i - k, x)
    return q


def emit_step(e0, par, mask=False, ver="", SEQ=None):
    SEQ = SEQ or globals()["SEQ"]

    def e(x):
        ab = ABL[0]
        if "rs" in ab and f"{vr(ONES, 4)}" in x:
            return
        if "exp" in ab and (x.startswith("v_exp") or x.startswith("v_cvt_pk") or x.startswith("v_or3") or x.startswith("v_bitop")):
            return
        if "kr" in ab and x.startswith("ds_read_b128"):
            return
        if "vr" in ab and x.startswith("ds_read_b64_tr"):
            return
        if "nw" in ab and x.startswith("s_waitcnt"):
            return
        if "nswap" in ab and x.startswith("v_swap"):
            return
        if "keep" not in ab and ab and x.startswith("s_cbranch_vccnz"):
            return
        if ("kr" in ab or "vr" in ab) and x.startswith("s_waitcnt"):
            x = "s_waitcnt lgkmcnt(8)"
        e0(x)
    extra = {}
    wc = wait_counts()
    for m, toks in SEQ:
        f, q = m
        e(mfma_rs(q, par) if f == "rs" else (mfma_qk(f, q, par) if f < 12 else mfma_pv(f - 12, q, frag(f), par)))
        for x in extra.pop(m, []):
            e(x)
        for tok in toks:
            if tok[0] == "R":
                n, hs = rtok(tok)
                ins = kread(n, par) if n < 12 else (vread_at(n - 12, frag(n)) if n < 24 else kread(n - 24, 1 - par))
                ins = [ins[h] for h in hs]
            elif tok == "W":
                ins = [f"s_waitcnt lgkmcnt({min(14, wc.pop(0))})"]
            elif tok == "cmp":
                ins = [f"v_cmp_ne_u32 vcc, 0, v{vOR}"]
            elif tok == "chk":
                chk_site(e, par)
                ins = []
            elif tok == "swapK":
                ins = [K_SWAP()] if par == 1 else []
            elif tok == "t1":
                ins = [V_T1()]
            elif tok == "t2":
                ins = [V_T2()]
            elif tok == "vmin":
                ins = [V_MIN()]
            elif tok == "bar":
                ins = ["s_barrier"]
            elif tok == "ssub":
                ins = [] if mask else [f"s_sub_u32 s{sEv}, s{sEv}, 1"]
            elif tok == "evt":
                if mask:
                    ins = []
                else:
                    ins = ["s_cbranch_scc1 L_ev1"] if par == 0 else [f"s_cbranch_scc0 L_step0{ver}"]
            elif is_sm(tok):
                nxt = tok.endswith("n")
                if nxt and mask:
                    continue
                ins = [sm_ins(tok[:-1] if nxt else tok, SB[1 - par] if nxt else SB[par], PB[1 - par] if nxt else PB[par])]
            else:
                raise ValueError(tok)
            for x in ins:
                e(x)
    assert not extra


class LQ:
    def __init__(self, e):
        self.e, self.q = e, []

    def op(self, ins, tag):
        self.e(ins)
        self.q.append(tag)

    def wait(self, tag):
        idx = [i for i, t in enumerate(self.q) if t == tag]
        if idx:
            n = len(self.q) - 1 - idx[-1]
            self.e(f"s_waitcnt lgkmcnt({min(n, 14)})")
            self.q = self.q[idx[-1] + 1:]


def bar_sw(e, cfg, k):
    if cfg.dsw:
        e(f"s_memtime s[{sStamp + 4 + 4 * k}:{sStamp + 5 + 4 * k}]")
    e("s_barrier")
    if cfg.dsw:
        e(f"s_memtime s[{sStamp + 6 + 4 * k}:{sStamp + 7 + 4 * k}]")
        e("s_waitcnt lgkmcnt(0)")


def sstamp(e, cfg, k):
    if cfg.dst:
        e(f"s_memtime s[{sStamp + 2 * k}:{sStamp + 2 * k + 1}]")


def stamp(e, cfg, base, i):
    if cfg.dst:
        return
    if cfg.dsw:
        if base == sStamp and i == 2:
            e(f"s_memtime s[{base + 2}:{base + 3}]")
            e("s_waitcnt lgkmcnt(0)")
        return
    if cfg.debug:
        e(f"s_memtime s[{base + 2 * i}:{base + 2 * i + 1}]")
        e("s_waitcnt lgkmcnt(0)")


def mask_words(r):
    kt, q, i = r >> 3, (r >> 2) & 1, r & 3
    m = 0
    for l in range(64):
        n, g = l & 15, l >> 4
        if 8 * i + g + 4 * kt > 8 * (n & 3) + (n >> 2) + 4 * q:
            m |= 1 << l
    return m & 0xffffffff, m >> 32


def emit_gate(e, sraw, st, v, sg, somg):
    e(f"s_lshl_b32 s{st}, s{sraw}, 16")
    e(f"s_and_b32 s{sraw}, s{sraw}, 0xffff0000")
    e(f"s_bitcmp1_b32 s{sHead}, 0")
    e(f"s_cselect_b32 s{st}, s{sraw}, s{st}")
    e(f"v_mov_b32 v{v}, s{st}")
    e(f"v_mul_f32 v{v}, {hex(LOG2E)}, v{v}")
    e(f"v_exp_f32 v{v}, -v{v}")
    e("s_nop 0")
    e(f"v_add_f32 v{v}, 1.0, v{v}")
    e(f"v_rcp_f32 v{v}, v{v}")
    e("s_nop 0")
    e(f"v_cvt_pk_bf16_f32 v{v}, v{v}, v{v}")
    e(f"v_lshlrev_b32 v{v}, 16, v{v}")
    if somg is not None:
        e(f"v_sub_f32 v{v}, 1.0, v{v}")
        e(f"v_cvt_pk_bf16_f32 v{v}, v{v}, v{v}")
        e(f"v_lshlrev_b32 v{v}, 16, v{v}")
    e("s_nop 0")
    e(f"v_readfirstlane_b32 s{sg if somg is None else somg}, v{v}")


def bf16_round(x):
    u = f2u(x)
    return ((u + 0x7fff + ((u >> 16) & 1)) >> 16) & 0xffff


def bf16_val(h):
    return struct.unpack("<f", struct.pack("<I", h << 16))[0]


C_EXACT = 192 ** -0.5 * math.log2(math.e)
C_HI = bf16_round(C_EXACT)
C_LO = bf16_round(C_EXACT - bf16_val(C_HI))


def q_frag_reads(e, op):
    e(f"v_min_u32 v{vT1}, v{vAK}, v{vAK2}")
    e(f"v_add_u32 v{vT1}, s{sRW}, v{vT1}")
    for q in range(2):
        for ks in range(6):
            op(f"ds_read_b128 {vr(Q0 + 24 * q + 4 * ks, 4)}, v{vT1} offset:{RB - KB + q * 4 * ROWB + ks * 64}")


def row_max(e, S_, a, b):
    for q, r in ((0, a), (1, b)):
        x = [S_ + 4 * q + i for i in range(4)] + [S_ + 8 + 4 * q + i for i in range(4)]
        e(f"v_max3_f32 v{r}, v{x[0]}, v{x[1]}, v{x[2]}")
        e(f"v_max3_f32 v{r}, v{r}, v{x[3]}, v{x[4]}")
        e(f"v_max3_f32 v{r}, v{r}, v{x[5]}, v{x[6]}")
        e(f"v_max_f32 v{r}, v{r}, v{x[7]}")
    e("s_nop 1")
    e(f"v_permlane32_swap_b32 v{a}, v{b}")
    e(f"v_max_f32 v{a}, v{a}, v{b}")
    e(f"v_mov_b32 v{b}, v{a}")
    e("s_nop 1")
    e(f"v_permlane16_swap_b32 v{a}, v{b}")
    e(f"v_max_f32 v{a}, v{a}, v{b}")
    e(f"v_mov_b32 v{b}, v{a}")
    e("s_nop 1")
    e(f"v_permlane32_swap_b32 v{a}, v{b}")


def scale_ins(regs, T):
    o = []
    for k, r in enumerate(regs):
        o.append(f"v_lshlrev_b32 v{T + 2 * k}, 16, v{r}")
        o.append(f"v_and_b32 v{T + 2 * k + 1}, s{sCMaskHi}, v{r}")
    for k, r in enumerate(regs):
        o.append(f"v_pk_mul_f32 {vr(T + 2 * k, 2)}, {vr(T + 2 * k, 2)}, s[{sCScale}:{sCScale + 1}]")
    for k, r in enumerate(regs):
        o.append(f"v_cvt_pk_bf16_f32 v{r}, v{T + 2 * k}, v{T + 2 * k + 1}")
    return o


def emit_last(e, cfg, par, end):
    lq = LQ(e)
    reg = 0 if end else ROFF
    for n in range(8):
        for x in vread_at(n, frag(n)):
            lq.op(x, ("v", n))
    if not end:
        e(f"v_mov_b32 v{vOR}, {hex(NINF)}")
        for i in range(16):
            e(mask_ins(SB[par], i))
    for x in sm_seq(([] if end else SM_FIRST) + SM_SECOND, SB[par], PB[par]):
        e(x)
    e(f"v_cmp_ne_u32 vcc, 0, v{vOR}")
    lq.wait(("v", 0))
    chk_site(e, par)
    t0, t1 = E0, E0 + 1
    pend = [f"v_cndmask_b32 v{t0}, v{LS}, v{LS + 4}, s[{sHiHalf}:{sHiHalf + 1}]"]
    if sparse_rs():
        pend = [f"v_add_f32 v{t0}, v{LS}, v{LS + 1}", f"v_add_f32 v{t1}, v{LS + 2}, v{LS + 3}",
                f"v_cndmask_b32 v{t0}, v{t0}, v{t1}, s[{sHiHalf}:{sHiHalf + 1}]"]
    pend += [
            f"v_rcp_f32 v{t0}, v{t0}",
            None,
            f"v_mul_f32 v{t0}, s{sCOmg}, v{t0}",
            f"v_cvt_pk_bf16_f32 v{vOR}, v{t0}, v{t0}",
            f"v_lshlrev_b32 v{t1}, 16, v{vOR}",
            f"v_sub_f32 v{t0}, v{t0}, v{t1}",
            f"v_cvt_pk_bf16_f32 v{t0}, v{t0}, v{t0}",
            f"v_cndmask_b32 v{vOR}, v{vOR}, v{t0}, s[{sOddRow}:{sOddRow + 1}]"]
    if not cfg.flo:
        pend = pend[:-4]
    writes = [f"ds_write_b32 v{vAL}, v{vOR} offset:{reg + 384}"]
    qrd = []
    if end:
        pend += writes
    else:
        q_frag_reads(qrd.append, qrd.append)
    epi = []
    for dt in range(12):
        for q in range(2):
            r = O0 + 8 * dt + 4 * q
            epi.append((dt, f"v_cvt_pk_bf16_f32 v{r}, v{r}, v{r + 1}"))
            epi.append((dt, f"v_cvt_pk_bf16_f32 v{r + 1}, v{r + 2}, v{r + 3}"))
            w = f"ds_write_b64 v{vAO}, {vr(r, 2)} offset:{reg + q * 4 * PADROW + dt * 32}"
            if end:
                epi.append((dt, w))
                for pb in cfg.endpub:
                    if 2 * dt + q == 2 * pb - 1 + cfg.publag:
                        epi.append((dt, f"*{pb}"))
            else:
                writes.append(w)
    since = {}

    def tick():
        for b in since:
            since[b] += 1

    def out(x, dt=None):
        if x[0] == "*":
            assert not pend
            dt = int(x[1:])
            lq.wait(("w", dt - 1))
            if cfg.dend and dt == 4:
                e("s_memtime s[14:15]")
            e("s_barrier")
            if cfg.dend and dt == 4:
                e("s_waitcnt lgkmcnt(0)")
        elif x.startswith("ds_"):
            lq.op(x, ("w", dt))
        else:
            e(x)
        tick()

    e(mfma_rs(0, par))
    if not sparse_rs():
        e(mfma_rs(1, par))
    since["rs"] = 0
    room_ = cfg.endroom if end else cfg.lastroom
    for dt in range(12):
        for q in range(2):
            e(mfma_pv(dt, q, frag(dt), par))
            tick()
            room = room_
            if q == 1:
                since[dt] = 0
                if dt + 1 < 12:
                    lq.wait(("v", dt + 1))
                if dt + 8 < 12:
                    for x in vread_at(dt + 8, frag(dt + 8)):
                        lq.op(x, ("v", dt + 8))
                        tick()
                    room -= 2
                if dt == cfg.lastbar and not end:
                    bar_sw(e, cfg, 0)
            while room > 0 and qrd:
                out(qrd.pop(0))
                room -= 1
            while room > 0 and pend and since["rs"] >= 8:
                x = pend.pop(0)
                if x is None:
                    break
                out(x)
                room -= 1
            if pend and pend[0] is None:
                pend.pop(0)
                continue
            nv = room_ - room
            while room > 0 and epi and since.get(epi[0][0], -1) >= 8:
                if cfg.wfirst and epi[0][1].startswith("ds_") and nv > 0:
                    break
                d, x = epi.pop(0)
                out(x, d)
                room -= 1
                nv += 1
    assert not pend and not qrd
    if cfg.wfirst and end:
        rest, epi, cur = epi, [], []
        for it in rest + [(None, "*")]:
            if it[1][0] == "*":
                epi += [x for x in cur if not x[1].startswith("ds_")] + [x for x in cur if x[1].startswith("ds_")]
                cur = []
                if it[0] is not None:
                    epi.append(it)
            else:
                cur.append(it)
    while epi:
        need = 8 - since[epi[0][0]]
        if need > 0:
            e(f"s_nop {need - 1}")
            for b in since:
                since[b] += need
        d, x = epi.pop(0)
        out(x, d)
    return writes


def emit_first(e, cfg, par):
    lq = LQ(e)
    S_, P_ = SB[1 - par], PB[1 - par]
    for f in range(8):
        lq.op(kread(f, par)[0], f)
    zero = [f"v_mov_b64 {vr(r, 2)}, 0" for r in list(range(O0, O0 + 96, 2)) + list(range(LS, LS + (4 if sparse_rs() else 8), 2))]
    for x in zero[:12]:
        e(x)
    zero = zero[12:]
    for f in range(12):
        if f in (0, 1, 3, 6, 9):
            lq.wait({0: 0, 1: 2, 3: 5, 6: 8, 9: 11}[f])
        for q in range(2):
            e(mfma_qk(f, q, par, "0"))
            room = 2
            if q == 1 and f + 8 < 12:
                lq.op(kread(f + 8, par)[0], f + 8)
                room -= 1
            for k in range(room):
                if zero:
                    e(zero.pop(0))
    assert not zero
    if par == 1:
        e(K_SWAP())
    def barprime():
        bar_sw(e, cfg, 3)
        for f in range(NPRIME):
            e(kread(f, 1 - par)[0])
    if cfg.firstbar == 0:
        barprime()
    else:
        e("s_nop 5")
    e(f"s_cmp_eq_u32 s{sEvId}, 0")
    e(f"s_cbranch_scc1 L_nomask{par}")
    e(f"v_mov_b32 v{vOR}, {hex(NINF)}")
    for i in range(16):
        e(mask_ins(S_, i))
    e(f"L_nomask{par}:")
    vT3, vT4 = E0 + 2, E0 + 3
    row_max(e, S_, vT1, vT3)
    if cfg.firstbar == 1:
        barprime()
    e(f"v_sub_f32 v{vT1}, {hex(f2u(-BIAS))}, v{vT1}")
    e(f"v_sub_f32 v{vT3}, {hex(f2u(-BIAS))}, v{vT3}")
    e(f"v_mov_b32 v{vT2}, v{vT1}")
    e(f"v_mov_b32 v{vT4}, v{vT3}")
    e(f"s_sub_u32 s{sEv}, s{sEv}, 1")
    for i in range(0, 16, 2):
        t = vT3 if (i >> 2) & 1 else vT1
        e(f"v_pk_add_f32 {vr(S_ + i, 2)}, {vr(S_ + i, 2)}, {vr(t, 2)}")
    for i in range(0, 8, 2):
        e(f"v_mov_b64 {vr(NM + i, 2)}, {vr(vT3 if i >= 4 else vT1, 2)}")
    if cfg.firstbar == 2:
        barprime()
    for x in sm_seq(SM_FIRST, S_, P_):
        e(x)
    if cfg.firstbar == 3:
        barprime()
    e(f"s_waitcnt lgkmcnt({NPRIME - NFIRSTW})")
    if cfg.dsw:
        e(f"s_memtime s[{sStamp + 20}:{sStamp + 21}]")
        e("s_waitcnt lgkmcnt(0)")
    e(f"s_cbranch_scc1 L_ev{1 - par}")
    if cfg.dual is not None:
        e(f"s_bitcmp1_b32 s{sW}, {cfg.dual}")
        e(f"s_cbranch_scc1 L_step{1 - par}b")
    e(f"s_branch L_step{1 - par}")


WARMD = 100


NPR = [0]


def set_prio(e, cfg):
    e("s_setprio 2")
    if cfg.wprio is not None:
        NPR[0] += 1
        e(f"s_bitcmp1_b32 s{sW}, {cfg.wprio}")
        e(f"s_cbranch_scc1 L_pr{NPR[0]}")
        e("s_setprio 1")
        e(f"L_pr{NPR[0]}:")


def emit_compute(e, cfg, inject=None):
    e("L_compute:")
    set_prio(e, cfg)
    sstamp(e, cfg, 0)
    if cfg.probe:
        e("s_memrealtime s[12:13]")
    stamp(e, cfg, sStamp, 0)
    if cfg.debug and not cfg.dsw:
        e(f"s_memrealtime s[{sStamp + 14}:{sStamp + 15}]")
    L, A, B_, C_ = 60, 61, 62, 63
    e(f"v_and_b32 v{L}, 63, v0")
    e(f"v_lshrrev_b32 v{A}, 3, v{L}")
    e(f"v_and_b32 v{B_}, 7, v{L}")
    e(f"v_mul_u32_u24 v65, {ROWB}, v{A}")
    e(f"v_lshl_add_u32 v64, v{B_}, 4, v65")
    e(f"s_add_u32 s60, s{sN}, s{sW}")
    e(f"s_sub_u32 s{sEv}, s60, 1")
    e(f"s_mul_i32 s60, s60, {BLKB}")
    e(f"s_add_u32 s61, s60, {16 * ROWB}")
    e(f"s_mul_i32 s62, s{sHead}, {HEADB}")
    e(f"s_mov_b32 s{SRD_Q + 2}, {HEADB}")
    e(f"s_mov_b32 s{SRD_Q + 3}, 0x20000")
    e("s_waitcnt lgkmcnt(0)")
    sstamp(e, cfg, 1)
    e(f"s_add_u32 s{SRD_Q}, s36, s62")
    e(f"s_addc_u32 s{SRD_Q + 1}, s37, 0")
    e(f"s_lshr_b32 s62, s{sHead}, 1")
    e(f"s_lshl_b32 s62, s62, 2")
    e(f"s_load_dword s63, s[48:49], s62")
    e(f"s_lshr_b32 s{sEvId}, s{sHead}, 3")
    for j in range(12):
        i, a = divmod(j, 3)
        if cfg.qrr and j % 3 == 0:
            e(f"s_setprio {3 - j // 3}")
        for (jj, cls, w) in cfg.stag:
            if jj == j:
                e(f"s_cmp_lt_u32 s{sEvId}, {cls}")
                e(f"s_cbranch_scc1 L_stag{jj}_{cls}")
                e(f"s_waitcnt {w}")
                e(f"L_stag{jj}_{cls}:")
        e(f"buffer_load_dwordx4 {vr(4 * j, 4)}, v64, s[{SRD_Q}:{SRD_Q + 3}], s{60 + (i >> 1)} offen "
          f"offset:{(i & 1) * 3072 + a * 128} {cfg.nt_q}")
    if cfg.qrr:
        e("s_setprio 2")
    sstamp(e, cfg, 2)
    if inject:
        e("s_branch L_comp2")
        inject()
        e("L_comp2:")
    if cfg.qfirst:
        e("s_barrier")
    e(f"s_mul_i32 s{sRW}, s{sW}, {RBLK}")
    e(f"v_add_u32 v65, s{sRW}, v64")
    e(f"v_add_u32 v65, {RB}, v65")
    e(f"v_and_b32 v{A}, 3, v{L}")
    e(f"v_bfe_u32 v{B_}, v{L}, 2, 2")
    e(f"v_lshrrev_b32 v{C_}, 4, v{L}")
    e(f"v_mul_u32_u24 v66, {KRG}, v{A}")
    e(f"v_mul_u32_u24 v67, {ROWB}, v{B_}")
    e(f"v_add_u32 v66, v66, v67")
    e(f"v_lshl_add_u32 v66, v{C_}, 4, v66")
    e(f"v_add_u32 v{vAK2}, {KB}, v66")
    e(f"v_add_u32 v{vAK}, {KB + KSLOT}, v66")
    e(f"v_mul_u32_u24 v66, {KRG}, v{B_}")
    e(f"v_mul_u32_u24 v67, {ROWB}, v{C_}")
    e(f"v_add_u32 v66, v66, v67")
    e(f"v_lshl_add_u32 v{vAV}, v{A}, 3, v66")
    e(f"v_mul_u32_u24 v66, 3200, v{A}")
    e(f"v_lshrrev_b32 v67, 1, v{A}")
    e(f"v_lshl_add_u32 v66, v67, 6, v66")
    e(f"v_mul_u32_u24 v67, {PADROW}, v{B_}")
    e(f"v_add3_u32 v66, v66, v67, s{sRW}")
    e(f"v_add_u32 v66, {EB}, v66")
    e(f"v_and_b32 v67, 1, v{A}")
    e(f"v_xor_b32 v67, v67, v{C_}")
    e(f"v_lshl_add_u32 v{vAO}, v67, 3, v66")
    e(f"v_and_b32 v67, 1, v{C_}")
    e(f"v_lshl_add_u32 v66, v67, 2, v66")
    e(f"v_lshrrev_b32 v67, 1, v{C_}")
    e(f"v_mul_u32_u24 v67, {4 * PADROW}, v67")
    e(f"v_add_u32 v{vAL}, v66, v67")
    for i in range(4):
        e(f"v_mov_b32 v{ONES + i}, 0x3f803f80")
    if sparse_rs():
        e(f"v_bfe_i32 v66, v{L}, 1, 1")
        e(f"v_bfe_i32 v67, v{L}, 5, 1")
        e(f"v_xor_b32 v66, v66, v67")
        for i in range(4):
            e(f"v_bfi_b32 v{ONES + i}, v66, 0, v{ONES + i}")
        e(f"v_bfe_i32 v66, v{L}, 0, 1")
        e(f"v_and_b32 v66, 0xaaaaaaaa, v66")
        e(f"v_or_b32 v{vIDX}, 0x44444444, v66")
    for i in range(16):
        lo, hi = mask_words(i)
        e(f"s_mov_b32 s{sMask0 + 2 * i}, {hex(lo)}")
        e(f"s_mov_b32 s{sMask0 + 2 * i + 1}, {hex(hi)}")
    e(f"s_mov_b32 s{sHiHalf}, 0")
    e(f"s_mov_b32 s{sHiHalf + 1}, -1")
    e(f"s_mov_b32 s{sOddRow}, 0xffff0000")
    e(f"s_mov_b32 s{sOddRow + 1}, 0xffff0000")
    e(f"s_mov_b32 s{sEvId}, 0")
    e(f"s_mov_b32 s{sThr}, 0x40004000")
    e(f"s_mov_b32 s{sCScale}, {hex(CSCALE)}")
    e(f"s_mov_b32 s{sCScale + 1}, {hex(CSCALE)}")
    e(f"s_mov_b32 s{sCMaskHi}, 0xffff0000")
    e("s_waitcnt lgkmcnt(0)")
    emit_gate(e, 63, 62, 48, None, sCOmg)
    for j in range(12):
        i, a = divmod(j, 3)
        if j == 0:
            sstamp(e, cfg, 3)
        e(f"s_waitcnt vmcnt({11 - j})")
        if j in (0, 4, 8, 11):
            sstamp(e, cfg, {0: 4, 4: 5, 8: 6, 11: 7}[j])
        for x in scale_ins(range(4 * j, 4 * j + 4), 48):
            e(x)
        e(f"ds_write_b128 v65, {vr(4 * j, 4)} offset:{i * KRG + a * 128}")
    q_frag_reads(e, e)
    e("s_waitcnt lgkmcnt(0)")
    sstamp(e, cfg, 8)
    stamp(e, cfg, sStamp, 9)
    e("s_barrier")
    sstamp(e, cfg, 9)
    if cfg.dst:
        e("s_waitcnt lgkmcnt(0)")
    stamp(e, cfg, sStamp, 1)
    if cfg.probe:
        e("s_memrealtime s[14:15]")
        e("s_memtime s[20:21]")
        e("s_waitcnt lgkmcnt(0)")
    e.c("first block of a tile: QK, causal mask (second tile), true row max, first part of the softmax")
    e("L_first1:")
    emit_first(e, cfg, 1)

    if cfg.dual is not None:
        e(".p2align 6")
        for par in (0, 1):
            e(f"L_step{par}b:")
            emit_step(e, par, ver="b", SEQ=shifted_seq(cfg.dualk))
        e("s_branch L_ev0")
    e.c("steady state: two blocks per trip; QK of block j+1, PV of block j, softmax spread over the gaps")
    e(".p2align 6")
    e("L_step0:")
    emit_step(e, 0)
    e("L_step1:")
    emit_step(e, 1)

    extra_ = set()
    for mpar in (0, 1):
        e.c("diagonal step and last step of the first tile, hand-over of O, Q of the second tile")
        e(f"L_ev{mpar}:")
        if mpar == 1:
            e(f"s_cmp_eq_u32 s{sEvId}, 0")
            e("s_cbranch_scc0 L_end")
        emit_step(e, mpar, mask=True)
        par = 1 - mpar
        stamp(e, cfg, sStamp, 2)
        writes = emit_last(e, cfg, par, False)
        e("s_setprio 0")
        work = [f"v_add_u32 v{vT1}, {4 * VSLOT}, v{vAV}", f"v_subrev_u32 v{vT2}, {VSLOT}, v{vAV}", V_MIN()]
        if par == 0:
            work.append(K_SWAP())
        CH, CL, M = F0, F0 + 2, F0 + 4
        work += [f"v_mbcnt_lo_u32_b32 v{M + 1}, -1, 0",
                 f"v_mbcnt_hi_u32_b32 v{M + 1}, -1, v{M + 1}",
                 f"v_and_b32 v{M}, 1, v{M + 1}",
                 f"v_lshlrev_b32 v{M}, 4, v{M}",
                 f"v_bfe_i32 v{M + 1}, v{M + 1}, 1, 1",
                 f"s_mov_b32 s60, {hex(C_HI)}",
                 f"s_mov_b32 s61, {hex(C_LO)}",
                 f"v_lshlrev_b32 v{CH + 1}, v{M}, s60",
                 f"v_lshlrev_b32 v{CL + 1}, v{M}, s61",
                 f"v_bfi_b32 v{CH}, v{M + 1}, 0, v{CH + 1}",
                 f"v_bfi_b32 v{CL}, v{M + 1}, 0, v{CL + 1}",
                 f"v_and_b32 v{CH + 1}, v{M + 1}, v{CH + 1}",
                 f"v_and_b32 v{CL + 1}, v{M + 1}, v{CL + 1}"]
        work += [f"s_add_u32 s60, s{sN}, s{sW}", f"s_sub_u32 s{sEv}, 63, s60", f"s_mov_b32 s{sEvId}, 2"]
        D = lambda k: F0 + 8 + 4 * (k % 6)
        for k in range(24 + 4):
            if k < 24:
                work.append(f"v_mfma_f32_4x4x4_16b_bf16 {vr(D(k), 4)}, {vr(CH, 2)}, {vr(Q0 + 2 * k, 2)}, 0")
            if k >= 4:
                work.append(f"v_cvt_pk_bf16_f32 v{Q0 + 2 * (k - 4)}, v{D(k - 4)}, v{D(k - 4) + 1}")
            elif k > 0:
                work.append("s_nop 0")
            if 1 <= k < 25:
                work.append(f"v_mfma_f32_4x4x4_16b_bf16 {vr(D(k - 1), 4)}, {vr(CL, 2)}, {vr(Q0 + 2 * (k - 1), 2)}, {vr(D(k - 1), 4)}")
            if k >= 4:
                work.append(f"v_cvt_pk_bf16_f32 v{Q0 + 2 * (k - 4) + 1}, v{D(k - 4) + 2}, v{D(k - 4) + 3}")
        n1, w1, n2 = cfg.swplan
        for x in work[:n1]:
            if "v_mfma" in x and "q" not in extra_:
                e("s_waitcnt lgkmcnt(0)")
                extra_.add("q")
            e(x)
        e("s_waitcnt lgkmcnt(0)")
        extra_.discard("q")
        for x in writes[:w1]:
            e(x)
        stamp(e, cfg, sStamp, 3)
        bar_sw(e, cfg, 1)
        for x in work[n1:n2]:
            e(x)
        for x in writes[w1:]:
            e(x)
        e("s_waitcnt lgkmcnt(0)")
        stamp(e, cfg, sStamp, 4)
        bar_sw(e, cfg, 2)
        for x in work[n2:]:
            e(x)
        set_prio(e, cfg)
        if par == 0:
            e("s_branch L_first1")
        else:
            emit_first(e, cfg, 0)

    e.c("last block of the second tile: finish, write O (bf16) and the row factors to LDS")
    e("L_end:")
    stamp(e, cfg, sStamp, 5)
    if cfg.probe:
        e("s_memrealtime s[16:17]")
        e("s_memtime s[22:23]")
        e("s_waitcnt lgkmcnt(0)")
    if cfg.dend:
        e("s_memtime s[12:13]")
        e("s_waitcnt lgkmcnt(0)")
    emit_last(e, cfg, 1, True)
    e("s_waitcnt lgkmcnt(0)")
    if cfg.dend:
        e("s_memtime s[16:17]")
    e("s_barrier")
    if cfg.dend:
        e("s_waitcnt lgkmcnt(0)")
        emit_dump(e, 12, 3)
    stamp(e, cfg, sStamp, 6)
    if cfg.probe:
        e("s_load_dwordx2 s[4:5], s[0:1], 72")
        e("s_mov_b32 s6, 0x100000")
        e("s_mov_b32 s7, 0x20000")
        e("s_sub_u32 s22, s22, s20")
        e("s_lshl_b32 s60, s2, 5")
        e("v_mov_b32 v0, s12\nv_mov_b32 v1, s14\nv_mov_b32 v2, s16\nv_mov_b32 v3, s22\nv_mov_b32 v4, 0")
        e("s_waitcnt lgkmcnt(0)")
        e("buffer_store_dwordx3 v[0:2], v4, s[4:7], s60 offen" if cfg.pseg else "buffer_store_dwordx4 v[0:3], v4, s[4:7], s60 offen")
    if cfg.probe == 1:
        e("s_getreg_b32 s61, hwreg(HW_REG_XCC_ID)")
        e("s_getreg_b32 s62, hwreg(HW_REG_HW_ID)")
        e("s_lshl_b32 s60, s2, 3")
        e("s_add_u32 s60, s60, 0x10000")
        e("v_mov_b32 v6, s61\nv_mov_b32 v7, s62")
        e("buffer_store_dwordx2 v[6:7], v4, s[4:7], s60 offen")
    if cfg.dsw or cfg.dst:
        emit_dump(e, sStamp, 11)
    elif cfg.debug:
        e(f"s_memrealtime s[{sStamp + 16}:{sStamp + 17}]")
        e("s_waitcnt lgkmcnt(0)")
        emit_dump(e, sStamp, 10)
    e("s_endpgm")

    for n, par in enumerate(STUBS):
        e(f"L_stub{n}:")
        e(f"s_call_b64 s[{sFbLink}:{sFbLink + 1}], L_fb{par}")
        e(f"s_branch L_chkret{n}")
    for par in (0, 1):
        Sc, Sn, Pc = SB[par], SB[1 - par], PB[par]
        d0, d1, t0, t1 = E0, E0 + 1, E0 + 2, E0 + 3
        e.c("rare path: move the reference max to the true max, rescale, redo this block's exponentials")
        e(f"L_fb{par}:")
        row_max(e, Sc, d0, d1)
        for d in (d0, d1):
            e(f"v_add_f32 v{d}, {hex(f2u(BIAS))}, v{d}")
        for d in (d0, d1):
            e(f"v_max_f32 v{d}, 0, v{d}")
        e(f"v_exp_f32 v{t0}, -v{d0}")
        e(f"v_exp_f32 v{t1}, -v{d1}")
        e("s_nop 0")
        for r in list(range(O0, O0 + 96)) + ([] if sparse_rs() else list(range(LS, LS + 8))):
            e(f"v_mul_f32 v{r}, v{r}, v{t1 if (r >> 2) & 1 else t0}")
        for r in range(4 if sparse_rs() else 0):
            e(f"v_mul_f32 v{LS + r}, v{LS + r}, v{t1 if r >= 2 else t0}")
        for r in list(range(Sc, Sc + 16)) + list(range(Sn, Sn + 16)) + list(range(NM, NM + 8)):
            e(f"v_sub_f32 v{r}, v{r}, v{d1 if (r >> 2) & 1 else d0}")
        for k in range(8):
            e(f"v_exp_f32 v{t0}, v{Sc + 2 * k}")
            e(f"v_exp_f32 v{t1}, v{Sc + 2 * k + 1}")
            e("s_nop 0")
            e(f"v_cvt_pk_bf16_f32 v{preg(Pc, k)}, v{t0}, v{t1}")
        e(f"s_setpc_b64 s[{sFbLink}:{sFbLink + 1}]")


def emit_dump(e, base, n):
    e("s_load_dwordx2 s[4:5], s[0:1], 72")
    e("s_mov_b32 s6, 0x100000")
    e("s_mov_b32 s7, 0x20000")
    e(f"s_lshl_b32 s60, s2, 3")
    e(f"s_add_u32 s60, s60, s{sW}")
    e(f"s_lshl_b32 s60, s60, 7")
    e("v_mov_b32 v1, s60")
    e("s_waitcnt lgkmcnt(0)")
    for i in range(n):
        e(f"v_mov_b32 v2, s{base + 2 * i}")
        e(f"buffer_store_dword v2, v1, s[4:7], 0 offen offset:{4 * i}")
        e("s_waitcnt vmcnt(0)")


hM1, hG, hRw, hLc, hI0, hI1, hPf, hLa = 0, 1, 2, 3, 4, 5, 6, 7
hT = 8
hPfD = 16
hCo0 = 18
hCB = 20
hIDX = 32
hC = 40
hX = 48
hLin, hM0 = 56, 57
hCv = 58
hL = 62
hRG = 64
hCo = [hCo0, hL]
M4 = "v_mfma_f32_4x4x4_16b_bf16"
hTLr = hI1


def slot_reg(R, sl, k):
    return R + 8 * (k >> 2) + 4 * sl + (k & 3)


def region(n):
    return hRG + 24 * n


def cost(x):
    if isinstance(x, tuple):
        return 150 if x[0] == "site" else 0
    if "v_mfma" in x:
        return 60
    op = x.split()[0]
    if op.startswith("v_fmac") or op.startswith("v_mad") or op.startswith("v_fma") or op.startswith("v_lshl_"):
        return 16
    if op in ("v_exp_f32", "v_rcp_f32"):
        return 18
    if op.startswith("v_"):
        return 10
    if op.startswith("ds_"):
        return 20
    return 5


class Helper:
    def __init__(self, e, cfg):
        self.e = e
        self.cfg = cfg
        self.vm = []
        self.nsite = 0
        self.steady = False
        self.nearly, self.ool = 0, []

    def vmem(self, ins, tag, weight=1):
        w = self.cfg.win
        if w and self.steady and len(self.vm) >= w:
            self.e(f"s_waitcnt vmcnt({w - 1})")
            self.vm = self.vm[-(w - 1):]
        self.e(ins)
        self.vm.append((tag, weight))
        assert len(self.vm) <= 56, len(self.vm)

    def wait(self, tag):
        idx = [i for i, t in enumerate(self.vm) if t[0] == tag]
        if not idx:
            return
        last = idx[-1]
        n = sum(w for _, w in self.vm[last + 1:])
        self.e(f"s_waitcnt vmcnt({n})")
        self.vm = self.vm[last + 1:]

    def early_point(self):
        tlate, first, stride = self.cfg.elastic
        ls = self.cur_ls
        self.kitem += 1
        k = self.kitem - 1
        if k < first or (k - first) % stride or any(it[2] == ("dma", ls - 3) for it in self.rest):
            return
        idx = [i for i, t in enumerate(self.vm) if t[0] == ("dma", ls - 3)]
        self.nearly += 1
        n = self.nearly
        self.e(f"s_memtime s[{sNow}:{sNow + 1}]")
        self.e("s_waitcnt lgkmcnt(0)")
        self.e(f"s_sub_u32 s{sNow}, s{sNow}, s{sBar}")
        self.e(f"s_cmp_ge_u32 s{sNow}, s{sEl}")
        self.e(f"s_cbranch_scc1 L_early{n}")
        self.e(f"L_eback{n}:")
        wait = [f"s_waitcnt vmcnt({len(self.vm) - 1 - idx[-1]})"] if idx else []
        self.ool += [f"L_early{n}:"] + wait + ["s_barrier", f"s_memtime s[{sBar}:{sBar + 1}]",
                                               f"s_mov_b32 s{sEl}, -1", f"s_branch L_eback{n}"]
        self.used_early = True

    def put(self, item, weight=1):
        pre, ins, tag, suf = item
        if ins is None:
            return
        if self.cfg.elastic and self.steady:
            self.early_point()
            self.rest = self.rest[1:]
        for x in pre:
            self.e(x)
        if isinstance(ins, list):
            for y in ins:
                self.vmem(y, tag, 0)
        else:
            self.vmem(ins, tag, weight)
        for x in suf:
            self.e(x)

    def dma3(self, srd, so, m0src, pre, tag, fl):
        items = []
        for j in range(3):
            p = []
            if j == 0:
                p = [m0src] + (pre if pre else ["s_nop 0"])
            items.append((p, f"buffer_load_dwordx4 v{hLin}, s[{srd}:{srd + 3}], s{so} offen offset:{j * 1024} {fl} lds", tag, []))
        return items

    def group(self, g):
        pos = g + 5
        pre = [f"s_mov_b32 s{sVoff}, s{sKoff}", f"s_add_u32 s{sKoff}, s{sKoff}, s{sDir}"]
        if self.cfg.rot and 0 < pos < 32 and pos % 4 == 0:
            pre += [f"s_cmp_ge_u32 s{sKoff}, {32 * BLKB}", f"s_cselect_b32 s{sKoff}, s{sHoff}, s{sKoff}"]
        if self.cfg.rot and pos == 32:
            pre += [f"s_add_u32 s{sKoff}, s{sHoff}, {32 * BLKB}"]
        if pos >= 36 and pos % 4 == 0:
            pre += [f"s_cmp_eq_u32 s{sN}, {pos - 4}",
                    f"s_cselect_b32 s{sKoff}, s{sA0}, s{sKoff}",
                    f"s_cselect_b32 s{sDir}, {hex((-BLKB) & 0xffffffff)}, s{sDir}"]
        tag = ("dma", g)
        mk = f"s_add_u32 m0, s{sHl}, {KB + ((pos + 3) % 4) * KBLK}"
        mv = f"s_add_u32 m0, s{sHl}, {((pos - 1) % NVSLOT) * VSLOT}"
        if pos == 0:
            return self.dma3(SRD_K, sKoff, mk, None, tag, self.cfg.nt_kv)
        if pos == 68:
            return self.dma3(SRD_V, sKoff, mv, None, tag, self.cfg.nt_kv)
        return (self.dma3(SRD_K, sKoff, mk, pre, tag, self.cfg.nt_kv)
                + self.dma3(SRD_V, sVoff, mv, None, tag, self.cfg.nt_kv))

    def pf_item(self):
        self.npf = getattr(self, "npf", 0) + 1
        fl = self.cfg.nt_pf if 4 * (self.npf - 1) >= self.cfg.nt_pf_from else ""
        if self.cfg.pfx2:
            ins = f"buffer_load_dwordx2 {vr(hPfD, 2)}, v{hPf}, s[{SRD_PF}:{SRD_PF + 3}], 0 offen offset:60 {fl}"
        else:
            ins = f"buffer_load_dword v{hPfD}, v{hPf}, s[{SRD_PF}:{SRD_PF + 3}], 0 offen {fl}"
        if self.cfg.pf2 is not None and fl:
            ins = [ins, ins.replace(fl, self.cfg.pf2)]
        k = self.npf
        if self.cfg.rot and k < 8:
            return ([], ins, ("pf",), [f"s_cmp_eq_u32 s{sRot}, {8 - k}",
                                       f"s_mov_b32 s{sT1}, {4 * BLKB}",
                                       f"s_cselect_b32 s{sT1}, {hex((-28 * BLKB) & 0xffffffff)}, s{sT1}",
                                       f"v_add_u32 v{hPf}, s{sT1}, v{hPf}"])
        if self.cfg.rot and k == 8:
            return ([], ins, ("pf",), [f"s_add_u32 s{sT1}, s{sRot}, 7", f"s_and_b32 s{sT1}, s{sT1}, 7",
                                       f"s_sub_u32 s{sT1}, 8, s{sT1}", f"s_mul_i32 s{sT1}, s{sT1}, {4 * BLKB}",
                                       f"v_add_u32 v{hPf}, s{sT1}, v{hPf}"])
        return ([], ins, ("pf",), [f"v_add_u32 v{hPf}, {4 * BLKB}, v{hPf}"])

    def q_items(self, i):
        fl = self.cfg.nt_q if self.cfg.nt_qa is None else self.cfg.nt_qa
        if self.cfg.qcont:
            return self.dma3(SRD_Q, sT2, f"s_add_u32 m0, s{sHl}, {RB + i * RBLK}",
                             [f"s_sub_u32 s{sT2}, s{sA0}, {i * BLKB}"], ("qa", i), fl)
        return self.dma3(SRD_Q, sT2, f"s_add_u32 m0, s{sQl}, {i * KRG}",
                         [f"s_add_u32 s{sT2}, s{sRowA}, {i * 3072}"], ("qa", i), fl)

    def q_reads(self, tile, i, q):
        return ([("wait", ("qa", i))] if tile else []) + [
            f"ds_read_b128 {vr(q + 4 * a, 4)}, v{hRw} offset:{ROFF + i * KRG + a * 128}" for a in range(3)]

    def job_items(self, job):
        kind, tile, i = job
        srd = SRD_MK if kind == "s" else SRD_MV
        tag = ("job", job)
        items = []
        p = hIDX + 4 * tile + i
        R = region(4 * tile + i)
        for sl in range(2):
            for a in range(3):
                pre = []
                if a == 0:
                    pre = [f"v_and_b32 v{hI0}, 0xffff, v{p}" if sl == 0 else f"v_lshrrev_b32 v{hI0}, 16, v{p}",
                           f"v_mad_u32_u24 v{hI0}, v{hI0}, s{s384}, v{hLc}"]
                items.append((pre, f"buffer_load_dwordx4 {vr(R + 8 * a + 4 * sl, 4)}, v{hI0}, s[{srd}:{srd + 3}], 0 offen "
                              f"offset:{a * 128} {self.cfg.nt_g}", tag, []))
        return items

    def job_ops(self, job, qbuf=None):
        kind, tile, i = job
        R = region(4 * tile + i)
        cp = hC + 4 * tile + i
        o = [("wait", ("job", job))]
        dp = " row_mask:0xf bank_mask:0xf"
        pr = self.cfg.m4prio
        if kind == "s":
            q = hCB if qbuf is None else qbuf
            if qbuf is None:
                o = self.q_reads(tile, i, q) + o
            D = [[hT, hT + 4], [hX, hX + 4]]
            o.append("s_waitcnt lgkmcnt(0)")
            b = [f"s_setprio {pr}"]
            for n in range(6):
                for sl in range(2):
                    d = D[sl][n & 1]
                    if n == 5:
                        pass
                    c = "0" if n < 2 else vr(d, 4)
                    b.append(f"{M4} {vr(d, 4)}, {vr(q + 2 * n, 2)}, {vr(slot_reg(R, sl, 2 * n), 2)}, {c}")
            b.append("s_setprio 0")
            o.append("\n".join(b))
            s0, s1, m = R, R + 1, R + 2
            o.append("s_nop 1")
            for par in range(2):
                for u in range(4):
                    for sl, s_ in ((0, s0), (1, s1)):
                        if par == 0 and u == 0:
                            o.append(f"v_mov_b32_dpp v{s_}, v{D[sl][0]} quad_perm:[0,0,0,0]{dp}")
                        else:
                            o.append(f"v_add_f32_dpp v{s_}, v{D[sl][par] + u}, v{s_} quad_perm:[{u},{u},{u},{u}]{dp}")
            o.append("|")
            o.append(f"v_add_f32_dpp v{s0}, v{s0}, v{s0} row_half_mirror{dp}")
            o.append(f"v_add_f32_dpp v{s1}, v{s1}, v{s1} row_half_mirror{dp}")
            o += [f"v_max_f32 v{m}, v{s0}, v{s1}",
                  f"v_sub_f32 v{s0}, v{s0}, v{m}",
                  f"v_sub_f32 v{s1}, v{s1}, v{m}"]
            if tile == 1:
                o += [f"v_mul_f32 v{s0}, s{sScale}, v{s0}", f"v_mul_f32 v{s1}, s{sScale}, v{s1}"]
            o += [f"v_exp_f32 v{s0}, v{s0}",
                  f"v_exp_f32 v{s1}, v{s1}",
                  "s_nop 0",
                  f"v_add_f32 v{m}, v{s0}, v{s1}",
                  f"v_rcp_f32 v{m}, v{m}",
                  "s_nop 0",
                  f"v_mul_f32 v{m}, s{sG}, v{m}",
                  f"v_mul_f32 v{s0}, v{s0}, v{m}",
                  f"v_mul_f32 v{s1}, v{s1}, v{m}",
                  f"v_cvt_pk_bf16_f32 v{cp}, v{s0}, v{s1}"]
            if self.cfg.ab_coarse:
                o.append(f"v_and_b32 v{cp}, {hex(self.cfg.ab_coarse)}, v{cp}")
        else:
            o = [f"v_perm_b32 v{hCv + 1}, v{cp}, v{cp}, s{sSelLo}",
                 f"v_perm_b32 v{hCv + 3}, v{cp}, v{cp}, s{sSelHi}",
                 f"v_and_b32 v{hCv}, v{hM0}, v{hCv + 1}",
                 f"v_and_b32 v{hCv + 1}, v{hM1}, v{hCv + 1}",
                 f"v_and_b32 v{hCv + 2}, v{hM0}, v{hCv + 3}",
                 f"v_and_b32 v{hCv + 3}, v{hM1}, v{hCv + 3}"] + o
            T = [hT, hT + 4, hX, hX + 4]
            A = lambda k: f"{M4} {vr(T[k % 4], 4)}, {vr(hCv, 2)}, {vr(R + 8 * (k >> 1) + 2 * (k & 1), 2)}, 0"
            B = lambda k: (f"{M4} {vr(R + 4 * k, 4)}, {vr(hCv + 2, 2)}, {vr(R + 8 * (k >> 1) + 4 + 2 * (k & 1), 2)}, "
                           f"{vr(T[k % 4], 4)}")
            o.append("\n".join(["s_nop 0", f"s_setprio {pr}", A(0), A(1), A(2), A(3), B(0), B(1), A(4), A(5),
                                 B(2), B(3), B(4), B(5), "s_setprio 0"]))
        return o

    def run_op(self, x):
        if self.cfg.ab_noburst and isinstance(x, str) and "v_mfma" in x:
            return
        if isinstance(x, tuple):
            if x[0] == "wait":
                self.wait(x[1])
            else:
                self.combine_site(x[1])
        else:
            self.e(x)

    def interleave(self, items, ops, start=0.0):
        tot = sum(cost(x) for x in ops)
        n = len(items)
        pos = [tot * (start + (1 - start) * k / max(n, 1)) for k in range(n)]
        if self.cfg.vfirst:
            pos = [0.0] * n
        acc, k = 0.0, 0
        for x in ops:
            while k < n and acc >= pos[k] - 1e-9:
                self.put(items[k])
                k += 1
            self.run_op(x)
            acc += cost(x)
        while k < n:
            self.put(items[k])
            k += 1

    def coef_ins(self, lp, co):
        return [f"v_and_b32 v{co[0]}, v{hM0}, v{lp}",
                f"v_and_b32 v{co[0] + 1}, v{hM1}, v{lp}",
                f"v_and_b32 v{co[1]}, v{hM0}, v{lp + 1}",
                f"v_and_b32 v{co[1] + 1}, v{hM1}, v{lp + 1}"][:4 if self.cfg.flo else 2]

    def comb_mfma1(self, tile, i, k, ob, co, u):
        R = region(4 * tile + i)
        return (f"v_mfma_f32_4x4x4_16b_bf16 {vr(R + 4 * k, 4)}, {vr(co[u], 2)}, {vr(ob + 2 * (k ^ (i & 1)), 2)}, "
                f"{vr(R + 4 * k, 4)}")

    def comb_mfma(self, tile, i, ob, co):
        return [self.comb_mfma1(tile, i, k, ob, co, u) for u in range(2 if self.cfg.flo else 1) for k in range(6)]

    def comb_out(self, tile, i, cols=(0, 1, 2)):
        R = region(4 * tile + i)
        so = ([sRowB, sRowA][tile]) if i < 2 else ([sRowB2, sRowA2][tile])
        o = []
        for a in cols:
            P = R + 8 * a
            for k in range(4):
                o.append(f"v_cvt_pk_bf16_f32 v{P + k}, v{P + 2 * k}, v{P + 2 * k + 1}")
            o.append(f"buffer_store_dwordx4 {vr(P, 4)}, v{hG}, s[{SRD_OUT}:{SRD_OUT + 3}], s{so} offen "
                     f"offset:{(i & 1) * 3072 + a * 128} "
                     f"{self.cfg.nt_outB if tile == 0 and self.cfg.nt_outB is not None else self.cfg.nt_out}")
        return o

    def combine_state(self, st):
        e = self.e
        e(f"s_mov_b32 s{sDone}, {st + 1}")
        if st % 2 == 1:
            e("s_waitcnt lgkmcnt(0)")
            for x in self.coef_ins(hL, hCo):
                e(x)
            e("s_nop 0")
            e("s_setprio 3")
            for x in self.comb_mfma(0, st // 2, hCB, hCo):
                e(x)
            e("s_setprio 0")
        nx = (st + 1) // 2
        if (st == 0 or st % 2 == 1) and nx < 4:
            for a in range(3):
                e(f"ds_read_b128 {vr(hCB + 4 * a, 4)}, v{hRw} offset:{ROFF + orow(nx) + a * 128}")
            e(f"ds_read_b64 {vr(hL, 2)}, v{hLa} offset:{ROFF + orow(nx) + 384}")
        if st > 0 and st % 2 == 0:
            for x in self.comb_out(0, st // 2 - 1):
                e(x)

    def combine_site(self, lstep):
        e = self.e
        self.nsite += 1
        label = f"L_cs{self.nsite}"
        if lstep is not None:
            e(f"s_cmp_gt_u32 s{sC0}, {lstep}")
            e(f"s_cbranch_scc1 {label}")
        e(f"s_call_b64 s[{sLink}:{sLink + 1}], L_combB")
        e(f"{label}:")

    def barrier(self):
        self.e("s_waitcnt lgkmcnt(0)")
        self.e("s_barrier")

    def prologue(self):
        e, cfg = self.e, self.cfg
        e("L_helper:")
        stamp(e, cfg, sHStamp, 0)
        if cfg.pre or cfg.k0late:
            e("s_setprio 3")
        e(f"s_sub_u32 s{sH}, s{sW}, 4")
        L, A, B_, C_ = 8, 9, 10, 11
        e(f"v_and_b32 v{L}, 63, v0")
        e(f"v_lshlrev_b32 v{hLin}, 4, v{L}")
        e(f"s_mul_i32 s60, s{sHead}, {HEADB}")
        e(f"s_mul_i32 s{sHoff}, s{sH}, 3072")
        e(f"s_mul_i32 s{sHl}, s{sH}, {KRG}")
        e(f"s_mov_b32 s{sKoff}, s{sHoff}")
        if cfg.rot:
            e(f"s_lshr_b32 s{sRot}, s{sHead}, 3")
            e(f"s_mul_i32 s{sRot}, s{sRot}, {cfg.rot}")
            e(f"s_add_u32 s{sRot}, s{sRot}, s{sHead}")
            e(f"s_and_b32 s{sRot}, s{sRot}, 7")
            e(f"s_mul_i32 s{sT1}, s{sRot}, {4 * BLKB}")
            e(f"s_add_u32 s{sKoff}, s{sKoff}, s{sT1}")
        e(f"s_mov_b32 s{sDir}, {BLKB}")
        for srd in (SRD_K, SRD_V, SRD_PF):
            e(f"s_mov_b32 s{srd + 2}, {HEADB}")
            e(f"s_mov_b32 s{srd + 3}, 0x20000")
        e("s_waitcnt lgkmcnt(0)")
        for n, srd in ((1, SRD_K), (2, SRD_V)):
            e(f"s_add_u32 s{srd}, s{36 + 2 * n}, s60")
            e(f"s_addc_u32 s{srd + 1}, s{37 + 2 * n}, 0")
        if cfg.qfirst != 1 and not cfg.k0late:
            for it in self.group(-5):
                self.put(it)
        for k in range(cfg.pre):
            e(f"s_setprio {cfg.preprio[k]}")
            for it in self.group(-4 + k):
                self.put(it)
        if cfg.pre:
            e("s_setprio 0")
        e(f"s_and_b32 s{sT2}, s{sP}, 3")
        e(f"s_lshl2_add_u32 s{sT2}, s{sH}, s{sT2}")
        e(f"s_mul_i32 s{sT2}, s{sT2}, 3072")
        if cfg.rot:
            e(f"s_add_u32 s{sT2}, s{sT2}, s{sT1}")
        e(f"v_lshlrev_b32 v{hPf}, {7 if cfg.pfx2 else 6}, v{L}")
        e(f"v_add_u32 v{hPf}, s{sT2}, v{hPf}")
        e(f"v_cmp_lt_u32 vcc, {23 if cfg.pfx2 else 47}, v{L}")
        e(f"v_mov_b32 v{C_}, 0x40000000")
        e(f"s_cmp_lt_u32 s{sP}, 4")
        e(f"s_cselect_b32 s{SRD_PF}, s{SRD_K}, s{SRD_V}")
        e(f"s_cselect_b32 s{SRD_PF + 1}, s{SRD_K + 1}, s{SRD_V + 1}")
        e(f"v_cndmask_b32 v{hPf}, v{hPf}, v{C_}, vcc")
        if cfg.pfskip:
            e(self.pf_item()[3][0])
        else:
            self.put(self.pf_item())
        if "D" in cfg.order.replace("+", " ").split():
            assert not cfg.rewarm and not cfg.tl
            e(f"v_add_u32 v{hI1}, {24 * BLKB}, v{hPf}")
        if cfg.k0late:
            e("s_setprio 0")
        e("s_branch L_helper2")

    def schedule(self, jobs, voff):
        e, cfg = self.e, self.cfg
        NI = 67
        order = cfg.order.split() if jobs else []
        cl = [c + voff for c in cfg.cl]
        assert len(cl) >= len(order)
        miss = {c: [] for c in cl}
        work = [[] for _ in range(NI)]
        vjobs, issue, done, first_issue = [], {}, {}, {}
        for c, toks in zip(cl, order):
            for tok in toks.split("+"):
                if tok == "T":
                    miss[c].append("T")
                    continue
                if tok == "X":
                    miss[c].append("X")
                    continue
                if tok == "D":
                    miss[c].append(([], f"buffer_load_dwordx2 {vr(hPfD, 2)}, v{hI1}, s[{SRD_PF}:{SRD_PF + 3}], 0 offen offset:60",
                                    ("pf",), [f"v_subrev_u32 v{hI1}, {4 * BLKB}, v{hI1}"]))
                    continue
                half = None
                if tok[-1] in "ab" and len(tok) == 4:
                    half, tok = "ab".index(tok[-1]), tok[:3]
                    job = ("s" if tok[0] == "S" else "v", "BA".index(tok[1]), int(tok[2]))
                    miss[c] += self.job_items(job)[3 * half:3 * half + 3]
                    first_issue.setdefault(tok, c)
                    if half == 1:
                        issue[tok] = c
                        if job[0] == "v":
                            vjobs.append((tok, job, c + cfg.lat))
                    continue
                first_issue.setdefault(tok, c)
                issue[tok] = c
                if tok[0] == "Q":
                    miss[c] += self.q_items(2 * int(tok[1])) + self.q_items(2 * int(tok[1]) + 1)
                    issue[f"q{2 * int(tok[1])}"] = issue[f"q{2 * int(tok[1]) + 1}"] = c
                    continue
                if tok[0] == "q":
                    miss[c] += self.q_items(int(tok[1]))
                    continue
                job = ("s" if tok[0] == "S" else "v", "BA".index(tok[1]), int(tok[2]))
                miss[c] += self.job_items(job)
                if job[0] == "v":
                    vjobs.append((tok, job, c + cfg.lat))
        for tok, c in list(issue.items()):
            if tok[0] == "S":
                tile, i = "BA".index(tok[1]), int(tok[2])
                t = c + cfg.lat
                if tile == 1 and t > 30:
                    work[30] += self.q_reads(1, i, region(i))
                    ops = self.job_ops(("s", 1, i), region(i))
                    assert first_issue[f"MB{i}"] > t + cfg.sdur
                else:
                    ops = self.job_ops(("s", tile, i))
                if tile == 1 and cfg.qcont:
                    qs = [issue[f"q{x}"] for x in range(4)]
                    assert max(qs) + 4 <= min(t, 30) and min(qs) > max(issue[f"SB{x}"] for x in range(4)) + cfg.lat
                if tile == 1:
                    assert issue[f"q{i}"] + 2 <= min(t, 30) and issue[f"q{i}"] > issue[f"SB{i}"] + cfg.lat
                h = ops.index("|")
                work[t] += ops[:h]
                work[t + 1] = ops[h + 1:] + work[t + 1]
                done[tok] = t + 1
        if cfg.idxlate:
            work[cl[0] - 1] += [("wait", ("idx",))] + [
                f"v_lshl_or_b32 v{hIDX + n}, v{region(7) + 2 * n + 1}, 16, v{region(7) + 2 * n}" for n in range(8)]
        work[32] = [f"v_sub_u32 v{hLa}, v{hG}, v{hLc}",
                    f"v_mul_u32_u24 v{hLa}, 25, v{hLa}",
                    f"s_mov_b32 s{sT0}, 0xaaab",
                    f"v_lshrrev_b32 v{hLa}, 3, v{hLa}",
                    f"v_mul_u32_u24 v{hLa}, s{sT0}, v{hLa}",
                    f"s_sub_u32 s{sT0}, s{sQl}, {ROFF}",
                    f"v_lshrrev_b32 v{hLa}, 17, v{hLa}",
                    f"v_add_u32 v{hLa}, s{sT0}, v{hLa}",
                    f"v_add_u32 v{hRw}, v{hLa}, v{hLc}"] + work[32]
        win = {}
        for k, (tok, job, t) in enumerate(vjobs):
            assert done["S" + tok[1:]] < first_issue[tok]
            nx = vjobs[k + 1][2] if k + 1 < len(vjobs) else NI
            win[tok] = (t, min(t + cfg.vdur, nx, NI))
            done[tok] = win[tok][1] - 1
        lastv = max([w[1] for w in win.values()] + [0])
        sites, ns = {}, 0
        for ls in range(35, NI):
            if not jobs:
                break
            allowed = 1 + 2 * sum(1 for u in range(4) if all(done[f"MB{x}"] < ls for x in range(u + 1)))
            want = cfg.lastsites if ls >= 64 else cfg.tailsites if ls >= lastv else (1 if (ls - voff) % cfg.sitemod[0] in cfg.sitemod[1:] else 0)
            for y in range(want):
                if ns < allowed or allowed == 9:
                    sites[ls] = sites.get(ls, 0) + 1
                    ns += 1
        for tok, job, t in vjobs:
            work[t] += self.job_ops(job)
        nxt_asc = 4 * (cfg.pf0 + len(cfg.pfat))
        explicit = "T" in cfg.order.replace("+", " ").split()
        for k, c in enumerate(cl):
            if explicit:
                for n, it in enumerate(miss[c]):
                    if it == "X":
                        work[c] = self.pf_item()[3] + work[c]
                        miss[c][n] = ([], None, ("pf",), [])
                        nxt_asc += 4
                    if it == "T":
                        if cfg.verbose:
                            print("touch", nxt_asc, "at", c, "first needed", nxt_asc - 4)
                        miss[c][n] = self.pf_item()
                        nxt_asc += 4
                continue
            horizon = (cl[k + 1] if k + 1 < len(cl) else NI) + 4
            while cfg.pf and nxt_asc < 64 and nxt_asc < horizon + cfg.pd:
                miss[c].append(self.pf_item())
                nxt_asc += 4
        if cfg.rewarm:
            assert not cfg.tl
            for c in (cl[1::cfg.rewarm] if isinstance(cfg.rewarm, int) else [x + voff for x in cfg.rewarm]):
                miss[c].append(([], f"global_load_dword v{hPfD}, v{hI1}, s[{sCode}:{sCode + 1}]", ("pf",), []))
        cls = sorted(c for c in cl if miss[c])
        queue = self.group(-2) if cfg.late2 and cfg.pre < 3 else []
        self.steady = True
        for ls in range(NI):
            e.c(f"---- interval {ls}")
            if ls - 1 <= 63 and not (cfg.ab_nodma and ls > 4):
                queue += self.group(ls - 1)
            if ls in cls:
                n = cfg.apre
                m = n + cfg.apost
                vm, queue = queue[:n] + miss[ls] + queue[n:m], queue[m:]
            else:
                prev = max([c for c in cls if c < ls] + [-2])
                nx = min([c for c in cls if c > ls] + [max(prev + 4, ls + 1)])
                future = sum(len(self.group(g - 1)) for g in range(ls + 1, nx) if g - 1 <= 63)
                n = min(len(queue), -(-(len(queue) + future) // (nx - ls)))
                if cfg.bmax and (ls - 1) in cls and nx - ls > 1:
                    n = min(n, cfg.bmax)
                vm, queue = queue[:n], queue[n:]
                if cfg.pf and ls in cfg.pfat:
                    vm = vm + [self.pf_item()]
            c = list(work[ls])
            for y in range(sites.get(ls, 0)):
                c.insert(len(c) // 2, ("site", ls))
            self.cur_ls, self.kitem, self.rest, self.used_early = ls, 0, list(vm), False
            self.interleave(vm, c, cfg.bstart if (ls - 1) in cls else 0.0)
            assert not any(it[2] == ("dma", ls - 3) for it in queue)
            if self.used_early:
                e(f"s_cmp_eq_u32 s{sEl}, -1")
                e(f"s_mov_b32 s{sEl}, {cfg.elastic[0]}")
                e(f"s_cbranch_scc1 L_skip{voff}_{ls}".replace("-", "m"))
            self.wait(("dma", ls - 3))
            if cfg.tl and ls < 63:
                e("s_memtime s[84:85]")
            self.barrier()
            if cfg.elastic:
                e(f"s_memtime s[{sBar}:{sBar + 1}]")
            if self.used_early:
                e(f"L_skip{voff}_{ls}:".replace("-", "m"))
            if cfg.pseg and ls in cfg.pseg:
                e(f"s_memtime s[{82 + 2 * cfg.pseg.index(ls)}:{83 + 2 * cfg.pseg.index(ls)}]")
            if cfg.tl and ls < 63:
                e("s_memtime s[80:81]")
                e("s_waitcnt lgkmcnt(0)")
                e("s_sub_u32 s84, s84, s82")
                e("s_sub_u32 s85, s80, s82")
                e("s_mov_b32 s82, s80")
                e("s_pack_ll_b32_b16 s84, s85, s84")
                e(f"v_writelane_b32 v{hTLr}, s84, {ls + 1}")
        assert not queue

    def program(self):
        e, cfg = self.e, self.cfg
        L, A, B_, C_ = 8, 9, 10, 11
        e("L_helper2:")
        if cfg.rewarm:
            e(f"s_getpc_b64 s[{sCode}:{sCode + 1}]")
            e("L_pc2:")
            e(f"s_sub_u32 s{sCode}, s{sCode}, L_pc2-L_ev0")
            e(f"s_subb_u32 s{sCode + 1}, s{sCode + 1}, 0")
            e(f"s_lshr_b32 s{sT2}, s2, 3")
            e(f"s_lshl2_add_u32 s{sT2}, s{sT2}, s{sH}")
            e(f"s_lshl_b32 s{sT2}, s{sT2}, 8")
            e(f"v_and_b32 v{hI1}, 3, v{L}")
            e(f"v_lshl_add_u32 v{hI1}, v{hI1}, 6, s{sT2}")
            e(f"v_min_u32 v{hI1}, L_code_end-L_ev0-4, v{hI1}")
        for n, srd in ((0, SRD_Q), (3, SRD_MK), (4, SRD_MV), (7, SRD_OUT)):
            e(f"s_add_u32 s{srd}, s{36 + 2 * n}, s60")
            e(f"s_addc_u32 s{srd + 1}, s{37 + 2 * n}, 0")
            e(f"s_mov_b32 s{srd + 2}, {HEADB}")
            e(f"s_mov_b32 s{srd + 3}, 0x20000")
        e(f"s_lshl_b32 s61, s{sHead}, 14")
        e(f"s_add_u32 s{SRD_IDX}, s46, s61")
        e(f"s_addc_u32 s{SRD_IDX + 1}, s47, 0")
        e(f"s_mov_b32 s{SRD_IDX + 2}, 16384")
        e(f"s_mov_b32 s{SRD_IDX + 3}, 0x20000")
        e(f"s_lshr_b32 s{sT0}, s{sHead}, 1")
        e(f"s_lshl_b32 s{sT0}, s{sT0}, 2")
        e(f"s_load_dword s{sT3}, s[48:49], s{sT0}")
        e(f"v_lshrrev_b32 v{A}, 3, v{L}")
        e(f"v_and_b32 v{hLc}, 7, v{L}")
        e(f"v_lshlrev_b32 v{hLc}, 4, v{hLc}")
        e(f"v_mul_u32_u24 v{hG}, {ROWB}, v{A}")
        e(f"v_add_u32 v{hG}, v{hG}, v{hLc}")
        e(f"s_add_u32 s{sT1}, s{sN}, s{sH}")
        e(f"s_mul_i32 s{sRowB}, s{sT1}, {BLKB}")
        e(f"s_sub_u32 s{sT2}, 63, s{sT1}")
        e(f"s_mul_i32 s{sRowA}, s{sT2}, {BLKB}")
        e(f"s_add_u32 s{sRowB2}, s{sRowB}, {16 * ROWB}")
        e(f"s_add_u32 s{sRowA2}, s{sRowA}, {16 * ROWB}")
        e(f"s_lshl_b32 s60, s{sT1}, 8")
        e(f"s_lshl_b32 s61, s{sT2}, 8")
        e(f"s_add_u32 s{sC0}, s{sT1}, 3")
        e(f"s_sub_u32 s{sA0}, 63, s{sN}")
        e(f"s_mul_i32 s{sA0}, s{sA0}, {BLKB}")
        e(f"s_add_u32 s{sA0}, s{sA0}, s{sHoff}")
        e(f"v_lshlrev_b32 v{B_}, 3, v{A}")
        def idx_loads():
            for tile in range(2):
                for i in range(4):
                    r = region(7) + 8 * tile + 2 * i
                    self.vmem(f"buffer_load_dwordx2 {vr(r, 2)}, v{B_}, s[{SRD_IDX}:{SRD_IDX + 3}], s{60 + tile} offen offset:{64 * i}",
                              ("idx",))
        if not cfg.idxlate:
            idx_loads()
        e(f"s_mul_i32 s{sQl}, s{sH}, {RBLK}")
        e(f"s_add_u32 s{sT2}, s{sQl}, {EB}")
        e(f"s_add_u32 s{sQl}, s{sQl}, {RB}")
        e(f"v_add_u32 v{hRw}, s{sT2}, v{hG}")
        e(f"s_mov_b32 s{sScale}, {hex(CSCALE)}")
        e(f"s_mov_b32 s{sMaskHi}, 0xffff0000")
        e(f"s_mov_b32 s{s384}, {ROWB}")
        if cfg.elastic:
            e(f"s_mov_b32 s{sEl}, {cfg.elastic[0]}")
        e(f"s_mov_b32 s{sSelLo}, 0x01000100")
        e(f"s_mov_b32 s{sSelHi}, 0x03020302")
        e(f"s_mov_b32 s{sDone}, 0")
        e("s_waitcnt lgkmcnt(0)")
        emit_gate(e, sT3, sT1, 14, sG, None)
        if cfg.tlbw:
            e(f"s_cmp_eq_u32 s{sH}, 0")
            e(f"s_cselect_b64 s[{sTl}:{sTl + 1}], s[{SRD_MK}:{SRD_MK + 1}], s[{SRD_MV}:{SRD_MV + 1}]")
            e(f"s_cmp_eq_u32 s{sH}, 2")
            e(f"s_cselect_b64 s[{sTl}:{sTl + 1}], s[{SRD_OUT}:{SRD_OUT + 1}], s[{sTl}:{sTl + 1}]")
            e(f"s_cmp_eq_u32 s{sH}, 3")
            e(f"s_cselect_b64 s[{sTl}:{sTl + 1}], s[{SRD_Q}:{SRD_Q + 1}], s[{sTl}:{sTl + 1}]")
            e(f"s_mov_b32 s{sTl + 2}, {HEADB}")
            e(f"s_mov_b32 s{sTl + 3}, 0x20000")
            e(f"v_mul_u32_u24 v{C_}, {cfg.tlbs}, v{L}")
            self.vmem(f"buffer_load_dword v{hPfD}, v{C_}, s[{sTl}:{sTl + 3}], 0 offen nt", ("pf",))
        if cfg.qfirst:
            e("s_barrier")
        if cfg.qfirst == 1 or cfg.k0late:
            for it in self.group(-5):
                self.put(it)
        if cfg.pre < 1:
            for it in self.group(-4):
                self.put(it)
        if cfg.pfearly:
            self.put(self.pf_item())
        if cfg.early3 and cfg.pre < 2:
            for it in self.group(-3):
                self.put(it)
        self.wait(("dma", -5))
        jobs = ([("s", 0, i) for i in range(4)] + [("s", 1, i) for i in range(4)]
                + [("v", 0, i) for i in range(4)] + [("v", 1, i) for i in range(4)])
        if cfg.ab_nojobs:
            jobs = []
        stamp(e, cfg, sHStamp, 1)
        e("s_barrier")
        if cfg.tl or (cfg.pseg and cfg.pseg[0] == -2):
            e("s_memtime s[82:83]")
        if not cfg.early3 and cfg.pre < 2:
            for it in self.group(-3):
                self.put(it)
        if not cfg.late2 and cfg.pre < 3:
            for it in self.group(-2):
                self.put(it)
        for x in range(cfg.pf0 - 1 - cfg.pfearly if cfg.pf else 0):
            self.put(self.pf_item())
        if cfg.idxlate:
            idx_loads()
        self.wait(("dma", -4))
        if not cfg.idxlate:
            self.wait(("idx",))
        for n in range(0 if cfg.idxlate else 8):
            e(f"v_lshl_or_b32 v{hIDX + n}, v{region(7) + 2 * n + 1}, 16, v{region(7) + 2 * n}")
            if cfg.ab_idx:
                e(f"v_and_b32 v{hIDX + n}, {hex(cfg.ab_idx * 0x10001)}, v{hIDX + n}")
        if cfg.tl:
            e("s_memtime s[84:85]")
        e("s_barrier")
        if cfg.elastic:
            e(f"s_memtime s[{sBar}:{sBar + 1}]")
        if cfg.tl:
            e("s_memtime s[80:81]")
            e("s_waitcnt lgkmcnt(0)")
            e("s_sub_u32 s84, s84, s82")
            e("s_sub_u32 s85, s80, s82")
            e("s_mov_b32 s82, s80")
            e("s_pack_ll_b32_b16 s84, s85, s84")
            e(f"v_writelane_b32 v{hTLr}, s84, 0")

        for x in [f"v_and_b32 v{hM1}, 16, v{hLc}",
                  f"s_mov_b32 s{sT0}, 0xffff",
                  f"v_lshlrev_b32 v{hM1}, v{hM1}, s{sT0}",
                  f"v_bfe_i32 v{hT}, v{hLc}, 5, 1",
                  f"v_bfi_b32 v{hM0}, v{hT}, 0, v{hM1}",
                  f"v_and_b32 v{hM1}, v{hT}, v{hM1}"]:
            e(x)
        vm0, npf0 = list(self.vm), self.npf
        nv = len(cfg.voffs)
        if nv > 1:
            e(f"s_lshr_b32 s{sT0}, s{sHead}, 3")
            e(f"s_and_b32 s{sT0}, s{sT0}, {nv - 1}")
            for v in range(1, nv):
                e(f"s_cmp_eq_u32 s{sT0}, {v}")
                e(f"s_cbranch_scc1 L_var{v}")
        for v, voff in enumerate(cfg.voffs):
            e(f"L_var{v}:")
            self.vm, self.npf = list(vm0), npf0
            self.schedule(jobs, voff)
            if v + 1 < nv:
                e("s_branch L_tail_done")
        e("L_tail_done:")
        obs = [hT, hT + 4, hIDX, hIDX + 4]
        cos = [[hC + 8 + 2 * i, hC + 2 * i] for i in range(4)]
        if cfg.dend:
            e("s_memtime s[64:65]" if False else "s_memtime s[80:81]")
        for y in range(cfg.presites):
            self.combine_site(67)
        e(f"s_setprio {cfg.endprio}")
        self.barrier()
        if cfg.dend:
            e("s_memtime s[82:83]")
            e("s_waitcnt lgkmcnt(0)")
        for i in range(4):
            e(f"ds_read_b64 {vr(hC + 2 * i, 2)}, v{hLa} offset:{orow(i) + 384}")
        for i in range(4):
            e(f"ds_read_b128 {vr(obs[i], 4)}, v{hRw} offset:{orow(i)}")
        e("s_waitcnt lgkmcnt(4)")
        for i in range(4):
            for x in self.coef_ins(hC + 2 * i, cos[i]):
                e(x)

        def acc_cols(a, bufs, left):
            for u in range(2 if cfg.flo else 1):
                for i in range(4):
                    if u == 0:
                        e(f"s_waitcnt lgkmcnt({3 - i + left})")
                    for k in (2 * a, 2 * a + 1):
                        e(self.comb_mfma1(1, i, k, bufs[i] - 4 * a, cos[i], u))

        def out_cols(a):
            for i in range(4):
                for x in self.comb_out(1, i, (a,)):
                    e(x)
        acc_cols(0, obs, 0)
        if cfg.dend:
            e("s_memtime s[84:85]")
        for a in (1, 2):
            if a in cfg.outearly:
                out_cols(a - 1)
            if a <= len(cfg.endpub):
                e("s_barrier")
            if cfg.dend:
                e(f"s_memtime s[{84 + 2 * a}:{85 + 2 * a}]")
                e("s_waitcnt lgkmcnt(0)")
            for i in range(4):
                e(f"ds_read_b128 {vr(obs[i], 4)}, v{hRw} offset:{orow(i) + 128 * a}")
            if a not in cfg.outearly:
                out_cols(a - 1)
            acc_cols(a, obs, 0)
        out_cols(2)
        e("L_rest:")
        e(f"s_cmp_ge_u32 s{sDone}, 9")
        e("s_cbranch_scc1 L_fin")
        self.combine_site(None)
        e("s_branch L_rest")
        e("L_fin:")
        if cfg.dend:
            e("s_memtime s[90:91]")
            e("s_waitcnt vmcnt(0)")
            e("s_memtime s[92:93]")
            e("s_waitcnt lgkmcnt(0)")
            emit_dump(e, 80, 7)
        if cfg.probe:
            e("s_load_dwordx2 s[4:5], s[0:1], 72")
            e("s_mov_b32 s6, 0x100000")
            e("s_mov_b32 s7, 0x20000")
            e("s_lshl_b32 s60, s2, 3")
            e(f"s_add_u32 s60, s60, s{sW}")
            e("s_lshl_b32 s60, s60, 2")
            e("s_waitcnt vmcnt(0)")
            e("s_memrealtime s[80:81]")
            e("s_waitcnt lgkmcnt(0)")
            e("v_mov_b32 v0, s80\nv_mov_b32 v4, 0")
            e("buffer_store_dword v0, v4, s[4:7], s60 offen")
            if cfg.pseg:
                e("s_sub_u32 s84, s84, s82")
                e("s_lshl_b32 s60, s2, 5")
                e("v_mov_b32 v1, s84")
                e("buffer_store_dword v1, v4, s[4:7], s60 offen offset:12")
        if cfg.debug:
            e("s_waitcnt vmcnt(0)")
            stamp(e, cfg, sHStamp, 2)
            emit_dump(e, sHStamp, 3)
        if cfg.tl:
            e("s_load_dwordx2 s[4:5], s[0:1], 72")
            e("s_mov_b32 s6, 0x100000")
            e("s_mov_b32 s7, 0x20000")
            e(f"s_lshl_b32 s60, s2, 2")
            e(f"s_add_u32 s60, s60, s{sH}")
            e(f"s_lshl_b32 s60, s60, 9")
            e(f"s_add_u32 s60, s60, 0x80000")
            e("v_mbcnt_lo_u32_b32 v1, -1, 0")
            e("v_mbcnt_hi_u32_b32 v1, -1, v1")
            e("v_lshlrev_b32 v1, 2, v1")
            e("s_waitcnt lgkmcnt(0)")
            e(f"buffer_store_dword v{hTLr}, v1, s[4:7], s60 offen")
        e("s_endpgm")

        for x in self.ool:
            e(x)
        e.c("output of the first tile, one piece per call")
        e("L_combB:")

        def tree(lo, hi):
            if hi - lo == 1:
                self.combine_state(lo)
                if lo == 8:
                    e(f"s_mov_b32 s{sC0}, 1000")
                e(f"s_setpc_b64 s[{sLink}:{sLink + 1}]")
                return
            mid = (lo + hi) // 2
            e(f"s_cmp_lt_u32 s{sDone}, {mid}")
            e(f"s_cbranch_scc0 L_cb_{mid}_{hi}")
            tree(lo, mid)
            e(f"L_cb_{mid}_{hi}:")
            tree(mid, hi)
        tree(0, 9)


HEADER = open("cdna_kernels/" + NAME + ".s.ref").read().split("; Override launch")[0]


DESC = """;
;     Q is pre-scaled by scale*log2(e); the reference max (true max of the tile's first block, +16) enters as the
;     C operand of the first QK MFMA; every block is checked (any p >= 2) and L_fb* moves the reference to the true
;     running max and rescales O / row sums when that happens.  Row sums come from one sparse MFMA per block.
;  waves 4-7 (helpers): LDS-DMA of K/V blocks into rings (one barrier per block), L2 touches shared by the eight
;     workgroups of a head, kNN-memory attention (row gathers, 4x4x4 MFMA dot products / weighted sums, two-way
;"""


def generate(cfg):
    ABL[0] = cfg.ab
    e = Emit()
    e.L.append(HEADER.rstrip("\n"))
    if cfg.probe and cfg.probe != 1:
        e.L.append(f"; @launch kernel={NAME}_kernel grid=(256,1,1) block=(512,1,1) lds={LDS_TOTAL}")
        e.L.append(f"; @launch kernel=probe_kernel grid=(1,1,1) block=(64,1,1) lds=0")
    else:
        e.L.append(f"; @launch grid=(256,1,1) block=(512,1,1) lds={LDS_TOTAL}")
    e.L.append(DESC)
    e('.amdgcn_target "amdgcn-amd-amdhsa--gfx950"')
    e(".text")
    e(f".globl {NAME}_kernel")
    e(".p2align 8")
    e(f".type {NAME}_kernel,@function")
    e(f"{NAME}_kernel:")
    e("s_cmp_ge_u32 s2, 256")
    e("s_cbranch_scc1 L_exit")
    e("s_load_dwordx16 s[36:51], s[0:1], 0")
    if cfg.warm_code:
        e("s_getpc_b64 s[62:63]")
        e("L_pc:")
        e("s_lshr_b32 s60, s2, 3")
        big = len(cfg.voffs) > 1 or cfg.dual is not None
        e(f"s_lshl_b32 s60, s60, {11 if big else 10}")
        e(f"v_lshrrev_b32 v2, {4 if big else 5}, v0")
        e("v_lshl_add_u32 v2, v2, 6, s60")
        e(f"v_min_u32 v2, L_code_end-L_pc-4, v2")
        e(f"global_load_dword v{WARMD}, v2, s[62:63]")
    e("v_lshrrev_b32 v1, 6, v0")
    e(f"s_lshr_b32 s{sHead}, s2, 3" if cfg.hostile else f"s_and_b32 s{sHead}, s2, 31")
    e(f"v_readfirstlane_b32 s{sW}, v1")
    e(f"s_and_b32 s{sP}, s2, 7" if cfg.hostile else f"s_lshr_b32 s{sP}, s2, 5")
    e(f"s_lshl_b32 s{sN}, s{sP}, 2")
    e(f"s_sub_u32 s{sN}, 60, s{sN}")
    e(f"s_cmp_lt_u32 s{sW}, 4")
    h = Helper(e, cfg)
    if cfg.cfirst:
        e("s_cbranch_scc0 L_helper")
        emit_compute(e, cfg, h.prologue)
    else:
        e("s_cbranch_scc1 L_compute")
        h.prologue()
        emit_compute(e, cfg)
    h.program()
    e("L_exit:")
    e("s_endpgm")
    e("L_code_end:")
    if cfg.probe and cfg.probe != 1:
        kind, K = cfg.probe
        e(".globl probe_kernel\n.p2align 8\n.type probe_kernel,@function\nprobe_kernel:")
        e("s_cmp_ge_u32 s2, 1\ns_cbranch_scc1 P_exit")
        e("s_load_dwordx2 s[4:5], s[0:1], 72\ns_load_dwordx2 s[8:9], s[0:1], 64\ns_mov_b32 s6, 0x100000\ns_mov_b32 s7, 0x20000")
        e("s_mov_b32 s10, 256\ns_mov_b32 s11, 0x20000")
        e("v_lshlrev_b32 v1, 7, v0\ns_waitcnt lgkmcnt(0)")
        for j in range(4):
            e(f"buffer_load_dwordx4 v[{8 * j + 8}:{8 * j + 11}], v1, s[4:7], 0 offen offset:{32 * j}")
            e(f"buffer_load_dwordx4 v[{8 * j + 12}:{8 * j + 15}], v1, s[4:7], 0 offen offset:{32 * j + 16}")
        e("s_waitcnt vmcnt(0)\nv_readfirstlane_b32 s20, v8\ns_sub_u32 s20, s20, 0x10000")
        e("v_mov_b32 v2, -1\nv_mov_b32 v3, 0\nv_mov_b32 v4, 0\nv_mov_b32 v5, 0\nv_mov_b32 v6, 0\nv_mov_b32 v7, 0\nv_mov_b32 v41, 0")
        for j in range(4):
            b = 8 * j + 8
            for r in (0, 1, 2, 4, 5, 6, 7):
                e(f"v_subrev_u32 v{b + r}, s20, v{b + r}")
            e(f"v_max3_u32 v{b + 4}, v{b + 4}, v{b + 5}, v{b + 6}\nv_max_u32 v{b + 4}, v{b + 4}, v{b + 7}")
            e(f"v_min_u32 v2, v2, v{b}\nv_max_u32 v3, v3, v{b + 4}\nv_max_u32 v41, v41, v{b}")
            e(f"v_sub_u32 v40, v{b + 1}, v{b}\nv_add_u32 v4, v4, v40")
            e(f"v_sub_u32 v40, v{b + 2}, v{b + 1}\nv_add_u32 v5, v5, v40")
            e(f"v_add_u32 v6, v6, v{b + 3}")
            e(f"v_sub_u32 v40, v{b + 4}, v{b + 2}\nv_add_u32 v7, v7, v40")
        e("s_mov_b32 s22, -1\ns_mov_b32 s23, 0\ns_mov_b32 s24, 0\ns_mov_b32 s25, 0\ns_mov_b32 s26, 0\ns_mov_b32 s27, 0\ns_mov_b32 s28, 0\ns_mov_b32 s21, 0")
        e("P_red:")
        for r, op in ((2, "s_min_u32"), (3, "s_max_u32"), (4, "s_add_u32"), (5, "s_add_u32"), (6, "s_add_u32"), (7, "s_add_u32")):
            e(f"v_readlane_b32 s30, v{r}, s21\ns_nop 3\n{op} s{20 + r}, s{20 + r}, s30")
        e("v_readlane_b32 s30, v41, s21\ns_nop 3\ns_max_u32 s28, s28, s30")
        e("s_add_u32 s21, s21, 1\ns_cmp_lt_u32 s21, 64\ns_cbranch_scc1 P_red")
        e("s_sub_u32 s23, s23, s22\ns_sub_u32 s28, s28, s22\ns_lshl_b32 s23, s23, 8\ns_lshl_b32 s28, s28, 8\ns_lshr_b32 s26, s26, 4")
        for k in range(6):
            e(f"v_mov_b32 v2, s{23 + k}\nv_mov_b32 v3, 0\nbuffer_store_dword v2, v3, s[8:11], 0 offen offset:{4 * k}\ns_waitcnt vmcnt(0)")
        e(f"s_mul_i32 s31, s{23 + kind}, {K}\ns_lshr_b32 s31, s31, 8\ns_min_u32 s31, s31, 100000")
        e("s_memrealtime s[32:33]\ns_waitcnt lgkmcnt(0)")
        e("P_spin:\ns_memrealtime s[34:35]\ns_waitcnt lgkmcnt(0)\ns_sub_u32 s36, s34, s32\ns_cmp_lt_u32 s36, s31\ns_cbranch_scc1 P_spin")
        e("P_exit:\ns_endpgm")
    e.L.append(f""".section .rodata,"a"
.p2align 6
.amdhsa_kernel {NAME}_kernel
  .amdhsa_next_free_vgpr 256
  .amdhsa_next_free_sgpr 102
  .amdhsa_accum_offset 256
  .amdhsa_group_segment_fixed_size 0
  .amdhsa_kernarg_size 80
  .amdhsa_user_sgpr_count 2
  .amdhsa_user_sgpr_kernarg_segment_ptr 1
  .amdhsa_system_sgpr_workgroup_id_x 1
.end_amdhsa_kernel""")
    if cfg.probe and cfg.probe != 1:
        e.L.append(""".p2align 6
.amdhsa_kernel probe_kernel
  .amdhsa_next_free_vgpr 64
  .amdhsa_next_free_sgpr 64
  .amdhsa_accum_offset 64
  .amdhsa_group_segment_fixed_size 0
  .amdhsa_kernarg_size 80
  .amdhsa_user_sgpr_count 2
  .amdhsa_user_sgpr_kernarg_segment_ptr 1
  .amdhsa_system_sgpr_workgroup_id_x 1
.end_amdhsa_kernel""")
    return e.text()


if __name__ == "__main__":
    cfg = Cfg()
    out = "cdna_kernels/" + NAME + ".s"
    for a in sys.argv[1:]:
        if a.startswith("-o"):
            out = a[2:]
        else:
            k, v = a.split("=", 1)
            assert hasattr(cfg, k), k
            setattr(cfg, k, eval(v))
    open(out, "w").write(generate(cfg))
    import subprocess
    r = subprocess.run(["clang", "-x", "assembler", "-target", "amdgcn-amd-amdhsa", "-mcpu=gfx950",
                        "-c", out, "-o", "chk.o"], capture_output=True, text=True)
    if r.returncode:
        print("ASSEMBLY FAILED", out, r.stderr[:1500])
        import os
        os.remove(out)
        sys.exit(1)
```
